```python
import torch

def _softmax(x, axis=-1):
    return torch.softmax(x, dim=axis)

def _gelu(x):
    return torch.nn.functional.gelu(x, approximate='tanh')

def _silu(x):
    return torch.nn.functional.silu(x)

def _sigmoid(x):
    return torch.sigmoid(x)

def _layernorm(x, axis=-1, eps=1e-05):
    m = x.mean(dim=axis, keepdim=True)
    v = x.var(dim=axis, keepdim=True, unbiased=False)
    return (x - m) / torch.sqrt(v + eps)

def _scatter_add(tgt, idx, src, axis=0):
    return tgt.clone().index_add_(axis, idx, src)

def _segment_sum(src, seg, n):
    out = torch.zeros((n,) + src.shape[1:], dtype=src.dtype)
    return out.index_add_(0, seg, src)

def _pad(x, pw):
    flat = tuple((v for pair in reversed(pw) for v in pair))
    return torch.nn.functional.pad(x, flat)
kernel_name = 'adaLN_cond__memory_aug_recurrent_mem_tr__dense_activation_silu__prompt'

def setup_inputs():

    _w = lambda a: (lambda t: t.to(torch.bfloat16) if t.is_floating_point() else t)(torch.as_tensor(a))

    def _A_setup():
        B, S, Dm = (1, 2048, 640)
        H, Dh = (32, 128)
        M, seg = (8, 32)
        seg = min(seg, S)
        S = S // seg * seg
        return {'x': _w((lambda *s: torch.randn(*s, dtype=torch.bfloat16) * 0.05)(B, S, Dm)), 'mem0': _w((lambda *s: torch.randn(*s, dtype=torch.bfloat16) * 0.8)(B, M, Dm)), 'Wq': _w((lambda *s: torch.randn(*s, dtype=torch.bfloat16) * 1.6)(Dm, H, Dh) * Dm ** (-0.5)), 'Wk': _w((lambda *s: torch.randn(*s, dtype=torch.bfloat16) * 1.6)(Dm, H, Dh) * Dm ** (-0.5)), 'Wv': _w((lambda *s: torch.randn(*s, dtype=torch.bfloat16) * 0.8)(Dm, H, Dh) * Dm ** (-0.5)), 'Wo': _w((lambda *s: torch.randn(*s, dtype=torch.bfloat16) * 0.8)(H, Dh, Dm) * (H * Dh) ** (-0.5)), 'seg_len': seg}
    _A_in = _A_setup()

    def _B_setup():
        B, S, D, F = (1, 2048, 640, 1728)
        return {'x': _w((lambda *s: torch.randn(*s, dtype=torch.bfloat16) * 0.05)(B, S, D)), 'w1': _w((lambda *s: torch.randn(*s, dtype=torch.bfloat16) * 3.2)(D, F) * D ** (-0.5)), 'w2': _w((lambda *s: torch.randn(*s, dtype=torch.bfloat16) * 0.2)(F, D) * F ** (-0.5))}
    _B_in = _B_setup()
    return {'A_x': _A_in['x'], 'A_mem0': _A_in['mem0'], 'A_Wq': _A_in['Wq'], 'A_Wk': _A_in['Wk'], 'A_Wv': _A_in['Wv'], 'A_Wo': _A_in['Wo'], 'A_seg_len': _A_in['seg_len'], 'B_x': _B_in['x'], 'B_w1': _B_in['w1'], 'B_w2': _B_in['w2'], 'c': _w((lambda *s: torch.randn(*s, dtype=torch.bfloat16) * 0.1)(1, 640) * 8.0), 'w_mod': _w((lambda *s: torch.randn(*s, dtype=torch.bfloat16) * 0.1)(640, 6 * 640) * 640 ** (-0.5) * 8.0)}

def reference(A_x, A_mem0, A_Wq, A_Wk, A_Wv, A_Wo, A_seg_len, B_x, B_w1, B_w2, c, w_mod):

    def _A_ref(x, mem0, Wq, Wk, Wv, Wo, seg_len):
        B, S, Dm = x.shape
        H, Dh = (Wq.shape[1], Wq.shape[2])
        M = mem0.shape[1]
        scale = Dh ** (-0.5)
        n_seg = S // seg_len
        L = M + seg_len
        idx = torch.arange(L)
        mask = (idx[:, None] < M) | (idx[:, None] >= idx[None, :])
        mem = mem0
        outs = []
        for s in range(n_seg):
            xs = x[:, s * seg_len:(s + 1) * seg_len, :].clone()
            h = torch.concatenate([mem, xs], axis=1)
            q = torch.einsum('btd,dhe->bhte', h, Wq)
            k = torch.einsum('btd,dhe->bhte', h, Wk)
            v = torch.einsum('btd,dhe->bhte', h, Wv)
            scores = torch.einsum('bhqe,bhke->bhqk', q, k) * scale
            scores = torch.where(mask[None, None], scores, -1000000000.0)
            p = _softmax(scores, axis=-1)
            o = torch.einsum('bhqk,bhke->bhqe', p, v)
            o = torch.einsum('bhte,hed->btd', o, Wo)
            mem = o[:, :M, :].clone()
            outs.append(o[:, M:, :])
        return torch.concatenate(outs, axis=1)

    def _B_ref(x, w1, w2):
        h = torch.einsum('bsd,df->bsf', x, w1)
        h = _silu(h)
        out = torch.einsum('bsf,fd->bsd', h, w2)
        return out
    x = A_x
    mod = (_silu(c) @ w_mod).reshape(c.shape[0], 6, 1, -1)
    sa, ca, ga, sb, cb, gb = (mod[:, 0].clone(), mod[:, 1].clone(), mod[:, 2].clone(), mod[:, 3].clone(), mod[:, 4].clone(), mod[:, 5].clone())
    h = _layernorm(x, axis=-1) * (1 + ca) + sa
    x = x + ga * _A_ref(h, A_mem0, A_Wq, A_Wk, A_Wv, A_Wo, A_seg_len)
    h = _layernorm(x, axis=-1) * (1 + cb) + sb
    x = x + gb * _B_ref(h, B_w1, B_w2)
    return x
```

```python
import re

REG_RE = re.compile(r'\b([vas])\[(\d+):(\d+)\]|\b([vas])(\d+)\b|\b(vcc|exec|m0|scc)(?:_lo|_hi)?\b')
TRANS = ('v_exp_', 'v_log_', 'v_rcp_', 'v_rsq_', 'v_sqrt_', 'v_sin_', 'v_cos_')

def regs_of(tok):
    out = []
    for m in REG_RE.finditer(tok):
        if m.group(1):
            out += [(m.group(1), i) for i in range(int(m.group(2)), int(m.group(3)) + 1)]
        elif m.group(4):
            out.append((m.group(4), int(m.group(5))))
        else:
            out.append((m.group(6), 0))
    return out

def split_ops(s):
    ops, depth, cur = [], 0, ''
    for ch in s:
        if ch in '[(':
            depth += 1
        if ch in '])':
            depth -= 1
        if ch == ',' and depth == 0:
            ops.append(cur.strip()); cur = ''
        else:
            cur += ch
    if cur.strip():
        ops.append(cur.strip())
    return ops

class Ins:
    __slots__ = ('text', 'op', 'kind', 'dst', 'src', 'a', 'b', 'c', 'passes', 'ws', 'target', 'wide_store', 'dpp', 'lds_dma')
    def __init__(self, text):
        self.text = text
        t = text.split(';')[0].strip()
        parts = t.split(None, 1)
        op = parts[0]
        rest = parts[1] if len(parts) > 1 else ''
        self.op = op
        ops = split_ops(rest)
        self.dst = []; self.src = []; self.a = self.b = self.c = []
        self.passes = 0; self.ws = 1; self.target = None; self.wide_store = []
        self.dpp = False; self.lds_dma = False
        R = [regs_of(o) for o in ops]
        allr = [r for x in R for r in x]
        if op.startswith('v_mfma') or op.startswith('v_smfmac'):
            self.kind = 'mfma'
            self.passes = 8 if '32x32' in op else 4
            self.dst = R[0]; self.a = R[1]; self.b = R[2]
            if op.startswith('v_smfmac'):
                self.c = R[0]; self.b = R[2] + R[3]
            else:
                self.c = R[3] if len(R) > 3 else []
            self.src = self.a + self.b + self.c
        elif op.startswith('v_'):
            self.kind = 'trans' if op.startswith(TRANS) else 'valu'
            self.dpp = ('row_' in rest or 'quad_perm' in rest or 'wave_' in rest or '_dpp' in op)
            if op.startswith('v_permlane') and 'swap' in op:
                self.kind = 'permlane'; self.dst = R[0] + R[1]; self.src = R[0] + R[1]
            elif op.startswith('v_cmpx'):
                self.dst = R[0] + [('exec', 0)]; self.src = allr[len(R[0]):]
            elif op.startswith(('v_add_co', 'v_sub_co', 'v_addc_co', 'v_subb_co', 'v_subrev_co', 'v_div_scale', 'v_mad_u64')):
                self.dst = R[0] + R[1]; self.src = [r for x in R[2:] for r in x]
            elif op.startswith(('v_readfirstlane', 'v_readlane')):
                self.kind = 'readlane'; self.dst = R[0]; self.src = [r for x in R[1:] for r in x]
            elif op == 'v_nop':
                pass
            else:
                self.dst = R[0]; self.src = [r for x in R[1:] for r in x]
                if op.startswith(('v_fmac', 'v_pk_fmac', 'v_dot2c', 'v_writelane')) or self.dpp:
                    self.src = self.src + R[0]
        elif op.startswith('ds_'):
            self.kind = 'ds'
            if op.startswith(('ds_read', 'ds_bpermute', 'ds_permute', 'ds_swizzle')) or '_rtn' in op:
                self.dst = R[0]; self.src = [r for x in R[1:] for r in x]
            else:
                self.src = allr
        elif op.startswith(('buffer_', 'global_', 'flat_')):
            self.kind = 'vmem'
            is_lds = bool(re.search(r'\blds\b', rest)) or '_lds_' in op
            if 'load' in op and not is_lds:
                self.dst = R[0]; self.src = [r for x in R[1:] for r in x]
            else:
                self.src = allr
                if is_lds:
                    self.lds_dma = True
                if 'atomic' in op and re.search(r'\bsc0\b', rest):
                    self.dst = R[0]
                if 'store' in op and ('x4' in op or 'x3' in op):
                    self.wide_store = R[0] if op.startswith('buffer_') else R[1]
        elif op.startswith('s_'):
            self.kind = 'salu'
            if op == 's_nop':
                self.ws = int(rest, 0) + 1
            elif op.startswith(('s_branch', 's_cbranch')):
                self.target = rest.strip()
            elif op.startswith(('s_cmp', 's_waitcnt', 's_barrier', 's_endpgm', 's_sleep', 's_setprio', 's_bitcmp')):
                self.src = allr
            else:
                self.dst = R[0] if R else []; self.src = [r for x in R[1:] for r in x]
                if 'saveexec' in op:
                    self.dst = self.dst + [('exec', 0)]
        else:
            raise ValueError('unknown instruction: ' + text)

VALU_KINDS = ('valu', 'trans', 'permlane', 'readlane')

def need(state, ins):
    req = 0
    def chk(key, n):
        nonlocal req
        if key in state:
            req = max(req, n - state[key])
    k = ins.kind
    vec = lambda rs: [r for r in rs if r[0] in 'va']
    sca = lambda rs: [r for r in rs if r[0] in ('s', 'vcc')]
    if k == 'mfma':
        for r in vec(ins.src):
            chk(('valu_w', r), 2)
        for r in vec(ins.a + ins.b):
            chk(('mfma4_w', r), 8); chk(('mfma8_w', r), 12)
        tup = (ins.c[0], len(ins.c), ins.passes) if ins.c else None
        for r in vec(ins.c):
            for p, n in ((4, 6), (8, 10)):
                key = ('mfma%d_w' % p, r)
                if key in state and state.get(('mfma_tup', r)) is not None and state[('mfma_tup', r)] != tup:
                    chk(key, n)
        tupd = (ins.dst[0], len(ins.dst), ins.passes)
        for r in vec(ins.dst):
            for p, n in ((4, 6), (8, 10)):
                key = ('mfma%d_w' % p, r)
                if key in state and state.get(('mfma_tup', r)) != tupd:
                    chk(key, n)
        chk(('valu_w', ('exec', 0)), 4)
    elif k in VALU_KINDS:
        for r in vec(ins.src + ins.dst):
            chk(('mfma4_w', r), 8); chk(('mfma8_w', r), 12)
        for r in vec(ins.dst):
            chk(('mfma4_c', r), 3); chk(('mfma8_c', r), 7)
            chk(('store_d', r), 2)
        if k != 'trans':
            for r in vec(ins.src):
                chk(('trans_w', r), 1)
        if k == 'permlane' or ins.dpp:
            for r in vec(ins.src):
                chk(('valu_w', r), 2)
            chk(('valu_w', ('exec', 0)), 5 if ins.dpp else 4)
        if k == 'readlane':
            for r in vec(ins.src):
                chk(('valu_w', r), 1)
            for r in sca(ins.src):
                chk(('valu_w', r), 4)
            chk(('valu_w', ('exec', 0)), 4)
        for r in sca(ins.src):
            chk(('valu_w', r), 2)
    elif k in ('ds', 'vmem'):
        for r in vec(ins.src + ins.dst):
            chk(('mfma4_w', r), 8); chk(('mfma8_w', r), 12)
        for r in vec(ins.dst):
            chk(('store_d', r), 1)
        if k == 'vmem':
            for r in sca(ins.src):
                chk(('valu_w', r), 5)
            if ins.lds_dma:
                chk(('salu_w', ('m0', 0)), 1)
    elif k == 'salu':
        for r in sca(ins.src):
            chk(('valu_w', r), 1)
        if ins.op.startswith('s_cbranch_vcc'):
            chk(('valu_w', ('vcc', 0)), 1)
    return max(req, 0)

def advance(state, n):
    dead = []
    for key in state:
        if key[0] in ('mfma_tup', 'pipe_len'):
            continue
        state[key] += n
        if state[key] > 20:
            dead.append(key)
    for key in dead:
        del state[key]
        if key[0] in ('mfma4_w', 'mfma8_w'):
            state.pop(('mfma_tup', key[1]), None)

def record(state, ins):
    k = ins.kind
    if k == 'mfma':
        tup = (ins.dst[0], len(ins.dst), ins.passes)
        state[('pipe', 0)] = 0
        state[('pipe_len', 0)] = (ins.passes,)
        for r in ins.dst:
            state.pop(('mfma4_w', r), None); state.pop(('mfma8_w', r), None)
            state[('mfma%d_w' % ins.passes, r)] = 0
            state[('mfma_tup', r)] = tup
        for r in ins.c + (ins.b[-1:] if ins.op.startswith('v_smfmac') else []):
            state[('mfma%d_c' % ins.passes, r)] = 0
    elif k in VALU_KINDS:
        for r in ins.dst:
            state[('valu_w', r)] = 0
            if k == 'trans':
                state[('trans_w', r)] = 0
            else:
                state.pop(('trans_w', r), None)
    elif k == 'salu':
        for r in ins.dst:
            state[('salu_w', r)] = 0
            state.pop(('valu_w', r), None)
    elif k == 'vmem':
        for r in ins.wide_store:
            state[('store_d', r)] = 0

def merge(a, b):
    out = {k_: v_ for k_, v_ in a.items() if k_[0] not in ('pipe', 'pipe_len')}
    for key, v in b.items():
        if key[0] in ('pipe', 'pipe_len'):
            continue
        if key[0] == 'mfma_tup':
            if key in out and out[key] != v:
                out[key] = 'mixed'
            else:
                out[key] = v
        else:
            out[key] = min(out.get(key, 99), v)
    return out

def hazard_pass(items):
    parsed = [(k, Ins(t) if k == 'i' else t) for k, t in items]
    snaps = {}
    for _ in range(4):
        out = []; state = {}; changed = False; filler = None
        for k, x in parsed:
            if k == 'l':
                if x in snaps:
                    state = merge(state, snaps[x])
                out.append(x + ':')
            elif k == 'f':
                filler = x
            elif k == 'x':
                out.append(x)
            else:
                n = need(state, x)
                if filler and n >= 3:
                    for _i in range(n):
                        out.append('    ' + filler)
                    advance(state, n); n = 0
                while n > 0:
                    m = min(n, 16)
                    out.append('    s_nop %d' % (m - 1)); advance(state, m); n -= m
                if x.kind == 'mfma' and ('pipe', 0) in state:
                    gap = state[('pipe_len', 0)][0] - state[('pipe', 0)] - 1
                    if gap > 0:
                        advance(state, gap)
                out.append('    ' + x.text)
                advance(state, x.ws)
                record(state, x)
                if x.target is not None:
                    new = merge(snaps.get(x.target, {}), state)
                    if new != snaps.get(x.target):
                        snaps[x.target] = new; changed = True
                    if x.op == 's_branch':
                        state = {}
                if x.op == 's_endpgm':
                    state = {}
        if not changed:
            break
    return out

class Asm:
    def __init__(self):
        self.items = []
        self.uid = 0
    def __call__(self, text):
        for line in text.split('\n'):
            line = line.strip()
            if not line:
                continue
            if line.startswith(';'):
                self.items.append(('x', '    ' + line))
            else:
                self.items.append(('i', line))
    def label(self, name):
        self.items.append(('l', name))
    def filler(self, text):
        self.items.append(('f', text))
    def raw(self, text):
        self.items.append(('x', text))
    def newlabel(self, base='L'):
        self.uid += 1
        return '%s_%d' % (base, self.uid)
    def text(self):
        return '\n'.join(hazard_pass(self.items)) + '\n'

def v(n, cnt=1):
    return 'v%d' % n if cnt == 1 else 'v[%d:%d]' % (n, n + cnt - 1)
def a(n, cnt=1):
    return 'a%d' % n if cnt == 1 else 'a[%d:%d]' % (n, n + cnt - 1)
def s(n, cnt=1):
    return 's%d' % n if cnt == 1 else 's[%d:%d]' % (n, n + cnt - 1)
```

```python
WS_SIZE = 268435456
MOD   = 0x0000000
PA    = 0x0100000
PA_BT = 48 * 4096
PA_TOG = 0x80000
MB    = 0x0200000
FL    = 0x0240000
FL_INIT = FL
FL_H  = FL + 0x400
FL_KV = FL + 0x1000
FL_Q  = FL + 0x2000
FL_ATT = FL + 0x3000
FL_WO = FL + 0x4000
FL_LN = FL + 0x5000
FL_FF = FL + 0x6000
CAL   = 0x0220000
GW    = 0x0300000
TS    = 0x0500000
H     = 0x0800000
X1    = 0x0C00000
H2    = 0x1000000
FF    = 0x1400000
QT    = 0x2000000
KV    = 0x3000000
KVM   = 0x5000000
OO    = 0x7000000
PART  = 0x8000000
A_X, A_MEM0, A_WQ, A_WK, A_WV, A_WO, A_SEG, A_BX, A_W1, A_W2, A_C, A_WMOD, A_OUT, A_DBG, A_WS = [8 * i for i in range(15)]
```

```python
from asmlib import *
from layout import *
import tok

S_WS = 8
S_WQ, S_WK, S_WV, S_WO = 12, 16, 20, 24
S_M0 = 28
S_DBG = 32
sW, sH, sX, sFOR = 36, 37, 38, 39
sSTEP = 40
sPAW, sPAR = 41, 42
sMLR, sMRR = 43, 44
sMLW, sMRW, sMLZ, sMRZ = 45, 46, 47, 48
sKV, sOW, sPUBK, sGW = 49, 50, 51, 52
sPUBV, sPZ0, sPZ1, sPOL, sKNOWN, sKVF = 101, 4, 5, 6, 7, 3
sBUD = 53
sT0, sT1, sT2, sT3 = 54, 55, 56, 57
sC = 58
sMASK_LO8 = 60
sMASK_OW = 62
sMASK_LT32 = 64
sMASK_GE32 = 66
sCI = 68
sTS = 69
sTM = 70
sB0, sB1_, sB2_ = 90, 91, 92
sROWO, sROWR = 94, 95
sKVM0, sTCH = 93, 100
cMLR, cMRR, cMLW, cMRW = 96, 97, 98, 99

vL16, vL16X, vIDX, vPERM, vPAE, vPAS, vXW, vTR, vPUB, vLW0, vLW1, vLW2 = range(12)
NEG = 12
L_SEL, L_JUNK = 0, 1024
ACCQ, ACCK, ACCV, AW = 16, 20, 24, 28
SL = [44 + 8 * i for i in range(4)]
MISC = 76
VW0 = 80

L_M, L_QX, L_KX, L_R, L_OX, L_KT, L_VT = 2048, 2048, 4096, 8192, 9216, 16384, 24576

def opreg(i):
    return a(8 * i, 8) if i < 32 else v(VW0 + 8 * (i - 32), 8)
def opreg_pair(i, q):
    return a(8 * i + 2 * q, 2) if i < 32 else v(VW0 + 8 * (i - 32) + 2 * q, 2)

LDS_STAGES = [('v', c, 0) for c in range(5)] + [('o', 0, 0), ('o', 1, 0), ('o', 1, 2)]
G_STAGE = ('k', 9, 0)
ALL_STAGES = [(m, c, 0) for m in 'qkv' for c in range(10)] + [('o', u, p) for u in range(2) for p in range(3)]
REG_STAGES = [st for st in ALL_STAGES if st not in LDS_STAGES and st != G_STAGE]
ORDER = [G_STAGE] + REG_STAGES + LDS_STAGES
assert len(ORDER) == 36
PLACE = {}
_n = 0
for st in REG_STAGES:
    for t in range(2):
        PLACE[st + (t,)] = ('r', _n); _n += 1
assert _n == 54
for i, st in enumerate(LDS_STAGES):
    for t in range(2):
        PLACE[st + (t,)] = ('l', 32768 + 16384 * i + 8192 * t)
for t in range(2):
    PLACE[G_STAGE + (t,)] = ('g', 2048 * t)

CFG = dict(delay_a=16, delay_as=32, extra_a=0, gap_a=24, delay_b=24, extra_b=0, gap_b=24, rem_chk=30, fill=True, pol=0, fused=False, stamps=['top','preB1','locdone','preB2','B4','presm','preB5','wodone','pub'])

def lds_w_addr(off):
    return (vLW0, vLW1, vLW2)[off >> 16], off & 0xffff

def srd_fin(k, sreg, nbytes):
    k(f's_and_b32 {s(sreg+1)}, {s(sreg+1)}, 0xffff')
    k(f's_mov_b32 {s(sreg+2)}, {nbytes}')
    k(f's_mov_b32 {s(sreg+3)}, 0x20000')

def emit_role(k, exit_label):
    k('s_cmp_ge_u32 s2, 256')
    k(f's_cbranch_scc1 {exit_label}')
    for sr, ka in ((S_WS, A_WS), (S_WQ, A_WQ), (S_WK, A_WK), (S_WV, A_WV), (S_WO, A_WO), (S_M0, A_MEM0), (S_DBG, A_DBG)):
        k(f's_load_dwordx2 {s(sr,2)}, s[0:1], {ka}')
    k(f'v_lshrrev_b32 v1, 6, v0')
    k(f'v_and_b32 v0, 63, v0')
    k(f'v_readfirstlane_b32 {s(sW)}, v1')
    k(f's_getreg_b32 {s(sT0)}, hwreg(HW_REG_XCC_ID, 0, 4)')
    k(f's_and_b32 {s(sT0)}, {s(sT0)}, 7')
    k('s_waitcnt lgkmcnt(0)')
    for sr, nb in ((S_WS, WS_SIZE), (S_WQ, 5242880), (S_WK, 5242880), (S_WV, 5242880), (S_WO, 5242880), (S_M0, 10240), (S_DBG, 256)):
        srd_fin(k, sr, nb)
    lw, lt, lg, lc = k.newlabel('role_wait'), k.newlabel('role_try'), k.newlabel('role_got'), k.newlabel('role_cal')
    k(f's_cmp_eq_u32 {s(sW)}, 1')
    k(f's_cbranch_scc1 {lc}')
    k(f's_cmp_lg_u32 {s(sW)}, 0')
    k(f's_cbranch_scc1 {lw}')
    k(f's_mov_b32 {s(sX)}, {s(sT0)}')
    k(f's_mov_b32 {s(sT1)}, 1')
    k('s_mov_b64 exec, 1')
    k.label(lt)
    k('v_mov_b32 v2, 1')
    k(f's_lshl_b32 {s(sT2)}, {s(sX)}, 4')
    k(f's_cmp_lt_u32 {s(sX)}, 2')
    k(f's_cselect_b32 {s(sT3)}, 0, 96')
    k(f's_add_u32 {s(sT2)}, {s(sT2)}, {s(sT3)}')
    k(f'v_mov_b32 v3, {s(sT2)}')
    k(f'buffer_atomic_add v2, v3, {s(S_DBG,4)}, 0 offen sc0')
    k('s_waitcnt vmcnt(0)')
    k(f'v_readfirstlane_b32 {s(sH)}, v2')
    k(f's_cmp_lt_u32 {s(sH)}, 32')
    k(f's_cbranch_scc1 {lg}')
    k(f's_add_u32 {s(sT1)}, {s(sT1)}, 1')
    k(f's_and_b32 {s(sX)}, {s(sT1)}, 7')
    k(f's_cmp_lt_u32 {s(sT1)}, 10')
    k(f's_cbranch_scc1 {lt}')
    k(f's_mov_b32 {s(sX)}, 8')
    k.label(lg)
    k(f's_lshl_b32 {s(sT2)}, {s(sX)}, 8')
    k(f's_or_b32 {s(sT2)}, {s(sT2)}, {s(sH)}')
    k(f'v_mov_b32 v2, {s(sT2)}')
    k('v_mov_b32 v3, 0')
    k('ds_write_b32 v3, v2')
    k('s_mov_b64 exec, -1')
    k('s_waitcnt lgkmcnt(0)')
    k(f's_branch {lw}')
    k.label(lc)
    k(f's_cmp_lg_u32 {s(sT0)}, 0')
    k(f's_cbranch_scc1 {lw}')
    k(f's_lshr_b32 {s(sT1)}, s2, 3')
    k(f's_and_b32 {s(sT1)}, {s(sT1)}, 31')
    k(f's_lshl_b32 {s(sT1)}, {s(sT1)}, 7')
    k(f's_add_u32 {s(sT1)}, {s(sT1)}, {CAL}')
    k(f's_add_u32 {s(sT2)}, {s(sT1)}, 8192')
    k('v_mov_b32 v3, 0')
    k('s_mov_b64 exec, 1')
    k(f'buffer_store_dword v3, v3, {s(S_WS,4)}, {s(sT1)} offen sc1')
    k(f'buffer_store_dword v3, v3, {s(S_WS,4)}, {s(sT2)} offen sc1')
    k('s_waitcnt vmcnt(0)')
    k('s_memtime s[70:71]')
    k(f'buffer_store_dword v3, v3, {s(S_WS,4)}, {s(sT1)} offen sc1')
    k('s_waitcnt vmcnt(0)')
    k('s_memtime s[72:73]')
    k(f'buffer_store_dword v3, v3, {s(S_WS,4)}, {s(sT2)} offen sc1')
    k('s_waitcnt vmcnt(0)')
    k('s_memtime s[74:75]')
    k('s_waitcnt lgkmcnt(0)')
    k('s_sub_u32 s70, s72, s70')
    k('s_sub_u32 s72, s74, s72')
    k('s_cmp_lt_u32 s72, s70')
    k(f's_cselect_b32 {s(sT1)}, 1, 0')
    k(f'v_mov_b32 v2, {s(sT1)}')
    k('ds_write_b32 v3, v2 offset:4')
    k('s_mov_b64 exec, -1')
    k('s_waitcnt lgkmcnt(0)')
    k.label(lw)
    k('s_barrier')
    k('v_mov_b32 v3, 0')
    k('ds_read_b64 v[4:5], v3')
    k('s_waitcnt lgkmcnt(0)')
    k(f'v_readfirstlane_b32 {s(sT2)}, v4')
    k(f'v_readfirstlane_b32 {s(sPOL)}, v5')
    k(f's_and_b32 {s(sPOL)}, {s(sPOL)}, 1')
    k(f's_lshr_b32 {s(sX)}, {s(sT2)}, 8')
    k(f's_and_b32 {s(sH)}, {s(sT2)}, 31')
    k(f's_cmp_lg_u32 {s(sX)}, {s(sT0)}')
    k(f's_cselect_b32 {s(sFOR)}, 1, 0')
    k('s_barrier')

def bits(k, dst, L, spec, tmp, first=True):
    for i, (pos, width, sh) in enumerate(spec):
        k(f'v_bfe_u32 v{tmp}, v{L}, {pos}, {width}')
        if i == 0 and first:
            k(f'v_lshlrev_b32 v{dst}, {sh}, v{tmp}')
        else:
            k(f'v_lshl_add_u32 v{dst}, v{tmp}, {sh}, v{dst}')

def emit_setup(k):
    L, T = 20, 23
    k(f'v_mov_b32 v{L}, v0')
    k(f'v_lshlrev_b32 v{vL16}, 4, v{L}')
    k(f'v_xor_b32 v{vL16X}, 128, v{vL16}')
    k(f's_mov_b32 {s(sMASK_LO8)}, 0x00ff00ff')
    k(f's_mov_b32 {s(sMASK_LO8+1)}, 0x00ff00ff')
    k(f's_mov_b64 {s(sMASK_LT32,2)}, 0xffffffff')
    k(f's_not_b64 {s(sMASK_GE32,2)}, {s(sMASK_LT32,2)}')
    k(f's_not_b64 {s(sMASK_OW,2)}, {s(sMASK_LO8,2)}')
    k(f's_bitcmp1_b32 {s(sW)}, 0')
    k(f's_cselect_b64 {s(sMASK_OW,2)}, {s(sMASK_OW,2)}, {s(sMASK_LO8,2)}')
    k(f'v_mov_b32 v21, 0xeeee')
    k(f'v_mov_b32 v22, 0x4444')
    k(f'v_cndmask_b32 v{vIDX}, v21, v22, {s(sMASK_LO8,2)}')
    bits(k, vPERM, L, [(3, 1, 9), (4, 1, 8), (2, 1, 7), (5, 1, 6), (0, 2, 4)], T)
    bits(k, vPAE, L, [(3, 1, 14), (4, 2, 12), (0, 3, 4)], T)
    k(f's_lshl_b32 {s(sT0)}, {s(sW)}, 15')
    k(f'v_add_u32 v{vPAE}, {s(sT0)}, v{vPAE}')
    bits(k, vPAS, L, [(4, 2, 12), (0, 4, 3)], T)
    k(f's_lshl_b32 {s(sT0)}, {s(sW)}, 14')
    k(f's_add_u32 {s(sT0)}, {s(sT0)}, {32 * 4096}')
    k(f'v_add_u32 v{vPAS}, {s(sT0)}, v{vPAS}')
    bits(k, vXW, L, [(0, 4, 4), (4, 1, 3), (5, 1, 8)], T)
    k(f's_lshl_b32 {s(sT0)}, {s(sW)}, 9')
    k(f'v_add_u32 v{vXW}, {s(sT0)}, v{vXW}')
    bits(k, vTR, L, [(2, 4, 4), (0, 1, 3)], T)
    bits(k, vPUB, L, [(0, 4, 4), (4, 2, 2)], T)
    k(f's_lshl_b32 {s(sT0)}, {s(sW)}, 11')
    k(f'v_add_u32 v{vLW0}, {s(sT0)}, v{vL16}')
    k(f'v_add_u32 v{vLW1}, 0x10000, v{vLW0}')
    k(f'v_add_u32 v{vLW2}, 0x20000, v{vLW0}')
    k(f's_mov_b32 {s(sC)}, 0x3e0293ee')
    k(f's_mov_b32 {s(sC+1)}, 0x3e0293ee')
    k(f's_mov_b32 {s(sBUD)}, 0x40000')
    k(f's_lshr_b32 {s(sOW)}, {s(sW)}, 1')
    k(f's_lshl_b32 {s(sOW)}, {s(sOW)}, 11')
    l1, l2 = k.newlabel('ci'), k.newlabel('ci')
    k(f's_mov_b32 {s(sCI)}, {s(sH)}')
    k(f's_cmp_eq_u32 {s(sW)}, 0')
    k(f's_cbranch_scc1 {l1}')
    k(f's_add_u32 {s(sCI)}, {s(sH)}, 32')
    k(f's_cmp_lg_u32 {s(sW)}, 2')
    k(f's_cbranch_scc1 {l2}')
    k(f's_cmp_lt_u32 {s(sH)}, 16')
    k(f's_cbranch_scc1 {l1}')
    k.label(l2)
    k(f's_mov_b32 {s(sCI)}, -1')
    k.label(l1)
    k(f's_lshl_b32 {s(sT0)}, {s(sX)}, 5')
    k(f's_add_u32 {s(sT0)}, {s(sT0)}, {s(sH)}')
    k(f's_lshl_b32 {s(sT0)}, {s(sT0)}, 2')
    k(f's_add_u32 {s(sT0)}, {s(sT0)}, {s(sW)}')
    k(f's_lshl_b32 {s(sTS)}, {s(sT0)}, 13')
    k(f's_add_u32 {s(sTS)}, {s(sTS)}, {TS}')
    k(f's_lshl_b32 {s(sT0)}, {s(sT0)}, 12')
    k(f's_add_u32 {s(sGW)}, {s(sT0)}, {GW}')
    k(f's_lshl_b32 {s(sT0)}, {s(sH)}, 8')
    k(f's_lshl_b32 {s(sROWO)}, {s(sX)}, 21')
    k(f's_xor_b32 {s(sROWR)}, {s(sROWO)}, 0x200000')
    k(f's_add_u32 {s(sROWO)}, {s(sROWO)}, {s(sT0)}')
    k(f's_add_u32 {s(sROWR)}, {s(sROWR)}, {s(sT0)}')
    k(f's_lshl_b32 {s(sT0)}, {s(sX)}, 13')
    k(f's_add_u32 {s(sT0)}, {s(sT0)}, {MB}')
    k(f's_lshl_b32 {s(sT1)}, {s(sW)}, 11')
    k(f's_add_u32 {s(cMLR)}, {s(sT0)}, {s(sT1)}')
    k(f's_sub_u32 {s(cMLR)}, {s(cMLR)}, 2048')
    k(f's_lshl_b32 {s(sT1)}, {s(sCI)}, 7')
    k(f's_add_u32 {s(cMLW)}, {s(sT0)}, {s(sT1)}')
    k(f's_lshl_b32 {s(sT0)}, {s(sX)}, 12')
    k(f's_add_u32 {s(sT0)}, {s(sT0)}, {MB + 16384 + 8192 * CFG["pol"]}')
    k(f's_add_u32 {s(cMRW)}, {s(sT0)}, {s(sT1)}')
    k(f's_xor_b32 {s(sT0)}, {s(sT0)}, 4096')
    k(f's_lshl_b32 {s(sT1)}, {s(sW)}, 10')
    k(f's_add_u32 {s(cMRR)}, {s(sT0)}, {s(sT1)}')

def emit_loader(k):
    L, T = 20, 23
    vQ, vOE, vOS = 24, 25, 26
    rE, rS, rO = 27, 28, 29
    tA, tB = 30, 31
    k(f's_lshl_b32 {s(sT0)}, {s(sW)}, 4')
    k(f'v_lshrrev_b32 v21, 4, v{L}')
    k(f'v_add_u32 v21, {s(sT0)}, v21')
    k(f'v_lshlrev_b32 v{vQ}, 13, v21')
    bits(k, vQ, L, [(0, 4, 4)], T, first=False)
    k(f'v_mul_u32_u24 v{vOS}, 1280, v21')
    k(f'v_mov_b32 v{vOE}, v{vOS}')
    bits(k, vOE, L, [(2, 2, 7), (0, 2, 4)], T, first=False)
    bits(k, vOS, L, [(0, 4, 4)], T, first=False)
    def rowexpr(dst, sh_r0, sh_r1, sh_g0, sh_g1):
        bits(k, dst, L, [(0, 2, 3), (3, 1, 5), (2, 1, 8 + sh_r0), (3, 1, 8 + sh_r1), (4, 1, 8 + sh_g0), (5, 1, 8 + sh_g1)], T)
        k(f's_lshl_b32 {s(sT0)}, {s(sW)}, 6')
        k(f'v_add_u32 v{dst}, {s(sT0)}, v{dst}')
    rowexpr(rE, 0, 3, 1, 4)
    rowexpr(rS, 1, 5, 2, 4)
    rowexpr(rO, 0, 5, 4, 2)
    sbit = {'E': 256 << 3, 'S': 256 << 5, 'O': 256 << 5}
    qrow = {'E': lambda q: 32 * (q >> 1) + 4 * (q & 1), 'S': lambda q: (q >> 1) + 8 * (q & 1), 'O': lambda q: 8 * (q >> 1) + 2 * (q & 1)}
    sWOE, sWOS, sQS, sM0W = sPAW, sPAR, sMLR, sMRR
    k(f's_mul_i32 {s(sWOS)}, {s(sH)}, 163840')
    k(f's_lshl_b32 {s(sT0)}, {s(sX)}, 9')
    k(f's_add_u32 {s(sWOE)}, {s(sWOS)}, {s(sT0)}')
    k(f's_add_u32 {s(sWOS)}, {s(sWOS)}, 1024')
    k(f's_lshl_b32 {s(sQS)}, {s(sH)}, 8')
    k(f's_add_u32 {s(sQS)}, {s(sQS)}, {512 * 8192}')
    k(f's_lshl_b32 {s(sM0W)}, {s(sW)}, 12')
    vm = []
    def issue(i):
        mat, c, p = ORDER[i]
        slot = ((i + 4) % 10) * 16384
        for j in range(4):
            if mat == 'o':
                sr = S_WO
                if p < 2:
                    base, vo, off = sWOE, vOE, c * 64 * 1280 + 64 * p + j * 4 * 1280
                else:
                    base, vo, off = sWOS, vOS, c * 64 * 1280 + j * 4 * 1280
            else:
                sr = {'q': S_WQ, 'k': S_WK, 'v': S_WV}[mat]
                vo = vQ
                if c < 4:
                    base, off = sROWO, c * 64 * 8192
                elif c < 6:
                    base, off = sQS, (c - 4) * 64 * 8192
                else:
                    base, off = sROWR, (c - 6) * 64 * 8192
                off += j * 4 * 8192
            k(f's_add_u32 {s(sT0)}, {s(base)}, {off}')
            k(f's_add_u32 m0, {s(sM0W)}, {slot + j * 1024}')
            k(f'buffer_load_dwordx4 v{vo}, {s(sr,4)}, {s(sT0)} offen lds')
            vm.append(i)
    DEPTH = 8
    for i in range(DEPTH):
        issue(i)
    TMP = [44, 60]
    pending = None
    def writeback(pend):
        regs, offs = pend
        for r, off in zip(regs, offs):
            b, imm = lds_w_addr(off)
            k(f'ds_write_b128 v{b}, {v(r,4)} offset:{imm}')
            k(f'ds_write_b128 v{b}, {v(r+4,4)} offset:{imm + 1024}')
    for i in range(36):
        mat, c, p = ORDER[i]
        slot = ((i + 4) % 10) * 16384
        last = max(ix for ix, t in enumerate(vm) if t == i)
        k(f's_waitcnt vmcnt({len(vm) - 1 - last}) lgkmcnt(0)')
        k('s_barrier')
        if pending:
            writeback(pending); pending = None
        kind = 'O' if mat == 'o' else ('S' if c in (4, 5) else 'E')
        rb = {'E': rE, 'S': rS, 'O': rO}[kind]
        k(f'v_add_u32 v{tA}, {slot}, v{rb}')
        k(f'v_xor_b32 v{tB}, {sbit[kind]}, v{tA}')
        tmp = TMP[i & 1]
        wb_regs, wb_offs, g_regs = [], [], []
        for t in range(2):
            pl = PLACE[(mat, c, p, t)]
            for q in range(4):
                dst = opreg_pair(pl[1], q) if pl[0] == 'r' else v(tmp + 8 * t + 2 * q, 2)
                k(f'ds_read_b64_tr_b16 {dst}, v{(tA, tB)[t]} offset:{qrow[kind](q) * 256}')
            if pl[0] == 'l':
                wb_regs.append(tmp + 8 * t); wb_offs.append(pl[1])
            if pl[0] == 'g':
                g_regs.append((tmp + 8 * t, pl[1]))
        if wb_regs:
            pending = (wb_regs, wb_offs)
        if g_regs:
            k('s_waitcnt lgkmcnt(0)')
            for r, off in g_regs:
                k(f'buffer_store_dwordx4 {v(r,4)}, v{vL16}, {s(S_WS,4)}, {s(sGW)} offen offset:{off}')
                k(f'buffer_store_dwordx4 {v(r+4,4)}, v{vL16}, {s(S_WS,4)}, {s(sGW)} offen offset:{off + 1024}')
                vm += ['g', 'g']
        if i + DEPTH < 36:
            issue(i + DEPTH)
    k('s_waitcnt vmcnt(0) lgkmcnt(0)')
    k('s_barrier')
    writeback(pending)
    k('s_waitcnt lgkmcnt(0)')

def stamp(k, name, diag):
    if diag and name in CFG['stamps']:
        idx = CFG['stamps'].index(name)
        op = 's_memrealtime' if CFG.get('rt') else 's_memtime'
        k(f'{op} {s(sTM + 2 * idx, 2)}')

def max_ops(regs, tmp):
    regs = list(regs)
    out = [f'v_max3_u32 v{tmp}, v{regs[0]}, v{regs[1]}, v{regs[2]}']
    rest = regs[3:]
    while rest:
        if len(rest) >= 2:
            out.append(f'v_max3_u32 v{tmp}, v{tmp}, v{rest[0]}, v{rest[1]}'); rest = rest[2:]
        else:
            out.append(f'v_max_u32 v{tmp}, v{tmp}, v{rest[0]}'); rest = rest[1:]
    return out

def retry_branch(k, tmp, retry_stub):
    k(f'v_cmp_eq_u32 vcc, -1, v{tmp}')
    k(f's_cbranch_vccnz {retry_stub}')

def masked_retry_stub(k, stub, check, cont, loads, depth):
    k.label(stub)
    k(f's_sub_u32 {s(sBUD)}, {s(sBUD)}, 1')
    giveup = k.newlabel('giveup')
    k(f's_cbranch_scc1 {giveup}')
    k('s_mov_b64 exec, vcc')
    for op in loads:
        k(op)
    k('s_mov_b64 exec, -1')
    k(f's_branch {check}')
    k.label(giveup)
    k(f's_mov_b32 {s(sBUD)}, 0')
    k(f's_branch {cont}')

def offsets_ops():
    return [
        f's_xor_b32 {s(sPAW)}, {s(sPAW)}, {PA_TOG}',
        f's_xor_b32 {s(sPAR)}, {s(sPAR)}, {PA_TOG}',
        f's_xor_b32 {s(sPZ0)}, {s(sPZ0)}, {PA_TOG}',
        f's_xor_b32 {s(sPZ1)}, {s(sPZ1)}, {PA_TOG}',
        f's_add_u32 {s(sT0)}, {s(sSTEP)}, 1',
        f's_and_b32 {s(sT0)}, {s(sT0)}, 3',
        f's_lshl_b32 {s(sT0)}, {s(sT0)}, 15',
        f's_add_u32 {s(sMLR)}, {s(sT0)}, {s(cMLR)}',
        f's_add_u32 {s(sMRR)}, {s(sT0)}, {s(cMRR)}',
        f's_add_u32 {s(sMLW)}, {s(sT0)}, {s(cMLW)}',
        f's_add_u32 {s(sMRW)}, {s(sT0)}, {s(cMRW)}',
        f's_xor_b32 {s(sMLZ)}, {s(sMLW)}, 0x10000',
        f's_xor_b32 {s(sMRZ)}, {s(sMRW)}, 0x10000',
    ]

def emit_publish(k, val, sc, remote):
    k(f's_mov_b64 exec, {s(sMASK_LO8,2)}')
    k(f'buffer_store_dword v{val}, v{vPUB}, {s(S_WS,4)}, {s(sMLW)} offen{sc}')
    if remote:
        k(f'buffer_store_dword v{val}, v{vPUB}, {s(S_WS,4)}, {s(sMRW)} offen sc1')
    k('s_mov_b64 exec, -1')

def kv_dma_op(j):
    return f'buffer_load_dwordx4 v{vL16}, {s(S_WS,4)}, {s(sKV)} offen offset:{j * 1024} sc1 lds'

def lds_op_read_ops(key, dst):
    b, imm = lds_w_addr(PLACE[key][1])
    return [f'ds_read_b128 {v(dst,4)}, v{b} offset:{imm}', f'ds_read_b128 {v(dst+4,4)}, v{b} offset:{imm + 1024}']

class LG:
    def __init__(self, k):
        self.k = k; self.q = []
    def op(self, text, tag):
        self.k(text); self.q.append(tag)
    def wait(self, tag):
        if tag in self.q:
            last = max(i for i, t in enumerate(self.q) if t == tag)
            self.k(f's_waitcnt lgkmcnt({min(len(self.q) - 1 - last, 15)})')
            del self.q[:last + 1]
    def drain(self):
        self.k('s_waitcnt lgkmcnt(0)'); self.q = []

def delay(k, n):
    while n > 0:
        m = min(n, 16); k(f's_nop {m-1}'); n -= m


def kv_flag_wait(k, t0, t1):
    top, done = k.newlabel('kvf'), k.newlabel('kvd')
    k(f'v_lshrrev_b32 v{t0}, 2, v{vL16}')
    k(f'v_min_u32 v{t0}, 64, v{t0}')
    k.label(top)
    k(f'buffer_load_dword v{t1}, v{t0}, {s(S_WS,4)}, {s(sKVF)} offen sc1')
    k('s_waitcnt vmcnt(0)')
    k(f'v_cmp_eq_u32 vcc, 0, v{t1}')
    k(f's_ff1_i32_b64 {s(sKNOWN)}, vcc')
    k(f's_lshl_b32 {s(sKNOWN)}, {s(sKNOWN)}, 2')
    k(f's_cmp_eq_u32 {s(sKNOWN)}, 64')
    k(f's_cselect_b32 {s(sKNOWN)}, 128, {s(sKNOWN)}')
    k(f's_add_u32 {s(sT0)}, {s(sSTEP)}, 2')
    k(f's_cmp_lt_u32 {s(sT0)}, {s(sKNOWN)}')
    k(f's_cbranch_scc1 {done}')
    k('s_sleep 2')
    k(f's_sub_u32 {s(sBUD)}, {s(sBUD)}, 1')
    k(f's_cbranch_scc0 {top}')
    k(f's_mov_b32 {s(sBUD)}, 0')
    k(f's_mov_b32 {s(sKNOWN)}, 128')
    k.label(done)

def diag_store(k):
    R_ = SL[3]
    k('s_waitcnt lgkmcnt(0)')
    for i in range(9):
        k(f'v_writelane_b32 v{R_}, {s(sTM + 2*i)}, {i}')
    k(f'v_writelane_b32 v{R_}, {s(sB0)}, 9')
    k(f'v_writelane_b32 v{R_}, {s(sB1_)}, 10')
    k(f'v_writelane_b32 v{R_}, {s(sBUD)}, 11')
    k(f'v_lshrrev_b32 v{R_+1}, 2, v{vL16}')
    k('s_mov_b64 exec, 0xffff')
    k(f'buffer_store_dword v{R_}, v{R_+1}, {s(S_WS,4)}, {s(sTS)} offen')
    k('s_mov_b64 exec, -1')
    k(f's_add_u32 {s(sTS)}, {s(sTS)}, 64')

def emit_prologue(k, sc_label_pairs):
    k(f's_mov_b32 {s(sSTEP)}, -1')
    k(f'v_lshrrev_b32 v20, 4, v{vL16}')
    bits(k, 21, 20, [(0, 1, 4)], 23)
    k(f'v_mov_b32 v22, 0x3f80')
    k(f'v_lshlrev_b32 v21, v21, v22')
    k(f'v_bfe_u32 v22, v20, 1, 3')
    for i in range(4):
        k(f'v_cmp_eq_u32 vcc, {i}, v22')
        k(f'v_cndmask_b32 v{24+i}, 0, v21, vcc')
    k(f'ds_write_b128 v{vL16}, v[24:27] offset:{L_SEL}')
    k(f'v_mov_b64 {v(NEG,2)}, -1')
    k(f'v_mov_b64 {v(NEG+2,2)}, -1')
    k(f's_mul_i32 {s(sT0)}, {s(sX)}, {PA_BT}')
    k(f's_add_u32 {s(sT0)}, {s(sT0)}, {PA}')
    k(f's_lshl_b32 {s(sT1)}, {s(sH)}, 7')
    k(f's_add_u32 {s(sPAW)}, {s(sT0)}, {s(sT1)}')
    k(f's_lshl_b32 {s(sT1)}, {s(sCI)}, 12')
    k(f's_add_u32 {s(sPAR)}, {s(sT0)}, {s(sT1)}')
    k(f's_lshl_b32 {s(sT1)}, {s(sH)}, 12')
    k(f's_add_u32 {s(sPZ0)}, {s(sT0)}, {s(sT1)}')
    k(f's_lshl_b32 {s(sT1)}, {s(sW)}, 10')
    k(f's_add_u32 {s(sPZ0)}, {s(sPZ0)}, {s(sT1)}')
    k(f's_add_u32 {s(sPZ1)}, {s(sPZ0)}, {32 * 4096}')
    k(f's_cmp_lt_u32 {s(sH)}, 16')
    k(f's_cselect_b32 {s(sPZ1)}, {s(sPZ1)}, {s(sPZ0)}')
    for op in offsets_ops():
        k(op)
    k(f's_lshl_b32 {s(sKV)}, {s(sH)}, 14')
    k(f's_lshl_b32 {s(sT0)}, {s(sW)}, 12')
    k(f's_add_u32 {s(sKV)}, {s(sKV)}, {s(sT0)}')
    k(f's_add_u32 {s(sKV)}, {s(sKV)}, {KV}')
    k(f's_add_u32 {s(sKVM0)}, {s(sT0)}, {L_KT}')
    k(f's_lshl_b32 {s(sT0)}, {s(sH)}, 12')
    k(f's_add_u32 {s(sT0)}, {s(sT0)}, {KVM}')
    k(f's_add_u32 {s(sT1)}, {s(sT0)}, 2048')
    k(f's_cmp_eq_u32 {s(sX)}, 0')
    k(f's_cselect_b32 {s(sPUBK)}, {s(sT0)}, 0x40000000')
    k(f's_cselect_b32 {s(sPUBV)}, 0x40000000, {s(sT1)}')
    nocons = k.newlabel('nocons')
    k(f's_cmp_eq_u32 {s(sCI)}, -1')
    k(f's_cbranch_scc1 {nocons}')
    bits(k, 21, 20, [(4, 1, 2), (5, 1, 1)], 23)
    k(f'v_bfe_u32 v22, v20, 2, 1')
    k(f'v_and_b32 v23, 3, v20')
    k(f's_and_b32 {s(sT0)}, {s(sCI)}, 1')
    k(f's_lshl_b32 {s(sT0)}, {s(sT0)}, 2')
    k(f'v_add_u32 v23, {s(sT0)}, v23')
    k(f'v_mul_u32_u24 v23, 1280, v23')
    k(f's_and_b32 {s(sT2)}, {s(sCI)}, 2')
    k(f's_lshl_b32 {s(sT2)}, {s(sT2)}, 3')
    shr, cont = k.newlabel('shr'), k.newlabel('cont')
    k(f's_cmp_ge_u32 {s(sCI)}, 32')
    k(f's_cbranch_scc1 {shr}')
    k(f's_lshr_b32 {s(sT0)}, {s(sCI)}, 3')
    k(f's_lshl_b32 {s(sT0)}, {s(sT0)}, 6')
    k(f's_and_b32 {s(sT1)}, {s(sCI)}, 4')
    k(f's_lshl_b32 {s(sT1)}, {s(sT1)}, 1')
    k(f's_add_u32 {s(sT0)}, {s(sT0)}, {s(sT1)}')
    k(f's_lshl_b32 {s(sT1)}, {s(sX)}, 8')
    k(f's_add_u32 {s(sT0)}, {s(sT0)}, {s(sT1)}')
    k(f's_add_u32 {s(sT0)}, {s(sT0)}, {s(sT2)}')
    k(f'v_lshl_add_u32 v24, v22, 5, v21')
    k(f'v_add_u32 v24, {s(sT0)}, v24')
    k(f'v_add_u32 v25, 1, v24')
    k(f's_branch {cont}')
    k.label(shr)
    k(f's_sub_u32 {s(sT0)}, {s(sCI)}, 32')
    k(f's_lshr_b32 {s(sT0)}, {s(sT0)}, 2')
    k(f's_lshl_b32 {s(sT0)}, {s(sT0)}, 5')
    k(f's_add_u32 {s(sT0)}, {s(sT0)}, 512')
    k(f's_add_u32 {s(sT0)}, {s(sT0)}, {s(sT2)}')
    k(f'v_lshl_add_u32 v24, v21, 1, v22')
    k(f'v_add_u32 v24, {s(sT0)}, v24')
    k(f'v_add_u32 v25, 2, v24')
    k.label(cont)
    k(f'v_lshl_add_u32 v24, v24, 1, v23')
    k(f'v_lshl_add_u32 v25, v25, 1, v23')
    k(f'buffer_load_ushort v26, v24, {s(S_M0,4)}, 0 offen')
    k(f'buffer_load_ushort v27, v25, {s(S_M0,4)}, 0 offen')
    k('s_waitcnt vmcnt(0)')
    k('v_lshl_or_b32 v26, v27, 16, v26')
    k.label(nocons)
    if CFG['fused']:
        k(f's_mov_b32 {s(sT0)}, 96')
        tok.emit_wait(k, S_DBG, sT0, 1, 0, 1, 28, 29, lane=20)
        k(f's_mov_b32 {s(sT0)}, {FL_INIT}')
        tok.emit_wait(k, S_WS, sT0, 1, 0, 64, 28, 29, lane=20)
        k(f's_lshl_b32 {s(sKVF)}, {s(sH)}, 7')
        k(f's_add_u32 {s(sKVF)}, {s(sKVF)}, {FL_KV}')
        kv_flag_wait(k, 28, 29)
    k(f's_mov_b32 m0, {s(sKVM0)}')
    for j in range(4):
        k(kv_dma_op(j))
    k(f's_add_u32 {s(sTCH)}, {s(sKV)}, {32 * 16384}')
    k(f'v_lshlrev_b32 v28, 2, v{vL16}')
    k(f'buffer_load_dword v28, v28, {s(S_WS,4)}, {s(sTCH)} offen sc1')
    k('s_waitcnt vmcnt(0) lgkmcnt(0)')

def emit_loop(k, glob, diag, end_label, cons, poller, name):
    sc = ' sc1' if glob else ''
    top = f'rec_top_{name}'
    SMF = 'v_smfmac_f32_16x16x64_bf16'
    MF32 = 'v_mfma_f32_16x16x32_bf16'
    FILL = f'v_mov_b32 v{NEG+1}, -1'
    stubs = []
    k.label(f'rec_entry_{name}')
    if cons:
        emit_publish(k, 26, sc, cons == 'E')
        if diag:
            k(f's_sub_u32 {s(sTS)}, {s(sTS)}, 64')
    if CFG['fill']:
        k.filler(FILL)
    k.raw('.p2align 3')
    k.label(top)
    k(f's_add_u32 {s(sSTEP)}, {s(sSTEP)}, 1')
    if not cons:
        stamp(k, 'top', diag)
    PL = SL[0]
    seq = [(m, c, 0, t) for c in range(6) for t in range(2) for m in 'qkv']
    lds_ops = [key for key in seq if PLACE[key][0] == 'l']
    slot_of = {}
    nxt = 0
    prep = [f'v_mov_b64 {v(r,2)}, 0' for r in range(ACCQ, ACCQ + 12, 2)]
    for sl in (SL[1], SL[2], SL[3]):
        slot_of[lds_ops[nxt]] = sl
        prep += lds_op_read_ops(lds_ops[nxt], sl)
        nxt += 1
    pl_ops = [f'buffer_load_dwordx4 {v(PL+4*j,4)}, v{vPERM}, {s(S_WS,4)}, {s(sMLR)} offen offset:{1024*j} sc1' for j in range(2)]
    if cons:
        k('s_barrier')
        if diag:
            if cons == 'E':
                k('s_waitcnt vmcnt(2)')
            diag_store(k)
            stamp(k, 'top', diag)
    for op in prep:
        k(op)
    if CFG['fused']:
        kvs, kvc = k.newlabel('kv_stub'), k.newlabel('kv_cont')
        k(f's_add_u32 {s(sT0)}, {s(sSTEP)}, 2')
        k(f's_cmp_ge_u32 {s(sT0)}, {s(sKNOWN)}')
        k(f's_cbranch_scc1 {kvs}')
        k.label(kvc)
    if not cons:
        k('s_barrier')
    if poller:
        delay(k, CFG['delay_b'] if not cons else max(CFG['delay_b'] - 14, 0))
        check, stub, cont, first = k.newlabel('pl_check'), k.newlabel('pl_stub'), k.newlabel('pl_cont'), k.newlabel('pl_first')
        stamp(k, 'l_issue', diag)
        for op in pl_ops:
            k(op)
        for _ in range(CFG['extra_b']):
            delay(k, CFG['gap_b'])
            for op in pl_ops:
                k(op)
        k.label(check)
        k(f's_waitcnt vmcnt({2 * CFG["extra_b"]})')
        for op in max_ops(range(PL, PL + 8), MISC):
            k(op)
        for j in range(2):
            k(f'ds_write_b128 v{vLW0}, {v(PL+4*j,4)} offset:{L_M - 2048 + 1024*j}')
        retry_branch(k, MISC, stub)
        stubs.append((stub, check, cont, pl_ops))
        k.label(cont)
    else:
        k('s_waitcnt vmcnt(2)')
    if diag:
        k(f's_mov_b32 {s(sB0)}, {s(sBUD)}')
    rem_load = f'buffer_load_dwordx4 {v(MISC,4)}, v{vPERM}, {s(S_WS,4)}, {s(sMRR)} offen sc1'
    k('s_waitcnt lgkmcnt(0)')
    stamp(k, 'preB1', diag)
    k('s_barrier')
    lg = LG(k)
    acc = {'q': ACCQ, 'k': ACCK, 'v': ACCV}
    def rdA(i):
        return f'ds_read_b128 {v(AW + 4*(i%4),4)}, v{(vL16, vL16X)[i&1]} offset:{L_M + 1024*(i>>1)}'
    for i in range(4):
        lg.op(rdA(i), ('A', i))
    k(rem_load)
    def gl(t, h):
        return f'buffer_load_dwordx4 {v(SL[t]+4*h,4)}, v{vL16}, {s(S_WS,4)}, {s(sGW)} offen offset:{2048*t+1024*h}'
    side = {}
    side[0] = [gl(0, 0)]; side[1] = [gl(0, 1)]
    side[3] = [gl(1, 0)]; side[4] = [gl(1, 1)]
    side[7] = [f'buffer_store_dwordx4 {v(NEG,4)}, v{vL16}, {s(S_WS,4)}, {s(sPZ0)} offen{sc}']
    side[10] = [f'buffer_store_dwordx4 {v(NEG,4)}, v{vL16}, {s(S_WS,4)}, {s(sPZ1)} offen{sc}']
    if cons:
        side[13] = ['s_mov_b64 exec, 0xff', f'buffer_store_dwordx4 {v(NEG,4)}, v{vL16}, {s(S_WS,4)}, {s(sMLZ)} offen{sc}', 's_mov_b64 exec, -1']
    nlater = 6 + (1 if cons else 0)
    for i, key in enumerate(seq):
        if i == CFG['rem_chk']:
            stub, cont, check = k.newlabel('rem_stub'), k.newlabel('rem_cont'), k.newlabel('rem_check')
            stamp(k, 'remchk', diag)
            k(f's_waitcnt vmcnt({nlater})')
            k.label(check)
            for op in max_ops(range(MISC, MISC + 4), SL[2]):
                k(op)
            lg.op(f'ds_write_b128 v{vLW0}, {v(MISC,4)} offset:{L_R}', 'rw')
            retry_branch(k, SL[2], stub)
            stubs.append((stub, check, cont, [rem_load, 's_waitcnt vmcnt(0) lgkmcnt(0)']))
            k.label(cont)
            stamp(k, 'remok', diag)
        m, c, _, t = key
        ai = 2 * c + t
        lg.wait(('A', ai))
        pl = PLACE[key]
        if pl[0] == 'r':
            B = opreg(pl[1])
        else:
            lg.wait(key); B = v(slot_of[key], 8)
        k(f'{SMF} {v(acc[m],4)}, {v(AW+4*(ai%4),4)}, {B}, v{vIDX}')
        todo = []
        if pl[0] != 'r' and slot_of[key] != SL[1] and nxt < len(lds_ops):
            nk_ = lds_ops[nxt]; slot_of[nk_] = slot_of[key]; nxt += 1
            ops = lds_op_read_ops(nk_, slot_of[key])
            lg.op(ops[0], nk_)
            side.setdefault(i + 1, []).insert(0, ('lg', ops[1], nk_))
        if m == 'v' and ai + 4 < 12:
            side.setdefault(i + 2, []).insert(0, ('lg', rdA(ai + 4), ('A', ai + 4)))
        for op in side.get(i, []):
            if isinstance(op, tuple):
                lg.op(op[1], op[2])
            else:
                k(op)
    assert nxt == len(lds_ops)
    stamp(k, 'locdone', diag)
    if diag:
        k(f's_mov_b32 {s(sB1_)}, {s(sBUD)}')
    k(f'v_lshlrev_b32 v{MISC}, 2, v{vL16}')
    k(f's_mov_b32 m0, {L_JUNK}')
    k(f's_add_u32 {s(sTCH)}, {s(sKV)}, {64 * 16384}')
    k('s_waitcnt lgkmcnt(0)')
    stamp(k, 'preB2', diag)
    k('s_barrier')
    lg = LG(k)
    RA = [SL[2], SL[2] + 4, SL[3], SL[3] + 4, AW, AW + 4, AW + 8, AW + 12]
    for i in range(8):
        lg.op(f'ds_read_b128 {v(RA[i],4)}, v{(vL16, vL16X)[i&1]} offset:{L_R + 2048*(i>>1)}', ('A', i))
    k(f'buffer_load_dword v{MISC}, {s(S_WS,4)}, {s(sTCH)} offen sc1 lds')
    if cons == 'E':
        k('s_mov_b64 exec, 0xff')
        k(f'buffer_store_dwordx4 {v(NEG,4)}, v{vL16}, {s(S_WS,4)}, {s(sMRZ)} offen sc1')
        k('s_mov_b64 exec, -1')
    salu = offsets_ops() + [f's_add_u32 {s(sKV)}, {s(sKV)}, {32 * 16384}', f's_mov_b32 m0, {s(sKVM0)}']
    def rm(n):
        m = 'qkv'[n // 8]; i = n % 8
        lg.wait(('A', i))
        if n == 14:
            k(f's_waitcnt vmcnt({2 if cons == "E" else 1})')
        pl = PLACE[(m, 6 + (i>>1), 0, i&1)]
        B = opreg(pl[1]) if pl[0] == 'r' else v(SL[i & 1], 8)
        k(f'{SMF} {v(acc[m],4)}, {v(RA[i],4)}, {B}, v{vIDX}')
        if salu:
            k(salu.pop(0))
    for n in range(0, 10):
        rm(n)
    F = MISC
    k(f'v_cvt_pk_bf16_f32 v{F}, v{ACCQ}, v{ACCQ+1}')
    rm(10)
    k(f'v_cvt_pk_bf16_f32 v{F+1}, v{ACCQ+2}, v{ACCQ+3}')
    rm(11)
    lg.op(f'ds_write_b64 v{vXW}, {v(F,2)} offset:{L_QX}', 'qw')
    for n in range(12, 16):
        rm(n)
    assert not salu
    QTR = [SL[0], SL[0] + 4, SL[1], SL[1] + 4]
    kt_reg = {(kt, j): RA[2 * (j & 1) + kt] for kt in range(2) for j in range(4)}
    def qrd(j, hh):
        lg.op(f'ds_read_b64_tr_b16 {v(QTR[j]+2*hh,2)}, v{vTR} offset:{L_QX + j*512 + hh*256}', ('qt', j))
    def ktrd(kt, j):
        lg.op(f'ds_read_b128 {v(kt_reg[(kt,j)],4)}, v{vL16} offset:{L_KT + kt*4096 + j*1024}', ('kt', kt, j))
    rm(16)
    lg.wait('qw')
    stamp(k, 'preB3', diag)
    k('s_barrier')
    rm(17)
    k(f'v_cvt_pk_bf16_f32 v{F+2}, v{ACCK}, v{ACCK+1}')
    k(f'v_cvt_pk_bf16_f32 v{F+3}, v{ACCK+2}, v{ACCK+3}')
    lg.op(f'ds_write_b64 v{vXW}, {v(F+2,2)} offset:{L_KX}', 'kw')
    rm(18); qrd(0, 0); qrd(0, 1)
    rm(19); ktrd(0, 0); ktrd(1, 0)
    rm(20); qrd(1, 0); qrd(1, 1)
    rm(21)
    lg.wait('kw')
    k('s_barrier')
    stamp(k, 'B4', diag)
    KMR = [AW, AW + 4, AW + 8, AW + 12]
    ST, SM = ACCQ, MISC
    def kmrd(j):
        for hh in range(2):
            lg.op(f'ds_read_b64_tr_b16 {v(KMR[j]+2*hh,2)}, v{vTR} offset:{L_KX + j*512 + hh*256}', ('km', j))
    kmrd(0)
    rm(22); kmrd(1)
    rm(23); ktrd(0, 1); ktrd(1, 1)
    k(f'buffer_store_dwordx2 {v(F+2,2)}, v{vXW}, {s(S_WS,4)}, {s(sPUBK)} offen sc1')
    def st(kt, j):
        lg.wait(('qt', j)); lg.wait(('kt', kt, j))
        k(f'{MF32} {v(ST+4*kt,4)}, {v(kt_reg[(kt,j)],4)}, {v(QTR[j],4)}, {"0" if j == 0 else v(ST+4*kt,4)}')
    def sm(j):
        lg.wait(('km', j)); lg.wait(('qt', j))
        k(f'{MF32} {v(SM,4)}, {v(KMR[j],4)}, {v(QTR[j],4)}, {"0" if j == 0 else v(SM,4)}')
    st(0, 0); qrd(2, 0); qrd(2, 1)
    st(1, 0); kmrd(2)
    sm(0); ktrd(0, 2); ktrd(1, 2)
    sm(1); qrd(3, 0); qrd(3, 1)
    st(0, 1); kmrd(3)
    st(1, 1); ktrd(0, 3); ktrd(1, 3)
    sm(2)
    k(f'v_cvt_pk_bf16_f32 v{ACCV}, v{ACCV}, v{ACCV+1}')
    k(f'v_cvt_pk_bf16_f32 v{ACCV+1}, v{ACCV+2}, v{ACCV+3}')
    st(0, 2)
    k(f'buffer_store_dwordx2 {v(ACCV,2)}, v{vXW}, {s(S_WS,4)}, {s(sPUBV)} offen sc1')
    k(f's_add_u32 {s(sPUBK)}, {s(sPUBK)}, {32 * 4096}')
    st(1, 2)
    VTK = SL[2]
    for t in range(2):
        lg.op(f'ds_read_b128 {v(VTK+4*t,4)}, v{vLW0} offset:{L_VT + 1024*t}', 'vt')
    sm(3)
    VA = AW
    k(f'v_cndmask_b32 v{VA}, 0, v{ACCV}, {s(sMASK_LT32,2)}')
    k(f'v_cndmask_b32 v{VA+1}, 0, v{ACCV+1}, {s(sMASK_LT32,2)}')
    st(0, 3)
    k(f'v_cndmask_b32 v{VA+2}, 0, v{ACCV}, {s(sMASK_GE32,2)}')
    k(f'v_cndmask_b32 v{VA+3}, 0, v{ACCV+1}, {s(sMASK_GE32,2)}')
    st(1, 3)
    k(f's_add_u32 {s(sPUBV)}, {s(sPUBV)}, {32 * 4096}')
    stamp(k, 'presm', diag)
    T1 = AW + 4
    M, M2, LS, L2 = T1, T1 + 1, T1 + 2, T1 + 3
    PT, PM, OA = SL[0], SL[0] + 4, SL[1]
    wo_slot = {('o', 0, 0, 0): AW + 8, ('o', 0, 0, 1): SL[3], ('o', 1, 0, 0): SL[2], ('o', 1, 0, 1): SL[0],
               ('o', 1, 2, 0): AW + 8, ('o', 1, 2, 1): SL[3]}
    pre = lds_op_read_ops(('o', 0, 0, 0), AW + 8) + lds_op_read_ops(('o', 0, 0, 1), SL[3])
    k(f'v_max3_f32 v{M}, v{SM}, v{SM+1}, v{SM+2}')
    k(f'v_add_u32 v{ACCV+2}, {s(sOW)}, v{vL16}')
    lg.op(pre.pop(0), 'w0')
    k(f'v_max3_f32 v{M}, v{M}, v{SM+3}, v{ST}')
    k(f'v_max3_f32 v{M}, v{M}, v{ST+1}, v{ST+2}')
    lg.op(pre.pop(0), 'w0')
    k(f'v_max3_f32 v{M}, v{M}, v{ST+3}, v{ST+4}')
    k(f'v_max3_f32 v{M}, v{M}, v{ST+5}, v{ST+6}')
    k(f'v_max_f32 v{M2}, v{M}, v{ST+7}')
    k(f'v_max_f32 v{M}, v{M}, v{ST+7}')
    lg.wait('vt')
    k('s_barrier')
    k(f'v_permlane16_swap_b32 v{M}, v{M2}')
    k(f'v_max_f32 v{LS}, v{M}, v{M2}')
    k(f'v_max_f32 v{M}, v{M}, v{M2}')
    k(kv_dma_op(0))
    lg.op(pre.pop(0), 'w0')
    k(f'v_permlane32_swap_b32 v{M}, v{LS}')
    k(f'v_max_f32 v{M}, v{M}, v{LS}')
    k(f'v_mul_f32 v{M}, {s(sC)}, v{M}')
    def pkf(r):
        k(f'v_pk_fma_f32 {v(r,2)}, {v(r,2)}, {s(sC,2)}, {v(M,2)} op_sel_hi:[1,1,0] neg_lo:[0,0,1] neg_hi:[0,0,1]')
    for r in range(ST, ST + 8, 2):
        pkf(r)
    stamp(k, 'preexp', diag)
    for i in range(8):
        k(f'v_exp_f32 v{ST+i}, v{ST+i}')
        if i == 3:
            k(kv_dma_op(1))
    pkf(SM)
    for i in range(4):
        k(f'v_cvt_pk_bf16_f32 v{PT+i}, v{ST+2*i}, v{ST+2*i+1}')
    pkf(SM + 2)
    stamp(k, 'exp8', diag)
    k(f'v_exp_f32 v{SM}, v{SM}')
    k(f'{MF32} {v(OA,4)}, {v(VTK,4)}, {v(PT,4)}, 0')
    k(f'v_exp_f32 v{SM+1}, v{SM+1}')
    k(f'{MF32} {v(OA+4,4)}, {v(VTK+4,4)}, {v(PT,4)}, 0')
    k(f'v_exp_f32 v{SM+2}, v{SM+2}')
    k(f'v_exp_f32 v{SM+3}, v{SM+3}')
    k(f'v_cvt_pk_bf16_f32 v{PM}, v{SM}, v{SM+1}')
    k(f'v_cvt_pk_bf16_f32 v{PM+1}, v{SM+2}, v{SM+3}')
    k(f'v_pk_add_f32 {v(SM,2)}, {v(SM,2)}, {v(SM+2,2)}')
    k(f'v_pk_add_f32 {v(ST,2)}, {v(ST,2)}, {v(ST+2,2)}')
    k(f'v_mfma_f32_16x16x16_bf16 {v(OA,4)}, {v(VA,2)}, {v(PM,2)}, {v(OA,4)}')
    k(f'v_pk_add_f32 {v(ST+4,2)}, {v(ST+4,2)}, {v(ST+6,2)}')
    k(f'v_add_f32 v{LS}, v{SM}, v{SM+1}')
    k(f'v_mfma_f32_16x16x16_bf16 {v(OA+4,4)}, {v(VA+2,2)}, {v(PM,2)}, {v(OA+4,4)}')
    k(f'v_pk_add_f32 {v(ST,2)}, {v(ST,2)}, {v(ST+4,2)}')
    k(f'v_cndmask_b32 v{LS}, 0, v{LS}, {s(sMASK_LT32,2)}')
    pre += lds_op_read_ops(('o', 1, 0, 0), SL[2]) + lds_op_read_ops(('o', 1, 0, 1), SL[0])
    k(f'v_add_f32 v{LS}, v{LS}, v{ST}')
    k(f'v_add_f32 v{L2}, v{LS}, v{ST+1}')
    k(f'v_add_f32 v{LS}, v{LS}, v{ST+1}')
    k(pre.pop(0)); k(pre.pop(0))
    k(f'v_permlane16_swap_b32 v{LS}, v{L2}')
    k(f'v_add_f32 v{M}, v{LS}, v{L2}')
    k(f'v_add_f32 v{LS}, v{LS}, v{L2}')
    k(pre.pop(0)); k(pre.pop(0))
    k(f'v_permlane32_swap_b32 v{LS}, v{M}')
    k(f'v_add_f32 v{LS}, v{LS}, v{M}')
    stamp(k, 'rcp', diag)
    k(f'v_rcp_f32 v{LS}, v{LS}')
    k(pre.pop(0))
    for i in range(0, 8, 2):
        k(f'v_pk_mul_f32 {v(OA+i,2)}, {v(OA+i,2)}, {v(LS,2)} op_sel_hi:[1,0]')
    OP = MISC
    for i in range(4):
        k(f'v_cvt_pk_bf16_f32 v{OP+i}, v{OA+2*i}, v{OA+2*i+1}')
    stamp(k, 'owr', diag)
    k(f's_mov_b64 exec, {s(sMASK_OW,2)}')
    k(f'ds_write_b128 v{ACCV+2}, {v(OP,4)} offset:{L_OX}')
    k('s_mov_b64 exec, -1')
    k(kv_dma_op(2))
    for r in range(ACCQ, ACCQ + 12, 2):
        k(f'v_mov_b64 {v(r,2)}, 0')
    k(f's_cmp_eq_u32 {s(sSTEP)}, 63')
    k(f's_cbranch_scc1 {end_label}')
    k('s_waitcnt lgkmcnt(0)')
    stamp(k, 'preB5', diag)
    k('s_barrier')
    lg = LG(k)
    OX = [SL[1], SL[1] + 4, AW, AW + 4]
    for i in range(4):
        lg.op(f'ds_read_b128 {v(OX[i],4)}, v{(vL16, vL16X)[i&1]} offset:{L_OX + 2048*(i>>1)}', ('o', i))
    k(kv_dma_op(3))
    def wo(p, i):
        key = ('o', i >> 1, p, i & 1)
        lg.wait(('o', i)); lg.wait(key)
        B = v(wo_slot[key], 8) if key in wo_slot else opreg(PLACE[key][1])
        k(f'{SMF} {v(ACCQ+4*p,4)}, {v(OX[i],4)}, {B}, v{vIDX}')
    PK = MISC
    r0 = lds_op_read_ops(('o', 1, 2, 0), AW + 8); r1 = lds_op_read_ops(('o', 1, 2, 1), SL[3])
    wo(0, 0); wo(0, 1); wo(0, 2)
    wo(0, 3); lg.op(r0[0], ('o', 1, 2, 0))
    wo(1, 0); lg.op(r0[1], ('o', 1, 2, 0))
    wo(1, 1)
    k(f'v_cvt_pk_bf16_f32 v{PK}, v{ACCQ}, v{ACCQ+1}')
    wo(1, 2)
    k(f'v_cvt_pk_bf16_f32 v{PK+1}, v{ACCQ+2}, v{ACCQ+3}')
    wo(1, 3); lg.op(r1[0], ('o', 1, 2, 1))
    wo(2, 0); lg.op(r1[1], ('o', 1, 2, 1))
    wo(2, 1)
    k(f'v_cvt_pk_bf16_f32 v{PK+2}, v{ACCK}, v{ACCK+1}')
    k(f'v_cvt_pk_bf16_f32 v{PK+3}, v{ACCK+2}, v{ACCK+3}')
    k(f'buffer_store_dwordx4 {v(PK,4)}, v{vPAE}, {s(S_WS,4)}, {s(sPAW)} offen{sc}')
    stamp(k, 'st1', diag)
    wo(2, 2); wo(2, 3)
    SEL = SL[2]
    if cons:
        k(f'ds_read_b128 {v(SEL,4)}, v{vL16} offset:{L_SEL}')
    k(f'v_cvt_pk_bf16_f32 v{ACCQ}, v{ACCV}, v{ACCV+1}')
    k(f'v_cvt_pk_bf16_f32 v{ACCQ+1}, v{ACCV+2}, v{ACCV+3}')
    k(f'buffer_store_dwordx2 {v(ACCQ,2)}, v{vPAS}, {s(S_WS,4)}, {s(sPAW)} offen{sc}')
    stamp(k, 'wodone', diag)
    if cons:
        check, stub, cont = k.newlabel('ra_check'), k.newlabel('ra_stub'), k.newlabel('ra_cont')
        X, D_, TM = AW, ACCK, ACCV
        a_ops = [f'buffer_load_dwordx4 {v(X+4*j,4)}, v{vL16}, {s(S_WS,4)}, {s(sPAR)} offen offset:{1024*j} sc1' for j in range(4)]
        delay(k, CFG['delay_a'] if cons == 'E' else CFG['delay_as'])
        stamp(k, 'a_issue', diag)
        for op in a_ops:
            k(op)
        EA = CFG['extra_a']
        for _ in range(EA):
            delay(k, CFG['gap_a'])
            for op in a_ops:
                k(op)
        k('s_waitcnt lgkmcnt(0)')
        k.label(check)
        for j in range(4):
            k(f's_waitcnt vmcnt({4 * EA + 3 - j})')
            r = X + 4 * j
            if j == 0:
                k(f'v_max3_u32 v{TM}, v{r}, v{r+1}, v{r+2}')
                k(f'v_max_u32 v{TM}, v{TM}, v{r+3}')
            else:
                k(f'v_max3_u32 v{TM}, v{TM}, v{r}, v{r+1}')
                k(f'v_max3_u32 v{TM}, v{TM}, v{r+2}, v{r+3}')
            k(f'{MF32} {v(D_,4)}, {v(r,4)}, {v(SEL,4)}, {"0" if j == 0 else v(D_,4)}')
        stamp(k, 'a_last', diag)
        retry_branch(k, TM, stub)
        stubs.append((stub, check, cont, a_ops))
        k.label(cont)
        k.filler(None)
        k(f'v_permlane32_swap_b32 v{D_}, v{D_+2}')
        k(f'v_permlane32_swap_b32 v{D_+1}, v{D_+3}')
        k(f'v_pk_add_f32 {v(D_,2)}, {v(D_,2)}, {v(D_+2,2)}')
        k(f'v_cvt_pk_bf16_f32 v{D_}, v{D_}, v{D_+1}')
        if diag and cons == 'E':
            pass
        emit_publish(k, D_, sc, cons == 'E')
        stamp(k, 'pub', diag)
    elif diag:
        diag_store(k)
    k(f's_branch {top}')
    k.filler(None)
    if CFG['fused']:
        k.label(kvs)
        kv_flag_wait(k, MISC, MISC + 1)
        k(f's_branch {kvc}')
    for st_ in stubs:
        masked_retry_stub(k, st_[0], st_[1], st_[2], st_[3], 1)

def emit_team(k, diag, end_label, force_glob=False):
    emit_setup(k)
    w1 = k.newlabel('reg')
    k(f's_cmp_lg_u32 {s(sW)}, 0')
    k(f's_cbranch_scc1 {w1}')
    k(f's_lshl_b32 {s(sT0)}, {s(sFOR)}, 16')
    k(f's_add_u32 {s(sT0)}, {s(sT0)}, 1')
    k(f's_lshl_b32 {s(sT1)}, {s(sPOL)}, 8')
    k(f's_cmp_eq_u32 {s(sX)}, 0')
    k(f's_cselect_b32 {s(sT1)}, {s(sT1)}, 0')
    k(f's_add_u32 {s(sT0)}, {s(sT0)}, {s(sT1)}')
    k(f'v_mov_b32 v30, {s(sT0)}')
    k(f'v_mov_b32 v31, 64')
    k('s_mov_b64 exec, 1')
    k(f'buffer_atomic_add v30, v31, {s(S_DBG,4)}, 0 offen')
    k('s_mov_b64 exec, -1')
    k('s_waitcnt vmcnt(0)')
    k.label(w1)
    stamp(k, 'ld0', diag)
    emit_loader(k)
    stamp(k, 'ld1', diag)
    rp = k.newlabel('mode')
    ok = k.newlabel('modeok')
    k(f'v_mov_b32 v31, 64')
    k.label(rp)
    k(f'buffer_load_dword v30, v31, {s(S_DBG,4)}, 0 offen sc1')
    k('s_waitcnt vmcnt(0)')
    k(f'v_readfirstlane_b32 {s(sT3)}, v30')
    k(f's_and_b32 {s(sT1)}, {s(sT3)}, 0xff')
    k(f's_cmp_ge_u32 {s(sT1)}, 64')
    k(f's_cbranch_scc1 {ok}')
    k(f's_sub_u32 {s(sBUD)}, {s(sBUD)}, 1')
    k(f's_cbranch_scc0 {rp}')
    k(f's_mov_b32 {s(sBUD)}, 0')
    k.label(ok)
    k('s_barrier')
    k(f's_bfe_u32 {s(sT1)}, {s(sT3)}, 0x80008')
    k(f's_cmp_gt_u32 {s(sT1)}, 16')
    k(f's_cselect_b32 {s(sT1)}, {8192 if not CFG.get("invpol") else 0}, {0 if not CFG.get("invpol") else 8192}')
    k(f's_add_u32 {s(cMRR)}, {s(cMRR)}, {s(sT1)}')
    k(f's_add_u32 {s(cMRW)}, {s(cMRW)}, {s(sT1)}')
    emit_prologue(k, None)
    gl = k.newlabel('globmode')
    k(f's_lshr_b32 {s(sT3)}, {s(sT3)}, 16')
    k(f's_cmp_lg_u32 {s(sT3)}, {0 if not force_glob else 12345}')
    k(f's_cbranch_scc1 {gl}')
    for glob in (False, True):
        m = 'g' if glob else 'l'
        if glob:
            k.label(gl)
        k(f's_cmp_eq_u32 {s(sW)}, 0')
        k(f's_cbranch_scc1 rec_entry_E{m}')
        k(f's_cmp_lg_u32 {s(sCI)}, -1')
        k(f's_cbranch_scc1 rec_entry_S{m}')
        emit_loop(k, glob, diag, end_label, None, True, 'P' + m)
        emit_loop(k, glob, diag, end_label, 'E', False, 'E' + m)
        emit_loop(k, glob, diag, end_label, 'S', True, 'S' + m)
```

```python
from asmlib import *
from layout import *

S_WS = 8
S_B0, S_B1 = 12, 16
S_X, S_OUT = 20, 24
sW = 36
sT0, sT1, sT2, sT3 = 54, 55, 56, 57
sA, sB, sM0, sCNT = 40, 41, 42, 43
sE0, sE1, sE2 = 44, 45, 46
MF32 = 'v_mfma_f32_16x16x32_bf16'

def load_srd(k, sreg, karg):
    k(f's_load_dwordx2 {s(sreg,2)}, s[0:1], {karg}')
def fin_srd(k, sreg, nbytes):
    k(f's_and_b32 {s(sreg+1)}, {s(sreg+1)}, 0xffff')
    k(f's_mov_b32 {s(sreg+2)}, {nbytes}')
    k(f's_mov_b32 {s(sreg+3)}, 0x20000')

def bits(k, dst, L, spec, tmp, first=True):
    for i, (pos, width, sh) in enumerate(spec):
        k(f'v_bfe_u32 v{tmp}, v{L}, {pos}, {width}')
        if i == 0 and first:
            k(f'v_lshlrev_b32 v{dst}, {sh}, v{tmp}')
        else:
            k(f'v_lshl_add_u32 v{dst}, v{tmp}, {sh}, v{dst}')

def rbf(k, r, tmp=None):
    k(f'v_cvt_pk_bf16_f32 v{r}, v{r}, v{r}')
    k(f'v_lshlrev_b32 v{r}, 16, v{r}')

def rbf2(k, r0, r1):
    k(f'v_cvt_pk_bf16_f32 v{r1}, v{r0}, v{r1}')
    k(f'v_lshlrev_b32 v{r0}, 16, v{r1}')
    k(f'v_and_b32 v{r1}, 0xffff0000, v{r1}')

def unpack(k, src, lo, hi):
    k(f'v_lshlrev_b32 v{lo}, 16, v{src}')
    k(f'v_and_b32 v{hi}, 0xffff0000, v{src}')

LOG2E = 0x3fb8aa3b

def silu(k, r, t):
    k(f'v_mul_f32 v{t}, 0xbfb8aa3b, v{r}')
    k(f'v_exp_f32 v{t}, v{t}')
    k(f'v_add_f32 v{t}, 1.0, v{t}')
    k(f'v_rcp_f32 v{t}, v{t}')
    k(f'v_mul_f32 v{r}, v{r}, v{t}')

def emit_mod(k, stask, sc=''):
    T, OFF, C0, ACC, W = 1, 2, 4, 16, 32
    k(f'v_lshrrev_b32 v3, 2, v0')
    k(f'v_mul_u32_u24 v{OFF}, {10 * 7680}, v3')
    k(f'v_and_b32 v{T}, 3, v0')
    k(f'v_lshl_add_u32 v{OFF}, v{T}, 4, v{OFF}')
    k(f's_lshl_b32 {s(sT0)}, {s(stask)}, 6')
    for i in range(10):
        k(f'buffer_load_dwordx4 {v(W+4*i,4)}, v{OFF}, {s(S_B0,4)}, {s(sT0)} offen')
        if i < 9:
            k(f's_add_u32 {s(sT0)}, {s(sT0)}, 7680')
    k(f'v_mul_u32_u24 v{T}, 20, v3')
    for i in range(5):
        k(f'buffer_load_dword v{24+i}, v{T}, {s(S_B1,4)}, 0 offen offset:{4*i}')
    k('s_waitcnt vmcnt(0)')
    for i in range(5):
        unpack(k, 24 + i, C0 + 2 * i, C0 + 2 * i + 1)
    for i in range(10):
        silu(k, C0 + i, T)
    for i in range(0, 10, 2):
        rbf2(k, C0 + i, C0 + i + 1)
    for i in range(10):
        for d in range(4):
            unpack(k, W + 4 * i + d, 24, 25)
            if i == 0:
                k(f'v_mul_f32 v{ACC+2*d}, v{C0}, v24')
                k(f'v_mul_f32 v{ACC+2*d+1}, v{C0}, v25')
            else:
                k(f'v_fmac_f32 v{ACC+2*d}, v{C0+i}, v24')
                k(f'v_fmac_f32 v{ACC+2*d+1}, v{C0+i}, v25')
    k(f'v_lshlrev_b32 v{T}, 5, v0')
    k(f'ds_write_b128 v{T}, {v(ACC,4)}')
    k(f'ds_write_b128 v{T}, {v(ACC+4,4)} offset:16')
    k('s_waitcnt lgkmcnt(0)')
    k('s_barrier')
    k(f'v_and_b32 v{T}, 31, v0')
    k(f'v_lshlrev_b32 v{T}, 2, v{T}')
    k(f'v_lshrrev_b32 v3, 5, v0')
    k(f'v_lshl_add_u32 v3, v3, 10, v{T}')
    for i in range(8):
        k(f'ds_read_b32 v{ACC+i}, v3 offset:{128*i}')
    k('s_waitcnt lgkmcnt(0)')
    for i in range(1, 8):
        k(f'v_add_f32 v{ACC}, v{ACC}, v{ACC+i}')
    k(f'v_lshlrev_b32 v3, 2, v0')
    k(f'ds_write_b32 v3, v{ACC} offset:8192')
    k('s_waitcnt lgkmcnt(0)')
    k('s_barrier')
    for i in range(8):
        k(f'ds_read_b32 v{ACC+i}, v{T} offset:{8192 + 128*i}')
    k('s_waitcnt lgkmcnt(0)')
    for i in range(1, 8):
        k(f'v_add_f32 v{ACC}, v{ACC}, v{ACC+i}')
    rbf(k, ACC)
    k(f'v_add_f32 v{ACC+1}, 1.0, v{ACC}')
    rbf(k, ACC + 1)
    k(f's_sub_u32 {s(sT0)}, {s(stask)}, 20')
    k(f's_cmp_lt_u32 {s(sT0)}, 20')
    k(f's_cselect_b32 {s(sT1)}, 1, 0')
    k(f's_sub_u32 {s(sT0)}, {s(stask)}, 80')
    k(f's_cmp_lt_u32 {s(sT0)}, 20')
    k(f's_cselect_b32 {s(sT1)}, 1, {s(sT1)}')
    k(f's_cmp_eq_u32 {s(sT1)}, 1')
    k(f's_cselect_b64 vcc, -1, 0')
    k(f'v_cndmask_b32 v{ACC}, v{ACC}, v{ACC+1}, vcc')
    k(f's_lshl_b32 {s(sT0)}, {s(stask)}, 7')
    k(f's_add_u32 {s(sT0)}, {s(sT0)}, {MOD}')
    k(f'v_cmp_gt_u32 vcc, 32, v0')
    k(f's_and_saveexec_b64 {s(sT2,2)}, vcc')
    skip = k.newlabel('modskip')
    k(f's_cbranch_execz {skip}')
    k(f'buffer_store_dword v{ACC}, v{T}, {s(S_WS,4)}, {s(sT0)} offen{sc}')
    k.label(skip)
    k('s_mov_b64 exec, -1')

def row16_sum(k, r):
    for sh in (1, 2, 4, 8):
        k(f'v_add_f32 v{r}, v{r}, v{r} row_ror:{sh}')

def emit_ln1(k, srow, pre_wait):
    RO, CO, TO, T = 1, 2, 3, 4
    XR, V, SC, SH = 8, 32, 72, 112
    k(f'v_lshrrev_b32 v{T}, 4, v0')
    k(f'v_add_u32 v{T}, {s(srow)}, v{T}')
    k(f'v_mul_u32_u24 v{RO}, 1280, v{T}')
    k(f'v_and_b32 v5, 15, v0')
    k(f'v_lshl_add_u32 v{RO}, v5, 4, v{RO}')
    k(f'v_lshlrev_b32 v{CO}, 5, v5')
    k(f'v_lshrrev_b32 v6, 4, v{T}')
    k(f'v_mul_u32_u24 v{TO}, 20480, v6')
    k(f'v_and_b32 v6, 15, v{T}')
    k(f'v_lshl_add_u32 v{TO}, v6, 4, v{TO}')
    bits(k, TO, 0, [(0, 2, 8), (2, 2, 10)], 6, first=False)
    for i in range(5):
        k(f'buffer_load_dwordx4 {v(XR+4*i,4)}, v{RO}, {s(S_X,4)}, 0 offen offset:{256*i}')
    k('s_waitcnt vmcnt(0)')
    for i in range(20):
        unpack(k, XR + i, V + 2 * i, V + 2 * i + 1)
    MU, VAR, D0 = 5, 6, 28
    k(f'v_pk_add_f32 {v(D0,2)}, {v(V,2)}, {v(V+2,2)}')
    for i in range(4, 40, 2):
        k(f'v_pk_add_f32 {v(D0,2)}, {v(D0,2)}, {v(V+i,2)}')
    k(f'v_add_f32 v{MU}, v{D0}, v{D0+1}')
    row16_sum(k, MU)
    k(f'v_mul_f32 v{MU}, 0x3acccccd, v{MU}')
    k(f'v_mov_b32 v{VAR}, 0')
    for i in range(40):
        k(f'v_sub_f32 v{D0 + (i&1)}, v{V+i}, v{MU}')
        k(f'v_fmac_f32 v{VAR}, v{D0 + (i&1)}, v{D0 + (i&1)}')
    row16_sum(k, VAR)
    k(f'v_mul_f32 v{VAR}, 0x3acccccd, v{VAR}')
    rbf2(k, MU, VAR)
    k(f'v_add_f32 v{VAR}, 0x3727c5ac, v{VAR}')
    rbf(k, VAR)
    k(f'v_sqrt_f32 v{VAR}, v{VAR}')
    rbf(k, VAR)
    k(f'v_rcp_f32 v{D0}, v{VAR}')
    k(f'v_mov_b32 v{D0+2}, v{MU}')
    for i in range(0, 40, 2):
        k(f'v_pk_add_f32 {v(V+i,2)}, {v(V+i,2)}, {v(D0+2,2)} op_sel_hi:[1,0] neg_lo:[0,1] neg_hi:[0,1]')
        rbf2(k, V + i, V + i + 1)
        k(f'v_pk_mul_f32 {v(V+i,2)}, {v(V+i,2)}, {v(D0,2)} op_sel_hi:[1,0]')
        rbf2(k, V + i, V + i + 1)
    pre_wait()
    k(f's_mov_b32 {s(sT0)}, {MOD}')
    k(f's_mov_b32 {s(sT2)}, {MOD + 2560}')
    for i in range(5):
        for h in range(2):
            k(f'buffer_load_dwordx4 {v(SC+8*i+4*h,4)}, v{CO}, {s(S_WS,4)}, {s(sT2)} offen offset:{512*i+16*h} sc1')
            k(f'buffer_load_dwordx4 {v(SH+8*i+4*h,4)}, v{CO}, {s(S_WS,4)}, {s(sT0)} offen offset:{512*i+16*h} sc1')
    OUT = 152
    k(f's_mov_b32 {s(sT1)}, {H}')
    for i in range(5):
        k(f's_waitcnt vmcnt({16 - 3*i})')
        for j in range(8 * i, 8 * i + 8, 2):
            k(f'v_pk_mul_f32 {v(V+j,2)}, {v(V+j,2)}, {v(SC+j,2)}')
            rbf2(k, V + j, V + j + 1)
            k(f'v_pk_add_f32 {v(V+j,2)}, {v(V+j,2)}, {v(SH+j,2)}')
            k(f'v_cvt_pk_bf16_f32 v{OUT+j//2}, v{V+j}, v{V+j+1}')
        k(f'buffer_store_dwordx4 {v(OUT+4*i,4)}, v{TO}, {s(S_WS,4)}, {s(sT1)} offen sc1')
        k(f's_add_u32 {s(sT1)}, {s(sT1)}, 4096')

def b_lane_setup(k, dst, rd0, ldb, perm, T, nbase):
    if perm:
        k(f'v_lshrrev_b32 v{dst}, 2, v0')
    else:
        bits(k, dst, 0, [(4, 2, 3), (2, 2, 0)], T)
    k(f's_mov_b32 {s(sT1)}, {ldb}')
    k(f'v_mul_lo_u32 v{dst}, v{dst}, {s(sT1)}')
    k(f'v_lshrrev_b32 v{T}, 3, v0')
    k(f'v_and_b32 v{T}, 2, v{T}')
    k(f'v_xor_b32 v{T}, v{T}, v0')
    k(f'v_and_b32 v{T}, 3, v{T}')
    k(f'v_lshl_add_u32 v{dst}, v{T}, 4, v{dst}')
    bits(k, rd0, 0, [(2, 4, 6), (4, 1, 5), (0, 2, 3)], T)
    k(f'v_xor_b32 v{rd0+1}, 32, v{rd0}')
    for b in range(1, nbase):
        k(f'v_add_u32 v{rd0+2*b}, {b << 16}, v{rd0}')
        k(f'v_add_u32 v{rd0+2*b+1}, {b << 16}, v{rd0+1}')

def emit_gemm(k, RT, CT, NK, NS, ldb, a_rt_stride, perm, trans, srd_of, name, ldsc='', gcol=None, pre_wait=None, overlap=None):
    assert NK % NS == 0 and CT % 4 == 0
    NPW = CT // 4
    vAO, T, vRD, vBO = 1, 2, 4, 8
    AB = 16
    BF = AB + NS * RT * 4
    NF = 8
    LA = 6
    assert (NS * CT) % NF == 0
    ACC = 128
    assert BF + 4 * NF <= ACC and ACC + RT * CT * 4 <= 256
    STG = CT * 1024
    assert NS * STG <= 131072
    hrow = 16 if perm else 4
    k(f'v_lshlrev_b32 v{vAO}, 4, v0')
    b_lane_setup(k, vBO, vRD, ldb, perm, T, 2)
    k(f's_and_b32 {s(sT0)}, {s(sW)}, 1')
    k(f's_mul_i32 {s(sT0)}, {s(sT0)}, {hrow * ldb}')
    k(f's_lshr_b32 {s(sT1)}, {s(sW)}, 1')
    k(f's_lshl_b32 {s(sT1)}, {s(sT1)}, 6')
    k(f's_add_u32 {s(sT0)}, {s(sT0)}, {s(sT1)}')
    k(f'v_add_u32 v{vBO}, {s(sT0)}, v{vBO}')
    gcol = gcol or (lambda i: 128 * i)
    for i in range(NPW - 1, -1, -1):
        k(f'v_add_u32 v{vBO+i}, {gcol(i)}, v{vBO}')
    k(f's_lshl_b32 {s(sM0)}, {s(sW)}, 10')
    def b_ops(slot):
        ops = []
        for i in range(NPW):
            ops.append(f's_add_u32 m0, {s(sM0)}, {slot*STG + i*4096}')
            ops.append(f'buffer_load_dwordx4 v{vBO+i}, {s(srd_of(i),4)}, {s(sB)} offen lds')
        ops.append(f's_add_u32 {s(sB)}, {s(sB)}, {32*ldb}')
        return ops
    def a_ops(slot):
        ops = []
        for rt in range(RT):
            if rt == 0:
                ops.append(f'buffer_load_dwordx4 {v(AB+(slot*RT)*4,4)}, v{vAO}, {s(S_WS,4)}, {s(sA)} offen{ldsc}')
            else:
                ops.append(f's_add_u32 {s(sT1)}, {s(sA)}, {rt*a_rt_stride}')
                ops.append(f'buffer_load_dwordx4 {v(AB+(slot*RT+rt)*4,4)}, v{vAO}, {s(S_WS,4)}, {s(sT1)} offen{ldsc}')
        ops.append(f's_add_u32 {s(sA)}, {s(sA)}, 1024')
        return ops
    vm = []
    def emit(ops, tag):
        for op in ops:
            k(op)
            if op.startswith('buffer_'):
                vm.append(tag)
    def vwait(tag):
        idx = [i for i, t in enumerate(vm) if t <= tag]
        n = len(vm) - 1 - max(idx) if idx else len(vm)
        k(f's_waitcnt vmcnt({n})')
        if idx:
            del vm[:max(idx) + 1]
        return n
    for sl in range(NS - 1):
        emit(b_ops(sl), sl)
    if pre_wait:
        pre_wait()
    for sl in range(NS - 1):
        emit(a_ops(sl), sl)
    if overlap:
        overlap(len(vm))
    def brd(slot, c, n):
        for hh in range(2):
            o_ = slot * STG + (c >> 1) * 2048 + hh * 1024
            k(f'ds_read_b64_tr_b16 {v(BF + 4*(n%NF) + 2*hh, 2)}, v{vRD + 2*(o_ >> 16) + (c & 1)} offset:{o_ & 0xffff}')
    vwait(0)
    k('s_barrier')
    for n in range(LA):
        brd(0, n, n)
    def body(base, steady):
        n = 0
        for sl in range(NS):
            ks = base + sl
            if steady:
                k(f's_waitcnt vmcnt({(NS-3)*(NPW+RT)})')
            else:
                vwait(ks + 1)
            k('s_barrier')
            ops = b_ops((sl + NS - 1) % NS) + a_ops((sl + NS - 1) % NS)
            for c in range(CT):
                if c % 2 == 0:
                    k(f's_waitcnt lgkmcnt({2*(LA-2)})')
                for rt in range(RT):
                    acc = v(ACC + (rt * CT + c) * 4, 4)
                    A_, B_ = v(AB + (sl * RT + rt) * 4, 4), v(BF + 4 * (n % NF), 4)
                    if trans[c]:
                        A_, B_ = B_, A_
                    k(f'{MF32} {acc}, {A_}, {B_}, {"0" if ks == 0 else acc}')
                    if rt == 0:
                        c2 = c + LA
                        brd(sl if c2 < CT else (sl + 1) % NS, c2 % CT, n + LA)
                    elif ops:
                        emit(ops[:2], ks + NS - 1); del ops[:2]
                n += 1
            assert not ops
    body(0, False)
    k(f's_mov_b32 {s(sCNT)}, {NK // NS - 1}')
    loop = f'{name}_loop'
    k.raw('.p2align 3')
    k.label(loop)
    body(NS, True)
    k(f's_sub_u32 {s(sCNT)}, {s(sCNT)}, 1')
    k(f's_cmp_lg_u32 {s(sCNT)}, 0')
    k(f's_cbranch_scc1 {loop}')
    k('s_waitcnt vmcnt(0) lgkmcnt(0)')
    k('s_barrier')

def emit_burst_b(k, CT, NK, ldb, perm, srd, sBo, lds0):
    STG = CT * 1024
    NKW = (NK + 3) // 4
    assert lds0 + NKW * 4 * STG <= 163840
    hrow = 16 if perm else 4
    b_lane_setup(k, 3, 4, ldb, perm, 2, 1)
    k(f's_mul_i32 {s(sT0)}, {s(sW)}, {32*ldb}')
    k(f's_add_u32 {s(sBo)}, {s(sBo)}, {s(sT0)}')
    k(f's_mul_i32 {s(sM0)}, {s(sW)}, {STG}')
    for i in range(NKW):
        for d in range(CT):
            k(f's_add_u32 m0, {s(sM0)}, {lds0 + i*4*STG + d*1024}')
            k(f's_add_u32 {s(sT0)}, {s(sBo)}, {i*128*ldb + (d & 1)*hrow*ldb + (d >> 1)*64}')
            k(f'buffer_load_dwordx4 v3, {s(srd,4)}, {s(sT0)} offen lds')

def emit_burst(k, CT, NK, ldb, perm, srd, pre_wait, lds0=0, ldsc=' sc1', mid=None, b_done=False):
    assert CT % 2 == 0
    vAO, T, vBO, vRD = 1, 2, 3, 4
    AB = 16
    NF = 8
    BF = AB + NK * 4
    if BF + 4 * NF + 4 * CT > 256:
        NF = 4
    ACC = BF + 4 * NF
    useA = ACC + 4 * CT > 256
    accr = (lambda c: a(4 * c, 4)) if useA else (lambda c: v(ACC + 4 * c, 4))
    STG = CT * 1024
    NKW = (NK + 3) // 4
    assert lds0 + NKW * 4 * STG <= 163840
    hrow = 16 if perm else 4
    if not b_done:
        emit_burst_b(k, CT, NK, ldb, perm, srd, sB, lds0)
    k(f'v_lshlrev_b32 v{vAO}, 4, v0')
    b_lane_setup(k, vBO, vRD, ldb, perm, T, 3)
    if mid:
        mid()
    pre_wait()
    for ks in range(NK):
        if ks and ks % 4 == 0:
            k(f's_add_u32 {s(sA)}, {s(sA)}, 4096')
        k(f'buffer_load_dwordx4 {v(AB+4*ks,4)}, v{vAO}, {s(S_WS,4)}, {s(sA)} offen offset:{(ks&3)*1024}{ldsc}')
    if not b_done:
        k('s_barrier')
    LA = NF - 1
    TOT = NK * CT
    def brd(n):
        ks, c = divmod(n, CT)
        for hh in range(2):
            o_ = lds0 + ks * STG + (c >> 1) * 2048 + hh * 1024
            k(f'ds_read_b64_tr_b16 {v(BF + 4*(n%NF) + 2*hh, 2)}, v{vRD + 2*(o_ >> 16) + (c & 1)} offset:{o_ & 0xffff}')
    for n in range(LA):
        brd(n)
    for n in range(TOT):
        ks, c = divmod(n, CT)
        ahead = min(LA - 1, TOT - 1 - n)
        if c == 0:
            k(f's_waitcnt vmcnt({NK-1-ks}) lgkmcnt({2*ahead})')
        else:
            k(f's_waitcnt lgkmcnt({2*ahead})')
        k(f'{MF32} {accr(c)}, {v(BF + 4*(n%NF),4)}, {v(AB+4*ks,4)}, {"0" if ks == 0 else accr(c)}')
        if n + LA < TOT:
            brd(n + LA)
    assert not useA
    return ACC

def acc_read(k, dst, accidx, n=4):
    for i in range(n):
        k(f'v_accvgpr_read_b32 v{dst+i}, a{accidx+i}')

def emit_qkv_main(k, isq, sRB, sHD, sOUT, name, pre_wait, overlap, RT=2, NS=5):
    CT = 16
    k(f's_lshl_b32 {s(sE1)}, {s(sRB)}, 2')
    k(f's_add_u32 {s(sE1)}, {s(sE1)}, {s(sW)}')
    k(f's_mul_i32 {s(sA)}, {s(sE1)}, {RT*20480}')
    k(f's_add_u32 {s(sA)}, {s(sA)}, {H}')
    k(f's_lshl_b32 {s(sB)}, {s(sHD)}, {9 if isq else 8}')
    if isq:
        emit_gemm(k, RT, CT, 20, NS, 8192, 20480, False, [True] * 16, lambda i: S_B0, name, ' sc1', pre_wait=pre_wait, overlap=overlap)
    else:
        emit_gemm(k, RT, CT, 20, NS, 8192, 20480, False, [True] * 8 + [False] * 8, lambda i: S_B0 if i < 2 else S_B1, name, ' sc1',
                  gcol=lambda i: 128 * (i & 1), pre_wait=pre_wait, overlap=overlap)
    k(f's_lshl_b32 {s(sOUT)}, {s(sE1)}, {18 if isq else 19}')
    k(f's_lshl_b32 {s(sT1)}, {s(sHD)}, 14')
    k(f's_add_u32 {s(sOUT)}, {s(sOUT)}, {s(sT1)}')
    k(f's_add_u32 {s(sOUT)}, {s(sOUT)}, {QT if isq else KV}')

def emit_qkv_epi(k, isq, sOUT):
    CT, ACC = 16, 128
    n = 0
    def piece(t0, t1, off):
        nonlocal n
        R = 88 + 4 * (n % 10); n += 1
        for i, t in enumerate((t0, t1)):
            k(f'v_cvt_pk_bf16_f32 v{R+2*i}, v{ACC+4*t}, v{ACC+4*t+1}')
            k(f'v_cvt_pk_bf16_f32 v{R+2*i+1}, v{ACC+4*t+2}, v{ACC+4*t+3}')
        if off and off % 4096 == 0:
            k(f's_add_u32 {s(sOUT)}, {s(sOUT)}, 4096')
        k(f'buffer_store_dwordx4 {v(R,4)}, v1, {s(S_WS,4)}, {s(sOUT)} offen offset:{off & 0xfff} sc1')
    for half in range(2):
        if isq or half == 0:
            for kt in range(2):
                for j in range(4):
                    c = 8 * half + 2 * j
                    piece(kt * CT + c, kt * CT + c + 1, half * 8192 + kt * 4096 + j * 1024)
        else:
            for et in range(8):
                piece(8 + et, CT + 8 + et, 8192 + et * 1024)
            k(f's_sub_u32 {s(sT0)}, {s(sOUT)}, {KV + 12288}')
            k(f's_lshr_b32 {s(sT0)}, {s(sT0)}, 2')
            k(f's_add_u32 {s(sT0)}, {s(sT0)}, {KVM}')
            k(f'v_mov_b64 {v(ACC,2)}, -1')
            k(f'v_mov_b64 {v(ACC+2,2)}, -1')
            for i in range(4):
                k(f'buffer_store_dwordx4 {v(ACC,4)}, v1, {s(S_WS,4)}, {s(sT0)} offen offset:{1024*i} sc1')

def emit_att_setup(k):
    k('v_lshlrev_b32 v1, 4, v0')
    bits(k, 2, 0, [(2, 4, 4), (0, 1, 3)], 4)
    bits(k, 3, 0, [(0, 4, 4), (4, 1, 3)], 4)
    k(f's_lshl_b32 {s(sT0)}, {s(sW)}, 12')
    k(f'v_add_u32 v2, {s(sT0)}, v2')
    k(f'v_add_u32 v3, {s(sT0)}, v3')
    k('v_and_b32 v4, 15, v0')
    k('v_lshrrev_b32 v5, 4, v0')
    k('v_lshlrev_b32 v5, 2, v5')
    for r in range(4):
        k(f'v_add_u32 v6, {r}, v5')
        k(f'v_cmp_le_u32 {s(60+2*r,2)}, v6, v4')
    k(f's_mov_b64 {s(68,2)}, 0xffffffff')

def emit_att_task(k, sSEG, sHD, ldsc='', stsc='', wait_kvm=None):
    Q, K_, V_, KMm, VMm, S, P, O = 8, 40, 72, 104, 120, 136, 160, 8
    k(f's_lshl_b32 {s(sT0)}, {s(sSEG)}, 5')
    k(f's_add_u32 {s(sT0)}, {s(sT0)}, {s(sHD)}')
    k(f's_lshl_b32 {s(sT1)}, {s(sT0)}, 13')
    k(f's_add_u32 {s(sT1)}, {s(sT1)}, {QT}')
    k(f's_lshl_b32 {s(sT2)}, {s(sT0)}, 14')
    k(f's_add_u32 {s(sT2)}, {s(sT2)}, {KV}')
    k(f's_lshl_b32 {s(sT3)}, {s(sT0)}, 12')
    k(f's_add_u32 {s(sT3)}, {s(sT3)}, {KVM}')
    def ld8(dst, so):
        for i in range(8):
            if i == 4:
                k(f's_add_u32 {s(so)}, {s(so)}, 4096')
            k(f'buffer_load_dwordx4 {v(dst+4*i,4)}, v1, {s(S_WS,4)}, {s(so)} offen offset:{(i&3)*1024}{ldsc}')
    ld8(Q, sT1); ld8(K_, sT2)
    k(f's_add_u32 {s(sT2)}, {s(sT2)}, 4096')
    ld8(V_, sT2)
    if wait_kvm:
        wait_kvm()
    else:
        k(f's_lshl_b32 m0, {s(sW)}, 12')
        for i in range(4):
            k(f'buffer_load_dwordx4 v1, {s(S_WS,4)}, {s(sT3)} offen offset:{i*1024} lds')
        k('s_waitcnt vmcnt(0)')
    for j in range(4):
        for hh in range(2):
            k(f'ds_read_b64_tr_b16 {v(KMm+4*j+2*hh,2)}, v2 offset:{j*512+hh*256}')
    for et in range(8):
        k(f'ds_read_b64 {v(VMm+2*et,2)}, v3 offset:{2048 + et*256}')
    tiles = [(0, 1), (1, 1), (1, 2), (0, 0), (1, 0)]
    for idx, (qt, t) in enumerate(tiles):
        if idx == 3:
            k('s_waitcnt lgkmcnt(8)')
        for j in range(4):
            A_ = v(KMm + 4 * j, 4) if t == 0 else v(K_ + 16 * (t - 1) + 4 * j, 4)
            D = v(S + 12 * qt + 4 * t, 4)
            k(f'{MF32} {D}, {A_}, {v(Q+16*qt+4*j,4)}, {"0" if j == 0 else D}')
    NEGBIG = 0xce6e6b28
    k(f'v_mov_b32 v6, {NEGBIG}')
    k(f's_mov_b32 {s(sE0)}, 0x3db504f3')
    k(f's_mov_b32 {s(sE1)}, {LOG2E}')
    for qt in range(2):
        regs = list(range(S + 12 * qt, S + 12 * qt + (8 if qt == 0 else 12)))
        for i in range(0, len(regs), 2):
            rbf2(k, regs[i], regs[i + 1])
            k(f'v_mul_f32 v{regs[i]}, {s(sE0)}, v{regs[i]}')
            k(f'v_mul_f32 v{regs[i+1]}, {s(sE0)}, v{regs[i+1]}')
            rbf2(k, regs[i], regs[i + 1])
        for r in range(4):
            k(f'v_cndmask_b32 v{regs[r]}, v6, v{regs[r]}, {s(68,2)}')
            k(f'v_cndmask_b32 v{regs[-4+r]}, v6, v{regs[-4+r]}, {s(60+2*r,2)}')
        M, M2 = 4, 5
        k(f'v_max3_f32 v{M}, v{regs[0]}, v{regs[1]}, v{regs[2]}')
        rest = regs[3:]
        while rest:
            if len(rest) >= 2:
                k(f'v_max3_f32 v{M}, v{M}, v{rest[0]}, v{rest[1]}'); rest = rest[2:]
            else:
                k(f'v_max_f32 v{M}, v{M}, v{rest[0]}'); rest = rest[1:]
        for sw in ('v_permlane16_swap_b32', 'v_permlane32_swap_b32'):
            k(f'v_mov_b32 v{M2}, v{M}')
            k(f'{sw} v{M}, v{M2}')
            k(f'v_max_f32 v{M}, v{M}, v{M2}')
        for r in regs:
            k(f'v_sub_f32 v{r}, v{r}, v{M}')
            k(f'v_mul_f32 v{r}, {s(sE1)}, v{r}')
            k(f'v_exp_f32 v{r}, v{r}')
        k(f'v_add_f32 v{M}, v{regs[0]}, v{regs[1]}')
        for r in regs[2:]:
            k(f'v_add_f32 v{M}, v{M}, v{r}')
        for sw in ('v_permlane16_swap_b32', 'v_permlane32_swap_b32'):
            k(f'v_mov_b32 v{M2}, v{M}')
            k(f'{sw} v{M}, v{M2}')
            k(f'v_add_f32 v{M}, v{M}, v{M2}')
        k(f'v_rcp_f32 v{M}, v{M}')
        for r in regs:
            k(f'v_mul_f32 v{r}, v{r}, v{M}')
        for i in range(2):
            k(f'v_cvt_pk_bf16_f32 v{P+8*qt+4+i}, v{regs[2*i]}, v{regs[2*i+1]}')
        for i in range(4):
            if 4 + 2 * i < len(regs):
                k(f'v_cvt_pk_bf16_f32 v{P+8*qt+i}, v{regs[4+2*i]}, v{regs[4+2*i+1]}')
            else:
                k(f'v_mov_b32 v{P+8*qt+i}, 0')
    k('s_waitcnt lgkmcnt(0)')
    for qt in range(2):
        for et in range(8):
            D = v(O + 32 * qt + 4 * et, 4)
            k(f'{MF32} {D}, {v(V_+4*et,4)}, {v(P+8*qt,4)}, 0')
        for et in range(8):
            D = v(O + 32 * qt + 4 * et, 4)
            k(f'v_mfma_f32_16x16x16_bf16 {D}, {v(VMm+2*et,2)}, {v(P+8*qt+4,2)}, {D}')
    k(f's_lshl_b32 {s(sT0)}, {s(sSEG)}, 18')
    k(f's_lshl_b32 {s(sT1)}, {s(sHD)}, 12')
    k(f's_add_u32 {s(sT0)}, {s(sT0)}, {s(sT1)}')
    k(f's_add_u32 {s(sT0)}, {s(sT0)}, {OO}')
    for qt in range(2):
        for j in range(4):
            R = S + 4 * ((4 * qt + j) % 6)
            for i in range(4):
                k(f'v_cvt_pk_bf16_f32 v{R+i}, v{O+32*qt+8*j+2*i}, v{O+32*qt+8*j+2*i+1}')
            k(f'buffer_store_dwordx4 {v(R,4)}, v1, {s(S_WS,4)}, {s(sT0)} offen offset:{j*1024}{stsc}')
        if qt == 0:
            k(f's_add_u32 {s(sT0)}, {s(sT0)}, {128*1024}')

def emit_wo_task(k, sG, sCB, sSP, CT, NSPLIT, pre_wait):
    NK = 128 // NSPLIT
    k(f's_lshl_b32 {s(sE1)}, {s(sG)}, 2')
    k(f's_add_u32 {s(sE1)}, {s(sE1)}, {s(sW)}')
    k(f's_lshl_b32 {s(sA)}, {s(sE1)}, 17')
    k(f's_mul_i32 {s(sT1)}, {s(sSP)}, {NK*1024}')
    k(f's_add_u32 {s(sA)}, {s(sA)}, {s(sT1)}')
    k(f's_add_u32 {s(sA)}, {s(sA)}, {OO}')
    k(f's_mul_i32 {s(sB)}, {s(sSP)}, {NK*32*1280}')
    k(f's_mul_i32 {s(sT1)}, {s(sCB)}, {CT*32}')
    k(f's_add_u32 {s(sB)}, {s(sB)}, {s(sT1)}')
    k(f's_mul_i32 {s(sE0)}, {s(sSP)}, {2048*2560}')
    k(f's_lshl_b32 {s(sT1)}, {s(sT1)}, 3')
    k(f's_add_u32 {s(sE0)}, {s(sE0)}, {s(sT1)}')
    k(f's_mul_i32 {s(sT1)}, {s(sE1)}, {16*2560}')
    k(f's_add_u32 {s(sE0)}, {s(sE0)}, {s(sT1)}')
    k(f's_add_u32 {s(sE0)}, {s(sE0)}, {PART}')
    def mid():
        k('v_bfe_u32 v12, v0, 2, 2')
        k('v_mul_u32_u24 v12, 10240, v12')
        bits(k, 12, 0, [(4, 2, 6), (0, 2, 4)], 2, first=False)
    ACC = emit_burst(k, CT, NK, 1280, True, S_B0, pre_wait, mid=mid, b_done=True)
    for c in range(CT):
        k(f'buffer_store_dwordx4 {v(ACC+4*c,4)}, v12, {s(S_WS,4)}, {s(sE0)} offen offset:{256*c} sc1')

def emit_ff1_task(k, sG, sCB, CT, pre_wait, lds0=0):
    k(f's_lshl_b32 {s(sE1)}, {s(sG)}, 2')
    k(f's_add_u32 {s(sE1)}, {s(sE1)}, {s(sW)}')
    k(f's_mul_i32 {s(sA)}, {s(sE1)}, 20480')
    k(f's_add_u32 {s(sA)}, {s(sA)}, {H2}')
    k(f's_mul_i32 {s(sB)}, {s(sCB)}, {CT*32}')
    k(f's_mul_i32 {s(sE0)}, {s(sE1)}, {54*1024}')
    k(f's_mul_i32 {s(sT1)}, {s(sCB)}, {CT//2*1024}')
    k(f's_add_u32 {s(sE0)}, {s(sE0)}, {s(sT1)}')
    k(f's_add_u32 {s(sE0)}, {s(sE0)}, {FF}')
    ACC = emit_burst(k, CT, 20, 3456, False, S_B0, pre_wait, lds0=lds0, b_done=True)
    for j in range(CT // 2):
        R = ACC + 8 * j
        for i in range(0, 8, 2):
            rbf2(k, R + i, R + i + 1)
        TT = 16
        for i in range(8):
            k(f'v_mul_f32 v{TT+i}, 0xbfb8aa3b, v{R+i}')
        for i in range(8):
            k(f'v_exp_f32 v{TT+i}, v{TT+i}')
        for i in range(8):
            k(f'v_add_f32 v{TT+i}, 1.0, v{TT+i}')
        for i in range(8):
            k(f'v_rcp_f32 v{TT+i}, v{TT+i}')
        for i in range(0, 8, 2):
            k(f'v_pk_mul_f32 {v(R+i,2)}, {v(R+i,2)}, {v(TT+i,2)}')
        for i in range(4):
            k(f'v_cvt_pk_bf16_f32 v{32+4*j+i}, v{R+2*i}, v{R+2*i+1}')
        k(f'buffer_store_dwordx4 {v(32+4*j,4)}, v1, {s(S_WS,4)}, {s(sE0)} offen offset:{j*1024} sc1')

def emit_ff2_task(k, sG, sCB, CT, pre_wait, lds0=0):
    k(f's_lshl_b32 {s(sE1)}, {s(sG)}, 2')
    k(f's_add_u32 {s(sE1)}, {s(sE1)}, {s(sW)}')
    k(f's_mul_i32 {s(sA)}, {s(sE1)}, {54*1024}')
    k(f's_add_u32 {s(sA)}, {s(sA)}, {FF}')
    k(f's_mul_i32 {s(sB)}, {s(sCB)}, {CT*32}')
    k(f's_mul_i32 {s(sE0)}, {s(sE1)}, {16*1280}')
    k(f's_add_u32 {s(sE0)}, {s(sE0)}, {s(sB)}')
    k(f's_lshl_b32 {s(sE2)}, {s(sB)}, 1')
    k(f's_add_u32 {s(sE2)}, {s(sE2)}, {MOD + 5*2560}')
    def mid():
        k('v_and_b32 v12, 15, v0')
        k('v_mul_u32_u24 v12, 1280, v12')
        bits(k, 12, 0, [(4, 2, 3)], 2, first=False)
        bits(k, 13, 0, [(4, 2, 4)], 2)
        for c in range(CT):
            k(f'buffer_load_dwordx4 {a(8+4*c,4)}, v13, {s(S_WS,4)}, {s(sE2)} offen offset:{64*c} sc1')
    def pw():
        pre_wait()
        k(f's_add_u32 {s(sT0)}, {s(sE0)}, {X1}')
        for c in range(CT):
            k(f'buffer_load_dwordx2 {a(2*c,2)}, v12, {s(S_WS,4)}, {s(sT0)} offen offset:{32*c} sc1')
    ACC = emit_burst(k, CT, 54, 1280, True, S_B0, pw, lds0=lds0, mid=mid, b_done=True)
    XB, GB = 16, 24
    acc_read(k, XB, 0, 2 * CT)
    acc_read(k, GB, 8, 4 * CT)
    for c in range(CT):
        for h in range(2):
            r = ACC + 4 * c + 2 * h
            rbf2(k, r, r + 1)
            k(f'v_pk_mul_f32 {v(r,2)}, {v(r,2)}, {v(GB+4*c+2*h,2)}')
            rbf2(k, r, r + 1)
            unpack(k, XB + 2 * c + h, 6, 7)
            k(f'v_pk_add_f32 {v(r,2)}, {v(r,2)}, v[6:7]')
            k(f'v_cvt_pk_bf16_f32 v{XB+2*c+h}, v{r}, v{r+1}')
        k(f'buffer_store_dwordx2 {v(XB+2*c,2)}, v12, {s(S_OUT,4)}, {s(sE0)} offen offset:{32*c}')

def wave_sum(k, r, t):
    row16_sum(k, r)
    for sw in ('v_permlane16_swap_b32', 'v_permlane32_swap_b32'):
        k(f'v_mov_b32 v{t}, v{r}')
        k(f'{sw} v{r}, v{t}')
        k(f'v_add_f32 v{r}, v{r}, v{t}')

def quad_sum(k, r, t):
    k(f'v_add_f32 v{r}, v{r}, v{r} row_ror:4')
    k(f'v_add_f32 v{r}, v{r}, v{r} row_ror:8')
    for sw in ('v_permlane16_swap_b32', 'v_permlane32_swap_b32'):
        k(f'v_mov_b32 v{t}, v{r}')
        k(f'{sw} v{r}, v{t}')
        k(f'v_add_f32 v{r}, v{r}, v{t}')

def emit_ln2_quad(k, sq, nsplit, pre_wait, ldsx, top_label):
    L16, CO, RO, TO, MU, VAR, T, LX = 1, 2, 3, 4, 5, 6, 7, 10
    D0 = 8
    XR, G, SC, SH, P = 12, 20, 32, 44, 56
    V = P
    NP = 3
    k(f'v_lshlrev_b32 v{L16}, 4, v0')
    k(f's_lshl_b32 {s(sT0)}, {s(sW)}, 8')
    k(f'v_and_b32 v{CO}, 0x3c0, v{L16}')
    k(f'v_lshrrev_b32 v{CO}, 2, v{CO}')
    k(f'v_add_u32 v{CO}, {s(sT0)}, v{CO}')
    k(f'v_and_b32 v{T}, 3, v0')
    k(f'v_mul_u32_u24 v{RO}, 1280, v{T}')
    k(f'v_lshrrev_b32 v{D0}, 1, v{CO}')
    k(f'v_add_u32 v{RO}, v{RO}, v{D0}')
    bits(k, TO, 0, [(5, 1, 10), (3, 2, 8), (0, 2, 4), (2, 1, 3)], D0)
    k(f's_lshl_b32 {s(sT0)}, {s(sW)}, 11')
    k(f'v_add_u32 v{TO}, {s(sT0)}, v{TO}')
    k(f's_lshl_b32 {s(sT0)}, {s(sW)}, 4')
    k(f'v_lshl_add_u32 v{LX}, v{T}, 2, {s(sT0)}')
    k(f'v_lshlrev_b32 v{LX+1}, 2, v{T}')
    last = k.newlabel('ln2n')
    def guarded(fn):
        for p in range(2):
            fn(p)
        sk = k.newlabel('ln2s')
        k(f's_cmp_ge_u32 {s(sW)}, 2'); k(f's_cbranch_scc1 {sk}')
        fn(2)
        k.label(sk)
    for r in [XR + 4, G + 8, G + 10, SC + 8, SC + 10, SH + 8, SH + 10]:
        k(f'v_mov_b64 {v(r,2)}, 0')
    def ld_mod(p):
        for dst, idx in ((G, 2), (SC, 4), (SH, 3)):
            k(f's_mov_b32 {s(sT0)}, {MOD + idx * 2560}')
            k(f'buffer_load_dwordx4 {v(dst+4*p,4)}, v{CO}, {s(S_WS,4)}, {s(sT0)} offen offset:{1024*p} sc1')
    guarded(ld_mod)
    k.label(top_label)
    k(f's_mul_i32 {s(sE0)}, {s(sq)}, 5120')
    guarded(lambda p: k(f'buffer_load_dwordx2 {v(XR+2*p,2)}, v{RO}, {s(S_X,4)}, {s(sE0)} offen offset:{512*p}'))
    pre_wait()
    k(f's_lshl_b32 {s(sT0)}, {s(sE0)}, 1')
    k(f's_lshl_b32 {s(sT1)}, {s(sW)}, 10')
    k(f's_add_u32 {s(sT0)}, {s(sT0)}, {s(sT1)}')
    k(f's_add_u32 {s(sT0)}, {s(sT0)}, {PART}')
    k(f's_cmp_lt_u32 {s(sW)}, 2')
    k(f's_cselect_b32 {s(sT2)}, 2, 1')
    k(f's_lshl_b32 {s(sT2)}, {s(sT2)}, 12')
    for sp in range(nsplit):
        k(f's_add_u32 {s(sT1)}, {s(sT0)}, 4096')
        k(f's_add_u32 {s(sT3)}, {s(sT0)}, {s(sT2)}')
        for p, so in enumerate((sT0, sT1, sT3)):
            k(f'buffer_load_dwordx4 {v(P+12*sp+4*p,4)}, v{L16}, {s(S_WS,4)}, {s(so)} offen sc1')
        k(f's_add_u32 {s(sT0)}, {s(sT0)}, {2048*2560}')
    for sp in range(1, nsplit):
        k(f's_waitcnt vmcnt({3*(nsplit-1-sp)})')
        for i in range(0, 12, 2):
            k(f'v_pk_add_f32 {v(V+i,2)}, {v(V+i,2)}, {v(P+12*sp+i,2)}')
    for i in range(0, 12, 2):
        rbf2(k, V + i, V + i + 1)
        k(f'v_pk_mul_f32 {v(V+i,2)}, {v(V+i,2)}, {v(G+i,2)}')
        rbf2(k, V + i, V + i + 1)
        unpack(k, XR + i // 2, D0, D0 + 1)
        k(f'v_pk_add_f32 {v(V+i,2)}, {v(V+i,2)}, {v(D0,2)}')
        k(f'v_cvt_pk_bf16_f32 v{XR+i//2}, v{V+i}, v{V+i+1}')
        unpack(k, XR + i // 2, V + i, V + i + 1)
    k(f'v_pk_add_f32 {v(D0,2)}, {v(V,2)}, {v(V+2,2)}')
    for i in range(4, 12, 2):
        k(f'v_pk_add_f32 {v(D0,2)}, {v(D0,2)}, {v(V+i,2)}')
    k(f'v_add_f32 v{MU}, v{D0}, v{D0+1}')
    quad_sum(k, MU, T)
    k(f'ds_write_b32 v{LX}, v{MU} offset:{ldsx}')
    k(f's_add_u32 {s(sT1)}, {s(sE0)}, {X1}')
    guarded(lambda p: k(f'buffer_store_dwordx2 {v(XR+2*p,2)}, v{RO}, {s(S_WS,4)}, {s(sT1)} offen offset:{512*p} sc1'))
    def xwave(dst, off):
        k('s_waitcnt lgkmcnt(0)')
        k('s_barrier')
        Q = P + 12
        k(f'ds_read2_b32 {v(Q,2)}, v{LX+1} offset0:{(off)//4} offset1:{(off+16)//4}' if False else f'ds_read_b32 v{Q}, v{LX+1} offset:{off}')
        for i in range(1, 4):
            k(f'ds_read_b32 v{Q+i}, v{LX+1} offset:{off+16*i}')
        k('s_waitcnt lgkmcnt(0)')
        k(f'v_pk_add_f32 {v(Q,2)}, {v(Q,2)}, {v(Q+2,2)}')
        k(f'v_add_f32 v{dst}, v{Q}, v{Q+1}')
        k(f'v_mul_f32 v{dst}, 0x3acccccd, v{dst}')
    xwave(MU, ldsx)
    k(f'v_mov_b32 v{VAR}, 0')
    def acc_var(p):
        for i in range(4 * p, 4 * p + 4):
            k(f'v_sub_f32 v{D0 + (i&1)}, v{V+i}, v{MU}')
            k(f'v_fmac_f32 v{VAR}, v{D0 + (i&1)}, v{D0 + (i&1)}')
    guarded(acc_var)
    quad_sum(k, VAR, T)
    k(f'ds_write_b32 v{LX}, v{VAR} offset:{ldsx + 64}')
    xwave(VAR, ldsx + 64)
    rbf2(k, MU, VAR)
    k(f'v_add_f32 v{VAR}, 0x3727c5ac, v{VAR}')
    rbf(k, VAR)
    k(f'v_sqrt_f32 v{VAR}, v{VAR}')
    rbf(k, VAR)
    k(f'v_rcp_f32 v{D0}, v{VAR}')
    k(f'v_mov_b32 v18, v{MU}')
    OUT = P + 16
    for i in range(0, 12, 2):
        k(f'v_pk_add_f32 {v(V+i,2)}, {v(V+i,2)}, {v(18,2)} op_sel_hi:[1,0] neg_lo:[0,1] neg_hi:[0,1]')
        rbf2(k, V + i, V + i + 1)
        k(f'v_pk_mul_f32 {v(V+i,2)}, {v(V+i,2)}, {v(D0,2)} op_sel_hi:[1,0]')
        rbf2(k, V + i, V + i + 1)
        k(f'v_pk_mul_f32 {v(V+i,2)}, {v(V+i,2)}, {v(SC+i,2)}')
        rbf2(k, V + i, V + i + 1)
        k(f'v_pk_add_f32 {v(V+i,2)}, {v(V+i,2)}, {v(SH+i,2)}')
        k(f'v_cvt_pk_bf16_f32 v{OUT+i//2}, v{V+i}, v{V+i+1}')
    k(f's_lshr_b32 {s(sT0)}, {s(sq)}, 2')
    k(f's_mul_i32 {s(sT0)}, {s(sT0)}, 20480')
    k(f's_and_b32 {s(sT1)}, {s(sq)}, 3')
    k(f's_lshl_b32 {s(sT1)}, {s(sT1)}, 6')
    k(f's_add_u32 {s(sT0)}, {s(sT0)}, {s(sT1)}')
    k(f's_add_u32 {s(sT0)}, {s(sT0)}, {H2}')
    def st_h2(p):
        k(f'buffer_store_dwordx2 {v(OUT+2*p,2)}, v{TO}, {s(S_WS,4)}, {s(sT0)} offen sc1')
        k(f's_add_u32 {s(sT0)}, {s(sT0)}, 8192')
    guarded(st_h2)

sBUD = 53
def emit_wait(k, srd, soff, n, stride, target, t0, t1, lane=0, sleep=2, wg=False):
    top, done = k.newlabel('wt'), k.newlabel('wd')
    if wg:
        k(f's_cmp_lg_u32 {s(sW)}, 0')
        k(f's_cbranch_scc1 {done}')
    k(f'v_min_u32 v{t0}, {n-1}, v{lane}')
    k(f'v_mul_u32_u24 v{t0}, {stride}, v{t0}')
    k.label(top)
    k(f'buffer_load_dword v{t1}, v{t0}, {s(srd,4)}, {s(soff)} offen sc1')
    k('s_waitcnt vmcnt(0)')
    k(f'v_cmp_gt_u32 vcc, {target}, v{t1}')
    k(f's_cbranch_vccz {done}')
    k(f's_sleep {sleep}')
    k(f's_sub_u32 {s(sBUD)}, {s(sBUD)}, 1')
    k(f's_cbranch_scc0 {top}')
    k(f's_mov_b32 {s(sBUD)}, 0')
    k.label(done)
    if wg:
        k('s_barrier')

def emit_signal(k, srd, soff, atomic, t0, t1, vm=0):
    skip = k.newlabel('sg')
    k(f's_waitcnt vmcnt({vm}) lgkmcnt(0)')
    k('s_barrier')
    k(f's_cmp_lg_u32 {s(sW)}, 0')
    k(f's_cbranch_scc1 {skip}')
    k(f'v_mov_b32 v{t0}, 0')
    k(f'v_mov_b32 v{t1}, 1')
    k('s_mov_b64 exec, 1')
    if atomic:
        k(f'buffer_atomic_add v{t1}, v{t0}, {s(srd,4)}, {s(soff)} offen')
    else:
        k(f'buffer_store_dword v{t1}, v{t0}, {s(srd,4)}, {s(soff)} offen sc1')
    k('s_mov_b64 exec, -1')
    k.label(skip)

def emit_signal_last(k, srd, soff, total, goff, t0, t1):
    skip = k.newlabel('sg')
    k('s_waitcnt vmcnt(0) lgkmcnt(0)')
    k('s_barrier')
    k(f's_cmp_lg_u32 {s(sW)}, 0')
    k(f's_cbranch_scc1 {skip}')
    k(f'v_mov_b32 v{t0}, 0')
    k(f'v_mov_b32 v{t1}, 1')
    k('s_mov_b64 exec, 1')
    k(f'buffer_atomic_add v{t1}, v{t0}, {s(srd,4)}, {s(soff)} offen sc0')
    k('s_waitcnt vmcnt(0)')
    k(f'v_readfirstlane_b32 {s(sT0)}, v{t1}')
    k('s_mov_b64 exec, -1')
    k(f's_cmp_lg_u32 {s(sT0)}, {total - 1}')
    k(f's_cbranch_scc1 {skip}')
    k(f'v_mov_b32 v{t0}, {goff}')
    k(f'v_mov_b32 v{t1}, 1')
    k('s_mov_b64 exec, 1')
    k(f'buffer_store_dword v{t1}, v{t0}, {s(srd,4)}, 0 offen sc1')
    k('s_mov_b64 exec, -1')
    k.label(skip)
```

```python
import sys
from asmlib import *
from layout import *
import rec, tok
from tok import *
NAME = 'adaLN_cond__memory_aug_recurrent_mem_tr__dense_activation_silu__prompt'
def desc(name, vgpr, acc):
    return f'''.p2align 6
.amdhsa_kernel {name}
  .amdhsa_next_free_vgpr {vgpr}
  .amdhsa_next_free_sgpr 102
  .amdhsa_accum_offset {acc}
  .amdhsa_group_segment_fixed_size 0
  .amdhsa_kernarg_size 120
  .amdhsa_user_sgpr_count 2
  .amdhsa_user_sgpr_kernarg_segment_ptr 1
  .amdhsa_system_sgpr_workgroup_id_x 1
.end_amdhsa_kernel
'''
XN = 2048 * 640 * 2
S_DBG = rec.S_DBG
sX, sH = rec.sX, rec.sH
sI, sR, sP0, sP1, sP2, sF, sG, sTASK = 70, 71, 72, 73, 74, 75, 76, 77
sJ, sPK, sPO, sPF = 82, 83, 84, 85

def set_srd(k, pairs):
    for sr, ka, nb in pairs:
        load_srd(k, sr, ka)
    k('s_waitcnt lgkmcnt(0)')
    for sr, ka, nb in pairs:
        fin_srd(k, sr, nb)

def div6(k, q, r_, x):
    k(f's_mul_i32 {s(q)}, {s(x)}, 171')
    k(f's_lshr_b32 {s(q)}, {s(q)}, 10')
    k(f's_mul_i32 {s(r_)}, {s(q)}, 6')
    k(f's_sub_u32 {s(r_)}, {s(x)}, {s(r_)}')

DIAG = False
sWT = 78
def wstamp(k, tag):
    if not DIAG:
        return
    skip = k.newlabel('ws')
    k(f's_cmp_lg_u32 {s(sW)}, 0'); k(f's_cbranch_scc1 {skip}')
    k('s_memrealtime s[80:81]')
    k('s_waitcnt lgkmcnt(0)')
    k('v_mov_b32 v250, s80'); k(f'v_mov_b32 v251, {tag}'); k('v_mov_b32 v252, 0')
    k('s_mov_b64 exec, 1')
    k(f'buffer_store_dwordx2 v[250:251], v252, {s(S_WS,4)}, {s(sWT)} offen')
    k('s_mov_b64 exec, -1')
    k(f's_add_u32 {s(sWT)}, {s(sWT)}, 8')
    k.label(skip)

def emit_worker(k, end):
    k(f's_mov_b32 {s(sBUD)}, 0x80000')
    k(f's_sub_u32 {s(sI)}, {s(sX)}, 2')
    k(f's_lshl_b32 {s(sI)}, {s(sI)}, 5')
    k(f's_add_u32 {s(sI)}, {s(sI)}, {s(sH)}')
    k(f's_lshl_b32 {s(sWT)}, {s(sI)}, 10'); k(f's_add_u32 {s(sWT)}, {s(sWT)}, {TS + 0x200000}')
    wstamp(k, 1)
    k(f's_mul_i32 {s(sR)}, {s(sH)}, 6')
    k(f's_add_u32 {s(sR)}, {s(sR)}, {s(sX)}')
    k(f's_sub_u32 {s(sR)}, {s(sR)}, 2')
    set_srd(k, [(S_B0, A_WMOD, 640 * 3840 * 2), (S_B1, A_C, 1280), (S_X, A_X, XN), (S_OUT, A_OUT, XN)])
    def tid():
        k(f's_lshl_b32 {s(sT0)}, {s(sW)}, 6'); k(f'v_add_u32 v0, {s(sT0)}, v0')
    def wait1():
        k(f's_mov_b32 {s(sF)}, 96')
        emit_wait(k, S_DBG, sF, 1, 0, 1, 8, 9, sleep=4, wg=True)
    modsub_ret = 82
    doln, fill, nz, p1d = [k.newlabel(x) for x in ('doln', 'fill', 'nz', 'p1d')]
    k(f's_cmp_ge_u32 {s(sR)}, 64'); k(f's_cbranch_scc1 {doln}')
    tid()
    k(f's_cmp_ge_u32 {s(sR)}, 40'); k(f's_cbranch_scc1 {fill}')
    k(f's_cmp_ge_u32 {s(sR)}, 8'); k(f's_cbranch_scc1 {nz}')
    k('v_mov_b64 v[4:5], 0'); k('v_mov_b64 v[6:7], 0')
    k('v_lshlrev_b32 v1, 4, v0')
    k(f's_lshl_b32 {s(sT0)}, {s(sR)}, 12')
    k(f's_add_u32 {s(sT0)}, {s(sT0)}, {FL}')
    k(f'buffer_store_dwordx4 v[4:7], v1, {s(S_WS,4)}, {s(sT0)} offen sc1')
    k.label(nz)
    emit_mod(k, sR, ' sc1')
    k(f's_mov_b32 {s(sF)}, 240')
    emit_signal_last(k, S_DBG, sF, 40, 96, 4, 5)
    k.label(fill)
    wstamp(k, 2)
    k('v_mov_b64 v[4:5], -1'); k('v_mov_b64 v[6:7], -1')
    k('v_lshlrev_b32 v1, 4, v0')
    k(f's_mul_i32 {s(sT0)}, {s(sR)}, 18432')
    k(f's_add_u32 {s(sT0)}, {s(sT0)}, {PA}')
    for i in range(5):
        k(f'buffer_store_dwordx4 v[4:7], v1, {s(S_WS,4)}, {s(sT0)} offen sc1')
        k(f's_add_u32 {s(sT0)}, {s(sT0)}, {4096 if i < 3 else 2048}')
    k('v_and_b32 v0, 63, v0')
    wait1()
    k(f's_mov_b32 {s(sF)}, {FL_INIT}')
    emit_signal(k, S_WS, sF, True, 4, 5)
    k(f's_branch {p1d}')
    k.label(doln)
    k(f's_sub_u32 {s(sP1)}, {s(sR)}, 64')
    k(f's_lshl_b32 {s(sP0)}, {s(sP1)}, 2'); k(f's_add_u32 {s(sP0)}, {s(sP0)}, {s(sW)}'); k(f's_lshl_b32 {s(sP0)}, {s(sP0)}, 2')
    def wait1s():
        wstamp(k, 2); wait1(); wstamp(k, 5)
    emit_ln1(k, sP0, wait1s)
    k(f's_lshr_b32 {s(sF)}, {s(sP1)}, 3'); k(f's_lshl_b32 {s(sF)}, {s(sF)}, 7'); k(f's_add_u32 {s(sF)}, {s(sF)}, {FL_H}')
    emit_signal(k, S_WS, sF, True, 4, 5)
    k.label(p1d)
    k(f's_mov_b32 {s(sJ)}, {s(sR)}')
    wstamp(k, 3)
    k(f's_mov_b32 {s(sR)}, 0')
    rtop, doq, dokv, rnext, r3 = [k.newlabel(x) for x in ('rtop', 'doq', 'dokv', 'rnext', 'r3')]
    def late_signal(n):
        e3 = k.newlabel('e')
        k(f's_cmp_eq_u32 {s(sR)}, 0'); k(f's_cbranch_scc1 {e3}')
        emit_signal(k, S_WS, sPF, False, 14, 15, vm=n)
        wstamp(k, 4)
        k.label(e3)
    k.label(rtop)
    div6(k, sP1, sP0, sI)
    k(f's_cmp_eq_u32 {s(sR)}, 0'); k(f's_cbranch_scc1 {dokv}')
    k(f's_cmp_eq_u32 {s(sR)}, 3'); k(f's_cbranch_scc1 {r3}')
    k(f's_add_u32 {s(sP0)}, {s(sP0)}, 6')
    k(f's_cmp_eq_u32 {s(sR)}, 2'); k(f's_cbranch_scc1 {dokv}')
    k(f's_bitcmp0_b32 {s(sP1)}, 0')
    k(f's_cselect_b32 {s(sT0)}, 6, 0')
    k(f's_sub_u32 {s(sP0)}, {s(sP0)}, {s(sT0)}')
    k(f's_lshr_b32 {s(sP1)}, {s(sP1)}, 1')
    k(f's_branch {doq}')
    k.label(r3)
    k(f's_add_u32 {s(sP0)}, {s(sP0)}, 12')
    k(f's_cmp_lt_u32 {s(sP0)}, 16'); k(f's_cbranch_scc1 {dokv}')
    k(f's_and_b32 {s(sT0)}, {s(sP1)}, 1')
    k(f's_lshl_b32 {s(sT0)}, {s(sT0)}, 1')
    k(f's_add_u32 {s(sP0)}, {s(sP0)}, {s(sT0)}')
    k(f's_sub_u32 {s(sP0)}, {s(sP0)}, 4')
    k(f's_lshr_b32 {s(sP1)}, {s(sP1)}, 1')
    def waitH():
        sk = k.newlabel('hs')
        k(f's_cmp_lg_u32 {s(sR)}, 0'); k(f's_cbranch_scc1 {sk}')
        k(f's_mov_b32 {s(sF)}, {FL_H}')
        emit_wait(k, S_WS, sF, 16, 128, 8, 14, 15, sleep=6, wg=True)
        k.label(sk)
    def pend(base, kind):
        k(f's_lshl_b32 {s(sPF)}, {s(sP1)}, 7'); k(f's_lshl_b32 {s(sT0)}, {s(sP0)}, 2')
        k(f's_add_u32 {s(sPF)}, {s(sPF)}, {s(sT0)}'); k(f's_add_u32 {s(sPF)}, {s(sPF)}, {base}')
    k.label(doq)
    set_srd(k, [(S_B0, A_WQ, 5242880)])
    emit_qkv_main(k, True, sP0, sP1, sPO, 'qq', None, late_signal)
    emit_qkv_epi(k, True, sPO)
    pend(FL_Q, 2)
    k(f's_branch {rnext}')
    k.label(dokv)
    set_srd(k, [(S_B0, A_WK, 5242880), (S_B1, A_WV, 5242880)])
    emit_qkv_main(k, False, sP0, sP1, sPO, 'kv', waitH, late_signal)
    emit_qkv_epi(k, False, sPO)
    pend(FL_KV, 1)
    k.label(rnext)
    k(f's_add_u32 {s(sR)}, {s(sR)}, 1')
    k(f's_cmp_lt_u32 {s(sR)}, 4'); k(f's_cbranch_scc1 {rtop}')
    late_signal(0)
    nom = k.newlabel('nom')
    k(f's_cmp_ge_u32 {s(sJ)}, 80'); k(f's_cbranch_scc1 {nom}')
    set_srd(k, [(S_B0, A_WMOD, 640 * 3840 * 2), (S_B1, A_C, 1280)])
    k(f's_add_u32 {s(sJ)}, {s(sJ)}, 40')
    tid()
    emit_mod(k, sJ, ' sc1')
    k('v_and_b32 v0, 63, v0')
    k(f's_mov_b32 {s(sF)}, {FL_INIT + 128}')
    emit_signal(k, S_WS, sF, True, 4, 5)
    k.label(nom)
    att, rff1, rff2, rln = k.newlabel('att'), k.newlabel('rff1'), k.newlabel('rff2'), k.newlabel('rln')
    k(f's_and_b32 {s(sG)}, {s(sX)}, 1')
    def gflag(base):
        k(f's_lshl_b32 {s(sF)}, {s(sG)}, 7'); k(f's_add_u32 {s(sF)}, {s(sF)}, {base}')
    def gnext(top, inc=2):
        k(f's_add_u32 {s(sG)}, {s(sG)}, {inc}')
        k(f's_cmp_lt_u32 {s(sG)}, 32'); k(f's_cbranch_scc1 {top}')
        k(f's_branch {end}')
    def b_ready(wait_mod):
        if wait_mod:
            k(f's_mov_b32 {s(sF)}, {FL_INIT + 128}')
            emit_wait(k, S_WS, sF, 1, 0, 80, 14, 15, sleep=8, wg=True)
        k('s_waitcnt vmcnt(0)'); k('s_barrier')
    k(f's_cmp_ge_u32 {s(sX)}, 6'); k(f's_cbranch_scc1 {rff2}')
    k(f's_cmp_ge_u32 {s(sX)}, 4'); k(f's_cbranch_scc1 {rff1}')
    set_srd(k, [(S_B0, A_WO, 5242880)])
    k(f's_lshr_b32 {s(sP1)}, {s(sH)}, 2'); k(f's_and_b32 {s(sP0)}, {s(sH)}, 3')
    k(f's_mul_i32 {s(sB)}, {s(sP1)}, {16*32*1280}'); k(f's_mul_i32 {s(sT1)}, {s(sP0)}, 320'); k(f's_add_u32 {s(sB)}, {s(sB)}, {s(sT1)}')
    emit_burst_b(k, 10, 16, 1280, True, S_B0, sB, 0)
    b_ready(False)
    top = k.newlabel('wotop'); k.label(top)
    def waitA():
        k(f's_lshl_b32 {s(sF)}, {s(sG)}, 6'); k(f's_lshl_b32 {s(sT0)}, {s(sP1)}, 2')
        k(f's_add_u32 {s(sF)}, {s(sF)}, {s(sT0)}'); k(f's_add_u32 {s(sF)}, {s(sF)}, {FL_ATT}')
        k(f's_lshr_b32 {s(sT0)}, {s(sW)}, 1'); k(f's_lshl_b32 {s(sT0)}, {s(sT0)}, 5'); k(f's_add_u32 {s(sF)}, {s(sF)}, {s(sT0)}')
        emit_wait(k, S_WS, sF, 1, 0, 1, 14, 15, sleep=4)
        wstamp(k, 10)
    emit_wo_task(k, sG, sP0, sP1, 10, 8, waitA)
    gflag(FL_WO); emit_signal(k, S_WS, sF, True, 4, 5)
    wstamp(k, 11)
    gnext(top)
    k.label(rff1)
    g5 = k.newlabel('g5')
    k(f's_cmp_eq_u32 {s(sX)}, 5'); k(f's_cbranch_scc1 {g5}')
    k(f's_cmp_ge_u32 {s(sH)}, 27'); k(f's_cbranch_scc1 {end}')
    set_srd(k, [(S_B0, A_W1, 640 * 1728 * 2)])
    k(f's_lshl_b32 {s(sB)}, {s(sH)}, 7')
    emit_burst_b(k, 4, 20, 3456, False, S_B0, sB, 0)
    b_ready(False)
    top = k.newlabel('f1top'); k.label(top)
    def waitL():
        gflag(FL_LN); emit_wait(k, S_WS, sF, 1, 0, 16, 14, 15, sleep=4, wg=True); wstamp(k, 14)
    emit_ff1_task(k, sG, sH, 4, waitL, lds0=0)
    gflag(FL_FF); emit_signal(k, S_WS, sF, True, 4, 5)
    wstamp(k, 15)
    gnext(top, 1)
    k.label(g5)
    k(f's_sub_u32 {s(sTASK)}, {s(sH)}, 16')
    k(f's_cmp_ge_u32 {s(sH)}, 16'); k(f's_cbranch_scc1 {att}')
    k(f's_mov_b32 {s(sTASK)}, {s(sH)}')
    k.label(rln)
    b_ready(True)
    k(f's_and_b32 {s(sG)}, {s(sTASK)}, 1')
    k(f's_lshr_b32 {s(sTASK)}, {s(sTASK)}, 1')
    k(f's_lshl_b32 {s(sP0)}, {s(sG)}, 4'); k(f's_add_u32 {s(sP0)}, {s(sP0)}, {s(sTASK)}')
    top = k.newlabel('lntop')
    def waitW():
        gflag(FL_WO); emit_wait(k, S_WS, sF, 1, 0, 32, 8, 9, sleep=4, wg=True); wstamp(k, 12)
    emit_ln2_quad(k, sP0, 8, waitW, 0, top)
    gflag(FL_LN); emit_signal(k, S_WS, sF, True, 8, 9)
    wstamp(k, 13)
    k(f's_add_u32 {s(sP0)}, {s(sP0)}, 32')
    gnext(top)
    k.label(rff2)
    k(f's_lshl_b32 {s(sT0)}, {s(sG)}, 2'); k(f's_add_u32 {s(sTASK)}, {s(sT0)}, {s(sH)}'); k(f's_sub_u32 {s(sTASK)}, {s(sTASK)}, 12')
    k(f's_cmp_ge_u32 {s(sH)}, 28'); k(f's_cbranch_scc1 {att}')
    k(f's_lshl_b32 {s(sT0)}, {s(sG)}, 3'); k(f's_add_u32 {s(sTASK)}, {s(sT0)}, {s(sH)}'); k(f's_sub_u32 {s(sTASK)}, {s(sTASK)}, 4')
    k(f's_cmp_ge_u32 {s(sH)}, 20'); k(f's_cbranch_scc1 {rln}')
    set_srd(k, [(S_B0, A_W2, 640 * 1728 * 2)])
    k(f's_lshl_b32 {s(sB)}, {s(sH)}, 6')
    emit_burst_b(k, 2, 54, 1280, True, S_B0, sB, 0)
    b_ready(True)
    top = k.newlabel('f2top'); k.label(top)
    def waitF():
        gflag(FL_FF); emit_wait(k, S_WS, sF, 1, 0, 27, 14, 15, sleep=4, wg=True); wstamp(k, 16)
    emit_ff2_task(k, sG, sH, 2, waitF)
    wstamp(k, 17)
    gnext(top)
    k.label(att)
    emit_att_setup(k)
    k(f's_lshr_b32 {s(sG)}, {s(sTASK)}, 3')
    k(f's_and_b32 {s(sTASK)}, {s(sTASK)}, 7')
    k(f's_lshl_b32 {s(sP1)}, {s(sTASK)}, 2'); k(f's_add_u32 {s(sP1)}, {s(sP1)}, {s(sW)}')
    k(f's_lshl_b32 {s(sF)}, {s(sP1)}, 7'); k(f's_add_u32 {s(sF)}, {s(sF)}, {FL_KV}')
    emit_wait(k, S_WS, sF, 16, 4, 1, 4, 5)
    k(f's_lshr_b32 {s(sF)}, {s(sP1)}, 1'); k(f's_lshl_b32 {s(sF)}, {s(sF)}, 7'); k(f's_add_u32 {s(sF)}, {s(sF)}, {FL_Q}')
    emit_wait(k, S_WS, sF, 16, 4, 1, 4, 5)
    atop = k.newlabel('atop')
    k.label(atop)
    def wait_kvm():
        top, done = k.newlabel('km'), k.newlabel('kmd')
        X = 136
        k.label(top)
        for i in range(4):
            k(f'buffer_load_dwordx4 {v(X+4*i,4)}, v1, {s(S_WS,4)}, {s(sT3)} offen offset:{i*1024} sc1')
        k('s_waitcnt vmcnt(0)')
        for op in rec.max_ops(range(X, X + 16), 4):
            k(op)
        k('v_cmp_eq_u32 vcc, -1, v4')
        k(f's_cbranch_vccz {done}')
        k('s_sleep 4')
        k(f's_sub_u32 {s(sBUD)}, {s(sBUD)}, 1')
        k(f's_cbranch_scc0 {top}')
        k(f's_mov_b32 {s(sBUD)}, 0')
        k.label(done)
        wstamp(k, 20)
        k(f's_lshl_b32 {s(sT0)}, {s(sW)}, 12')
        k(f'v_add_u32 v4, {s(sT0)}, v1')
        for i in range(4):
            k(f'ds_write_b128 v4, {v(X+4*i,4)} offset:{i*1024}')
        k('s_waitcnt lgkmcnt(0)')
    emit_att_task(k, sG, sP1, ' sc1', ' sc1', wait_kvm)
    k(f's_lshl_b32 {s(sF)}, {s(sG)}, 5'); k(f's_lshl_b32 {s(sT0)}, {s(sTASK)}, 2')
    k(f's_add_u32 {s(sF)}, {s(sF)}, {s(sT0)}'); k(f's_add_u32 {s(sF)}, {s(sF)}, {FL_ATT}')
    emit_signal(k, S_WS, sF, False, 4, 5)
    wstamp(k, 21)
    k(f's_add_u32 {s(sG)}, {s(sG)}, 3')
    k(f's_cmp_lt_u32 {s(sG)}, 64'); k(f's_cbranch_scc1 {atop}')

def build(as_list=True, diag=False):
    global DIAG
    DIAG = diag
    k = Asm()
    n = 'main_kernel' if as_list else NAME + '_kernel'
    k.raw(f'.globl {n}\n.p2align 8\n.type {n},@function'); k.label(n)
    rec.emit_role(k, 'main_end0')
    k(f's_cmp_ge_u32 {s(sX)}, 8'); k('s_cbranch_scc1 main_end0')
    k(f's_cmp_ge_u32 {s(sX)}, 2'); k('s_cbranch_scc1 main_worker')
    rec.emit_team(k, diag, 'main_end0')
    k.label('main_end0'); k('s_endpgm')
    k.label('main_worker')
    emit_worker(k, 'main_end')
    k.label('main_end'); k('s_endpgm')
    if as_list:
        head = f'; @launch kernel={n} grid=(256,1,1) block=(256,1,1) lds=163840\n'
    else:
        head = '; @launch grid=(256,1,1) block=(256,1,1) lds=163840\n'
    head += '.amdgcn_target "amdgcn-amd-amdhsa--gfx950"\n.text\n'
    return head + k.text() + '.section .rodata,"a"\n' + desc(n, 512, 256)
if __name__ == '__main__':
    rec.CFG.update(delay_a=32, delay_as=48, delay_b=40, extra_a=1, extra_b=1, fused=True)
    for a_ in sys.argv[1:]:
        if '=' in a_:
            kk, vv = a_.split('=', 1); rec.CFG[kk] = eval(vv)
    open('v2.s', 'w').write(build(True, 'diag' in sys.argv))
    hdr = open('cdna_kernels/' + NAME + '.s.ref').read().split('\n')[:16]
    open('v2_final.s', 'w').write('\n'.join(hdr) + '\n' + build(False, False))
```

```python
import re

REG_RE = re.compile(r'\b([vas])\[(\d+):(\d+)\]|\b([vas])(\d+)\b|\b(vcc|exec|m0|scc)(?:_lo|_hi)?\b')
TRANS = ('v_exp_', 'v_log_', 'v_rcp_', 'v_rsq_', 'v_sqrt_', 'v_sin_', 'v_cos_')

def regs_of(tok):
    out = []
    for m in REG_RE.finditer(tok):
        if m.group(1):
            out += [(m.group(1), i) for i in range(int(m.group(2)), int(m.group(3)) + 1)]
        elif m.group(4):
            out.append((m.group(4), int(m.group(5))))
        else:
            out.append((m.group(6), 0))
    return out

def split_ops(s):
    ops, depth, cur = [], 0, ''
    for ch in s:
        if ch in '[(':
            depth += 1
        if ch in '])':
            depth -= 1
        if ch == ',' and depth == 0:
            ops.append(cur.strip()); cur = ''
        else:
            cur += ch
    if cur.strip():
        ops.append(cur.strip())
    return ops

class Ins:
    __slots__ = ('text', 'op', 'kind', 'dst', 'src', 'a', 'b', 'c', 'passes', 'ws', 'target', 'wide_store', 'dpp', 'lds_dma')
    def __init__(self, text):
        self.text = text
        t = text.split(';')[0].strip()
        parts = t.split(None, 1)
        op = parts[0]
        rest = parts[1] if len(parts) > 1 else ''
        self.op = op
        ops = split_ops(rest)
        self.dst = []; self.src = []; self.a = self.b = self.c = []
        self.passes = 0; self.ws = 1; self.target = None; self.wide_store = []
        self.dpp = False; self.lds_dma = False
        R = [regs_of(o) for o in ops]
        allr = [r for x in R for r in x]
        if op.startswith('v_mfma') or op.startswith('v_smfmac'):
            self.kind = 'mfma'
            self.passes = 8 if '32x32' in op else 4
            self.dst = R[0]; self.a = R[1]; self.b = R[2]
            if op.startswith('v_smfmac'):
                self.c = R[0]; self.b = R[2] + R[3]
            else:
                self.c = R[3] if len(R) > 3 else []
            self.src = self.a + self.b + self.c
        elif op.startswith('v_'):
            self.kind = 'trans' if op.startswith(TRANS) else 'valu'
            self.dpp = ('row_' in rest or 'quad_perm' in rest or 'wave_' in rest or '_dpp' in op)
            if op.startswith('v_permlane') and 'swap' in op:
                self.kind = 'permlane'; self.dst = R[0] + R[1]; self.src = R[0] + R[1]
            elif op.startswith('v_cmpx'):
                self.dst = R[0] + [('exec', 0)]; self.src = allr[len(R[0]):]
            elif op.startswith(('v_add_co', 'v_sub_co', 'v_addc_co', 'v_subb_co', 'v_subrev_co', 'v_div_scale', 'v_mad_u64')):
                self.dst = R[0] + R[1]; self.src = [r for x in R[2:] for r in x]
            elif op.startswith(('v_readfirstlane', 'v_readlane')):
                self.kind = 'readlane'; self.dst = R[0]; self.src = [r for x in R[1:] for r in x]
            elif op == 'v_nop':
                pass
            else:
                self.dst = R[0]; self.src = [r for x in R[1:] for r in x]
                if op.startswith(('v_fmac', 'v_pk_fmac', 'v_dot2c', 'v_writelane')) or self.dpp:
                    self.src = self.src + R[0]
        elif op.startswith('ds_'):
            self.kind = 'ds'
            if op.startswith(('ds_read', 'ds_bpermute', 'ds_permute', 'ds_swizzle')) or '_rtn' in op:
                self.dst = R[0]; self.src = [r for x in R[1:] for r in x]
            else:
                self.src = allr
        elif op.startswith(('buffer_', 'global_', 'flat_')):
            self.kind = 'vmem'
            is_lds = bool(re.search(r'\blds\b', rest)) or '_lds_' in op
            if 'load' in op and not is_lds:
                self.dst = R[0]; self.src = [r for x in R[1:] for r in x]
            else:
                self.src = allr
                if is_lds:
                    self.lds_dma = True
                if 'atomic' in op and re.search(r'\bsc0\b', rest):
                    self.dst = R[0]
                if 'store' in op and ('x4' in op or 'x3' in op):
                    self.wide_store = R[0] if op.startswith('buffer_') else R[1]
        elif op.startswith('s_'):
            self.kind = 'salu'
            if op == 's_nop':
                self.ws = int(rest, 0) + 1
            elif op.startswith(('s_branch', 's_cbranch')):
                self.target = rest.strip()
            elif op.startswith(('s_cmp', 's_waitcnt', 's_barrier', 's_endpgm', 's_sleep', 's_setprio', 's_bitcmp')):
                self.src = allr
            else:
                self.dst = R[0] if R else []; self.src = [r for x in R[1:] for r in x]
                if 'saveexec' in op:
                    self.dst = self.dst + [('exec', 0)]
        else:
            raise ValueError('unknown instruction: ' + text)

VALU_KINDS = ('valu', 'trans', 'permlane', 'readlane')

def need(state, ins):
    req = 0
    def chk(key, n):
        nonlocal req
        if key in state:
            req = max(req, n - state[key])
    k = ins.kind
    vec = lambda rs: [r for r in rs if r[0] in 'va']
    sca = lambda rs: [r for r in rs if r[0] in ('s', 'vcc')]
    if k == 'mfma':
        for r in vec(ins.src):
            chk(('valu_w', r), 2)
        for r in vec(ins.a + ins.b):
            chk(('mfma4_w', r), 8); chk(('mfma8_w', r), 12)
        tup = (ins.c[0], len(ins.c), ins.op) if ins.c else None
        for r in vec(ins.c):
            for p, n in ((4, 6), (8, 10)):
                key = ('mfma%d_w' % p, r)
                if key in state and state.get(('mfma_tup', r)) is not None and state[('mfma_tup', r)] != tup:
                    chk(key, n)
        tupd = (ins.dst[0], len(ins.dst), ins.op)
        for r in vec(ins.dst):
            for p, n in ((4, 6), (8, 10)):
                key = ('mfma%d_w' % p, r)
                if key in state and state.get(('mfma_tup', r)) != tupd:
                    chk(key, n)
        chk(('valu_w', ('exec', 0)), 4)
    elif k in VALU_KINDS:
        for r in vec(ins.src + ins.dst):
            chk(('mfma4_w', r), 8); chk(('mfma8_w', r), 12)
        for r in vec(ins.dst):
            chk(('mfma4_c', r), 3); chk(('mfma8_c', r), 7)
            chk(('store_d', r), 2)
        if k != 'trans':
            for r in vec(ins.src):
                chk(('trans_w', r), 1)
        if k == 'permlane' or ins.dpp:
            for r in vec(ins.src):
                chk(('valu_w', r), 2)
            chk(('valu_w', ('exec', 0)), 5 if ins.dpp else 4)
        if k == 'readlane':
            for r in vec(ins.src):
                chk(('valu_w', r), 1)
            for r in sca(ins.src):
                chk(('valu_w', r), 4)
            chk(('valu_w', ('exec', 0)), 4)
        for r in sca(ins.src):
            chk(('valu_w', r), 2)
    elif k in ('ds', 'vmem'):
        for r in vec(ins.src + ins.dst):
            chk(('mfma4_w', r), 8); chk(('mfma8_w', r), 12)
        for r in vec(ins.dst):
            chk(('store_d', r), 1)
        if k == 'vmem':
            for r in sca(ins.src):
                chk(('valu_w', r), 5)
            if ins.lds_dma:
                chk(('salu_w', ('m0', 0)), 1)
    elif k == 'salu':
        for r in sca(ins.src):
            chk(('valu_w', r), 1)
        if ins.op.startswith('s_cbranch_vcc'):
            chk(('valu_w', ('vcc', 0)), 1)
    return max(req, 0)

def advance(state, n):
    dead = []
    for key in state:
        if key[0] in ('mfma_tup', 'pipe_len'):
            continue
        state[key] += n
        if state[key] > 20:
            dead.append(key)
    for key in dead:
        del state[key]
        if key[0] in ('mfma4_w', 'mfma8_w'):
            state.pop(('mfma_tup', key[1]), None)

def record(state, ins):
    k = ins.kind
    if k == 'mfma':
        tup = (ins.dst[0], len(ins.dst), ins.op)
        state[('pipe', 0)] = 0
        state[('pipe_len', 0)] = (2 if '16x16x16' in ins.op else ins.passes,)
        for r in ins.dst:
            state.pop(('mfma4_w', r), None); state.pop(('mfma8_w', r), None)
            state[('mfma%d_w' % ins.passes, r)] = 0
            state[('mfma_tup', r)] = tup
        for r in ins.c + (ins.b[-1:] if ins.op.startswith('v_smfmac') else []):
            state[('mfma%d_c' % ins.passes, r)] = 0
    elif k in VALU_KINDS:
        for r in ins.dst:
            state[('valu_w', r)] = 0
            if k == 'trans':
                state[('trans_w', r)] = 0
            else:
                state.pop(('trans_w', r), None)
    elif k == 'salu':
        for r in ins.dst:
            state[('salu_w', r)] = 0
            state.pop(('valu_w', r), None)
    elif k == 'vmem':
        for r in ins.wide_store:
            state[('store_d', r)] = 0

def merge(a, b):
    out = {k_: v_ for k_, v_ in a.items() if k_[0] not in ('pipe', 'pipe_len')}
    for key, v in b.items():
        if key[0] in ('pipe', 'pipe_len'):
            continue
        if key[0] == 'mfma_tup':
            if key in out and out[key] != v:
                out[key] = 'mixed'
            else:
                out[key] = v
        else:
            out[key] = min(out.get(key, 99), v)
    return out

def hazard_pass(items):
    parsed = [(k, Ins(t) if k == 'i' else t) for k, t in items]
    snaps = {}
    for _ in range(4):
        out = []; state = {}; changed = False; filler = None
        for k, x in parsed:
            if k == 'l':
                if x in snaps:
                    state = merge(state, snaps[x])
                out.append(x + ':')
            elif k == 'f':
                filler = x
            elif k == 'c':
                advance(state, x)
            elif k == 'x':
                out.append(x)
            else:
                n = need(state, x)
                if filler and n >= 3:
                    for _i in range(n):
                        out.append('    ' + filler)
                    advance(state, n); n = 0
                while n > 0:
                    m = min(n, 16)
                    out.append('    s_nop %d' % (m - 1)); advance(state, m); n -= m
                if x.kind == 'mfma' and ('pipe', 0) in state:
                    gap = state[('pipe_len', 0)][0] - state[('pipe', 0)] - 1
                    if gap > 0:
                        advance(state, gap)
                out.append('    ' + x.text)
                advance(state, x.ws)
                record(state, x)
                if x.target is not None:
                    new = merge(snaps.get(x.target, {}), state)
                    if new != snaps.get(x.target):
                        snaps[x.target] = new; changed = True
                    if x.op == 's_branch':
                        state = {}
                if x.op == 's_endpgm':
                    state = {}
        if not changed:
            break
    return out

class Asm:
    def __init__(self):
        self.items = []
        self.uid = 0
    def __call__(self, text):
        for line in text.split('\n'):
            line = line.strip()
            if not line:
                continue
            if line.startswith(';'):
                self.items.append(('x', '    ' + line))
            else:
                self.items.append(('i', line))
    def label(self, name):
        self.items.append(('l', name))
    def filler(self, text):
        self.items.append(('f', text))
    def credit(self, n):
        self.items.append(('c', n))
    def raw(self, text):
        self.items.append(('x', text))
    def newlabel(self, base='L'):
        self.uid += 1
        return '%s_%d' % (base, self.uid)
    def text(self):
        return '\n'.join(hazard_pass(self.items)) + '\n'

def v(n, cnt=1):
    return 'v%d' % n if cnt == 1 else 'v[%d:%d]' % (n, n + cnt - 1)
def a(n, cnt=1):
    return 'a%d' % n if cnt == 1 else 'a[%d:%d]' % (n, n + cnt - 1)
def s(n, cnt=1):
    return 's%d' % n if cnt == 1 else 's[%d:%d]' % (n, n + cnt - 1)
```

```python
from asmlib import *
from layout import *
import tok

S_WS = 8
S_WQ, S_WK, S_WV, S_WO = 12, 16, 20, 24
S_M0 = 28
S_DBG = 32
sW, sH, sX, sFOR = 36, 37, 38, 39
sSTEP = 40
sPAW, sPAR = 41, 42
sMLR, sMRR = 43, 44
sMLW, sMRW, sMLZ, sMRZ = 45, 46, 47, 48
sKV, sOW, sPUBK, sGW = 49, 50, 51, 52
sPUBV, sPZ0, sPZ1, sPOL, sKNOWN, sKVF = 101, 4, 5, 6, 7, 3
sBUD = 53
sT0, sT1, sT2, sT3 = 54, 55, 56, 57
sC = 58
sMASK_LO8 = 60
sMASK_OW = 62
sMASK_LT32 = 64
sMASK_GE32 = 66
sCI = 68
sTS = 69
sTM = 70
sB0, sB1_, sB2_ = 90, 91, 92
sROWO, sROWR = 94, 95
sKVM0, sTCH = 93, 100
cMLR, cMRR, cMLW, cMRW = 96, 97, 98, 99

vL16, vL16X, vIDX, vPERM, vPAE, vPAS, vXW, vTR, vPUB, vLW0, vLW1, vLW2 = range(12)
ONES = 12
sLIM = 92
L_SEL, L_JUNK, L_TCH = 0, 13312, 1024
ACCQ, ACCK, ACCV, AW = 16, 20, 24, 28
SL = [44 + 8 * i for i in range(4)]
MISC = 76
VW0 = 80

L_M, L_QX, L_KX, L_R, L_OX, L_KT, L_VT = 2048, 2048, 4096, 8192, 9216, 16384, 24576

def opreg(i):
    return a(8 * i, 8) if i < 32 else v(VW0 + 8 * (i - 32), 8)
def opreg_pair(i, q):
    return a(8 * i + 2 * q, 2) if i < 32 else v(VW0 + 8 * (i - 32) + 2 * q, 2)

LDS_STAGES = [('v', c, 0) for c in range(5)] + [('o', 0, 0), ('o', 1, 0), ('o', 1, 2)]
G_STAGE = ('k', 9, 0)
ALL_STAGES = [(m, c, 0) for m in 'qkv' for c in range(10)] + [('o', u, p) for u in range(2) for p in range(3)]
REG_STAGES = [st for st in ALL_STAGES if st not in LDS_STAGES and st != G_STAGE]
ORDER = [G_STAGE] + REG_STAGES + LDS_STAGES
assert len(ORDER) == 36
PLACE = {}
_n = 0
for st in REG_STAGES:
    for t in range(2):
        PLACE[st + (t,)] = ('r', _n); _n += 1
assert _n == 54
for i, st in enumerate(LDS_STAGES):
    for t in range(2):
        PLACE[st + (t,)] = ('l', 32768 + 16384 * i + 8192 * t)
for t in range(2):
    PLACE[G_STAGE + (t,)] = ('g', 2048 * t)

CFG = dict(delay_a=56, delay_as=56, extra_a=1, gap_a=28, delay_b=40, extra_b=1, gap_b=32, rem_chk=20, delay_r=0, delay_k=24, lim=0x42200000, fill=True, pol=0, fused=False, stamps=['top','preB1','locdone','preB2','B4','presm','preB5','wodone','pub'])

def lds_w_addr(off):
    return (vLW0, vLW1, vLW2)[off >> 16], off & 0xffff

def srd_fin(k, sreg, nbytes):
    k(f's_and_b32 {s(sreg+1)}, {s(sreg+1)}, 0xffff')
    k(f's_mov_b32 {s(sreg+2)}, {nbytes}')
    k(f's_mov_b32 {s(sreg+3)}, 0x20000')

def emit_role(k, exit_label):
    k('s_cmp_ge_u32 s2, 256')
    k(f's_cbranch_scc1 {exit_label}')
    for sr, ka in ((S_WS, A_WS), (S_WQ, A_WQ), (S_WK, A_WK), (S_WV, A_WV), (S_WO, A_WO), (S_M0, A_MEM0), (S_DBG, A_DBG)):
        k(f's_load_dwordx2 {s(sr,2)}, s[0:1], {ka}')
    k(f'v_lshrrev_b32 v1, 6, v0')
    k(f'v_and_b32 v0, 63, v0')
    k(f'v_readfirstlane_b32 {s(sW)}, v1')
    k(f's_getreg_b32 {s(sT0)}, hwreg(HW_REG_XCC_ID, 0, 4)')
    k(f's_and_b32 {s(sT0)}, {s(sT0)}, 7')
    k('s_waitcnt lgkmcnt(0)')
    for sr, nb in ((S_WS, WS_SIZE), (S_WQ, 5242880), (S_WK, 5242880), (S_WV, 5242880), (S_WO, 5242880), (S_M0, 10240), (S_DBG, 256)):
        srd_fin(k, sr, nb)
    lw, lt, lg, lc = k.newlabel('role_wait'), k.newlabel('role_try'), k.newlabel('role_got'), k.newlabel('role_cal')
    k(f's_cmp_eq_u32 {s(sW)}, 1')
    k(f's_cbranch_scc1 {lc}')
    k(f's_cmp_lg_u32 {s(sW)}, 0')
    k(f's_cbranch_scc1 {lw}')
    k(f's_mov_b32 {s(sX)}, {s(sT0)}')
    k(f's_mov_b32 {s(sT1)}, 1')
    k('s_mov_b64 exec, 1')
    k.label(lt)
    k('v_mov_b32 v2, 1')
    k(f's_lshl_b32 {s(sT2)}, {s(sX)}, 4')
    k(f's_cmp_lt_u32 {s(sX)}, 2')
    k(f's_cselect_b32 {s(sT3)}, 0, 96')
    k(f's_add_u32 {s(sT2)}, {s(sT2)}, {s(sT3)}')
    k(f'v_mov_b32 v3, {s(sT2)}')
    k(f'buffer_atomic_add v2, v3, {s(S_DBG,4)}, 0 offen sc0')
    k('s_waitcnt vmcnt(0)')
    k(f'v_readfirstlane_b32 {s(sH)}, v2')
    k(f's_cmp_lt_u32 {s(sH)}, 32')
    k(f's_cbranch_scc1 {lg}')
    k(f's_add_u32 {s(sT1)}, {s(sT1)}, 1')
    k(f's_and_b32 {s(sX)}, {s(sT1)}, 7')
    k(f's_cmp_lt_u32 {s(sT1)}, 10')
    k(f's_cbranch_scc1 {lt}')
    k(f's_mov_b32 {s(sX)}, 8')
    k.label(lg)
    k(f's_lshl_b32 {s(sT2)}, {s(sX)}, 8')
    k(f's_or_b32 {s(sT2)}, {s(sT2)}, {s(sH)}')
    k(f'v_mov_b32 v2, {s(sT2)}')
    k('v_mov_b32 v3, 0')
    k('ds_write_b32 v3, v2')
    k('s_mov_b64 exec, -1')
    k('s_waitcnt lgkmcnt(0)')
    k(f's_branch {lw}')
    k.label(lc)
    k(f's_cmp_lg_u32 {s(sT0)}, 0')
    k(f's_cbranch_scc1 {lw}')
    k(f's_lshr_b32 {s(sT1)}, s2, 3')
    k(f's_and_b32 {s(sT1)}, {s(sT1)}, 31')
    k(f's_lshl_b32 {s(sT1)}, {s(sT1)}, 7')
    k(f's_add_u32 {s(sT1)}, {s(sT1)}, {CAL}')
    k(f's_add_u32 {s(sT2)}, {s(sT1)}, 8192')
    k('v_mov_b32 v3, 0')
    k('s_mov_b64 exec, 1')
    k(f'buffer_store_dword v3, v3, {s(S_WS,4)}, {s(sT1)} offen sc1')
    k(f'buffer_store_dword v3, v3, {s(S_WS,4)}, {s(sT2)} offen sc1')
    k('s_waitcnt vmcnt(0)')
    k('s_memtime s[70:71]')
    k(f'buffer_store_dword v3, v3, {s(S_WS,4)}, {s(sT1)} offen sc1')
    k('s_waitcnt vmcnt(0)')
    k('s_memtime s[72:73]')
    k(f'buffer_store_dword v3, v3, {s(S_WS,4)}, {s(sT2)} offen sc1')
    k('s_waitcnt vmcnt(0)')
    k('s_memtime s[74:75]')
    k('s_waitcnt lgkmcnt(0)')
    k('s_sub_u32 s70, s72, s70')
    k('s_sub_u32 s72, s74, s72')
    k('s_cmp_lt_u32 s72, s70')
    k(f's_cselect_b32 {s(sT1)}, 1, 0')
    k(f'v_mov_b32 v2, {s(sT1)}')
    k('ds_write_b32 v3, v2 offset:4')
    k('s_mov_b64 exec, -1')
    k('s_waitcnt lgkmcnt(0)')
    k.label(lw)
    k('s_barrier')
    k('v_mov_b32 v3, 0')
    k('ds_read_b64 v[4:5], v3')
    k('s_waitcnt lgkmcnt(0)')
    k(f'v_readfirstlane_b32 {s(sT2)}, v4')
    k(f'v_readfirstlane_b32 {s(sPOL)}, v5')
    k(f's_and_b32 {s(sPOL)}, {s(sPOL)}, 1')
    k(f's_lshr_b32 {s(sX)}, {s(sT2)}, 8')
    k(f's_and_b32 {s(sH)}, {s(sT2)}, 31')
    k(f's_cmp_lg_u32 {s(sX)}, {s(sT0)}')
    k(f's_cselect_b32 {s(sFOR)}, 1, 0')
    k('s_barrier')

def bits(k, dst, L, spec, tmp, first=True):
    for i, (pos, width, sh) in enumerate(spec):
        k(f'v_bfe_u32 v{tmp}, v{L}, {pos}, {width}')
        if i == 0 and first:
            k(f'v_lshlrev_b32 v{dst}, {sh}, v{tmp}')
        else:
            k(f'v_lshl_add_u32 v{dst}, v{tmp}, {sh}, v{dst}')

def emit_setup(k):
    L, T = 20, 23
    k(f'v_mov_b32 v{L}, v0')
    k(f'v_lshlrev_b32 v{vL16}, 4, v{L}')
    k(f'v_xor_b32 v{vL16X}, 128, v{vL16}')
    k(f's_mov_b32 {s(sMASK_LO8)}, 0x00ff00ff')
    k(f's_mov_b32 {s(sMASK_LO8+1)}, 0x00ff00ff')
    k(f's_mov_b64 {s(sMASK_LT32,2)}, 0xffffffff')
    k(f's_not_b64 {s(sMASK_GE32,2)}, {s(sMASK_LT32,2)}')
    k(f's_not_b64 {s(sMASK_OW,2)}, {s(sMASK_LO8,2)}')
    k(f's_bitcmp1_b32 {s(sW)}, 0')
    k(f's_cselect_b64 {s(sMASK_OW,2)}, {s(sMASK_OW,2)}, {s(sMASK_LO8,2)}')
    k(f'v_mov_b32 v21, 0xeeee')
    k(f'v_mov_b32 v22, 0x4444')
    k(f'v_cndmask_b32 v{vIDX}, v21, v22, {s(sMASK_LO8,2)}')
    bits(k, vPERM, L, [(3, 1, 9), (4, 1, 8), (2, 1, 7), (5, 1, 6), (0, 2, 4)], T)
    bits(k, vPAE, L, [(3, 1, 14), (4, 2, 12), (0, 3, 4)], T)
    k(f's_lshl_b32 {s(sT0)}, {s(sW)}, 15')
    k(f'v_add_u32 v{vPAE}, {s(sT0)}, v{vPAE}')
    bits(k, vPAS, L, [(4, 2, 12), (0, 4, 3)], T)
    k(f's_lshl_b32 {s(sT0)}, {s(sW)}, 14')
    k(f's_add_u32 {s(sT0)}, {s(sT0)}, {32 * 4096}')
    k(f'v_add_u32 v{vPAS}, {s(sT0)}, v{vPAS}')
    bits(k, vXW, L, [(0, 4, 4), (4, 1, 3), (5, 1, 8)], T)
    k(f's_lshl_b32 {s(sT0)}, {s(sW)}, 9')
    k(f'v_add_u32 v{vXW}, {s(sT0)}, v{vXW}')
    bits(k, vTR, L, [(2, 4, 4), (0, 1, 3)], T)
    bits(k, vPUB, L, [(0, 4, 4), (4, 2, 2)], T)
    k(f's_lshl_b32 {s(sT0)}, {s(sW)}, 11')
    k(f'v_add_u32 v{vLW0}, {s(sT0)}, v{vL16}')
    k(f'v_add_u32 v{vLW1}, 0x10000, v{vLW0}')
    k(f'v_add_u32 v{vLW2}, 0x20000, v{vLW0}')
    k(f's_mov_b32 {s(sC)}, 0x3e0293ee')
    k(f's_mov_b32 {s(sC+1)}, 0x3e0293ee')
    k(f's_mov_b32 {s(sBUD)}, 0x40000')
    k(f's_lshr_b32 {s(sOW)}, {s(sW)}, 1')
    k(f's_lshl_b32 {s(sOW)}, {s(sOW)}, 11')
    l1, l2 = k.newlabel('ci'), k.newlabel('ci')
    k(f's_mov_b32 {s(sCI)}, {s(sH)}')
    k(f's_cmp_eq_u32 {s(sW)}, 0')
    k(f's_cbranch_scc1 {l1}')
    k(f's_add_u32 {s(sCI)}, {s(sH)}, 32')
    k(f's_cmp_lg_u32 {s(sW)}, 2')
    k(f's_cbranch_scc1 {l2}')
    k(f's_cmp_lt_u32 {s(sH)}, 16')
    k(f's_cbranch_scc1 {l1}')
    k.label(l2)
    k(f's_mov_b32 {s(sCI)}, -1')
    k.label(l1)
    k(f's_lshl_b32 {s(sT0)}, {s(sX)}, 5')
    k(f's_add_u32 {s(sT0)}, {s(sT0)}, {s(sH)}')
    k(f's_lshl_b32 {s(sT0)}, {s(sT0)}, 2')
    k(f's_add_u32 {s(sT0)}, {s(sT0)}, {s(sW)}')
    k(f's_lshl_b32 {s(sTS)}, {s(sT0)}, 13')
    k(f's_add_u32 {s(sTS)}, {s(sTS)}, {TS}')
    k(f's_lshl_b32 {s(sT0)}, {s(sT0)}, 12')
    k(f's_add_u32 {s(sGW)}, {s(sT0)}, {GW}')
    k(f's_lshl_b32 {s(sT0)}, {s(sH)}, 8')
    k(f's_lshl_b32 {s(sROWO)}, {s(sX)}, 21')
    k(f's_xor_b32 {s(sROWR)}, {s(sROWO)}, 0x200000')
    k(f's_add_u32 {s(sROWO)}, {s(sROWO)}, {s(sT0)}')
    k(f's_add_u32 {s(sROWR)}, {s(sROWR)}, {s(sT0)}')
    k(f's_lshl_b32 {s(sT0)}, {s(sX)}, 13')
    k(f's_add_u32 {s(sT0)}, {s(sT0)}, {MB}')
    k(f's_lshl_b32 {s(sT1)}, {s(sW)}, 11')
    k(f's_add_u32 {s(cMLR)}, {s(sT0)}, {s(sT1)}')
    k(f's_sub_u32 {s(cMLR)}, {s(cMLR)}, 2048')
    k(f's_lshl_b32 {s(sT1)}, {s(sCI)}, 7')
    k(f's_add_u32 {s(cMLW)}, {s(sT0)}, {s(sT1)}')
    k(f's_lshl_b32 {s(sT0)}, {s(sX)}, 12')
    k(f's_add_u32 {s(sT0)}, {s(sT0)}, {MB + 16384 + 8192 * CFG["pol"]}')
    k(f's_add_u32 {s(cMRW)}, {s(sT0)}, {s(sT1)}')
    k(f's_xor_b32 {s(sT0)}, {s(sT0)}, 4096')
    k(f's_lshl_b32 {s(sT1)}, {s(sW)}, 10')
    k(f's_add_u32 {s(cMRR)}, {s(sT0)}, {s(sT1)}')

def emit_loader(k):
    L, T = 20, 23
    vQ, vOE, vOS = 24, 25, 26
    rE, rS, rO = 27, 28, 29
    tA, tB = 30, 31
    k(f's_lshl_b32 {s(sT0)}, {s(sW)}, 4')
    k(f'v_lshrrev_b32 v21, 4, v{L}')
    k(f'v_add_u32 v21, {s(sT0)}, v21')
    k(f'v_lshlrev_b32 v{vQ}, 13, v21')
    bits(k, vQ, L, [(0, 4, 4)], T, first=False)
    k(f'v_mul_u32_u24 v{vOS}, 1280, v21')
    k(f'v_mov_b32 v{vOE}, v{vOS}')
    bits(k, vOE, L, [(2, 2, 7), (0, 2, 4)], T, first=False)
    bits(k, vOS, L, [(0, 4, 4)], T, first=False)
    def rowexpr(dst, sh_r0, sh_r1, sh_g0, sh_g1):
        bits(k, dst, L, [(0, 2, 3), (3, 1, 5), (2, 1, 8 + sh_r0), (3, 1, 8 + sh_r1), (4, 1, 8 + sh_g0), (5, 1, 8 + sh_g1)], T)
        k(f's_lshl_b32 {s(sT0)}, {s(sW)}, 6')
        k(f'v_add_u32 v{dst}, {s(sT0)}, v{dst}')
    rowexpr(rE, 0, 3, 1, 4)
    rowexpr(rS, 1, 5, 2, 4)
    rowexpr(rO, 0, 5, 4, 2)
    sbit = {'E': 256 << 3, 'S': 256 << 5, 'O': 256 << 5}
    qrow = {'E': lambda q: 32 * (q >> 1) + 4 * (q & 1), 'S': lambda q: (q >> 1) + 8 * (q & 1), 'O': lambda q: 8 * (q >> 1) + 2 * (q & 1)}
    sWOE, sWOS, sQS, sM0W = sPAW, sPAR, sMLR, sMRR
    k(f's_mul_i32 {s(sWOS)}, {s(sH)}, 163840')
    k(f's_lshl_b32 {s(sT0)}, {s(sX)}, 9')
    k(f's_add_u32 {s(sWOE)}, {s(sWOS)}, {s(sT0)}')
    k(f's_add_u32 {s(sWOS)}, {s(sWOS)}, 1024')
    k(f's_lshl_b32 {s(sQS)}, {s(sH)}, 8')
    k(f's_add_u32 {s(sQS)}, {s(sQS)}, {512 * 8192}')
    k(f's_lshl_b32 {s(sM0W)}, {s(sW)}, 12')
    vm = []
    def issue(i):
        mat, c, p = ORDER[i]
        slot = ((i + 4) % 10) * 16384
        for j in range(4):
            if mat == 'o':
                sr = S_WO
                if p < 2:
                    base, vo, off = sWOE, vOE, c * 64 * 1280 + 64 * p + j * 4 * 1280
                else:
                    base, vo, off = sWOS, vOS, c * 64 * 1280 + j * 4 * 1280
            else:
                sr = {'q': S_WQ, 'k': S_WK, 'v': S_WV}[mat]
                vo = vQ
                if c < 4:
                    base, off = sROWO, c * 64 * 8192
                elif c < 6:
                    base, off = sQS, (c - 4) * 64 * 8192
                else:
                    base, off = sROWR, (c - 6) * 64 * 8192
                off += j * 4 * 8192
            k(f's_add_u32 {s(sT0)}, {s(base)}, {off}')
            k(f's_add_u32 m0, {s(sM0W)}, {slot + j * 1024}')
            k(f'buffer_load_dwordx4 v{vo}, {s(sr,4)}, {s(sT0)} offen lds')
            vm.append(i)
    DEPTH = 8
    for i in range(DEPTH):
        issue(i)
    TMP = [44, 60]
    pending = None
    def writeback(pend):
        regs, offs = pend
        for r, off in zip(regs, offs):
            b, imm = lds_w_addr(off)
            k(f'ds_write_b128 v{b}, {v(r,4)} offset:{imm}')
            k(f'ds_write_b128 v{b}, {v(r+4,4)} offset:{imm + 1024}')
    for i in range(36):
        mat, c, p = ORDER[i]
        slot = ((i + 4) % 10) * 16384
        last = max(ix for ix, t in enumerate(vm) if t == i)
        k(f's_waitcnt vmcnt({len(vm) - 1 - last}) lgkmcnt(0)')
        k('s_barrier')
        if pending:
            writeback(pending); pending = None
        kind = 'O' if mat == 'o' else ('S' if c in (4, 5) else 'E')
        rb = {'E': rE, 'S': rS, 'O': rO}[kind]
        k(f'v_add_u32 v{tA}, {slot}, v{rb}')
        k(f'v_xor_b32 v{tB}, {sbit[kind]}, v{tA}')
        tmp = TMP[i & 1]
        wb_regs, wb_offs, g_regs = [], [], []
        for t in range(2):
            pl = PLACE[(mat, c, p, t)]
            for q in range(4):
                dst = opreg_pair(pl[1], q) if pl[0] == 'r' else v(tmp + 8 * t + 2 * q, 2)
                k(f'ds_read_b64_tr_b16 {dst}, v{(tA, tB)[t]} offset:{qrow[kind](q) * 256}')
            if pl[0] == 'l':
                wb_regs.append(tmp + 8 * t); wb_offs.append(pl[1])
            if pl[0] == 'g':
                g_regs.append((tmp + 8 * t, pl[1]))
        if wb_regs:
            pending = (wb_regs, wb_offs)
        if g_regs:
            k('s_waitcnt lgkmcnt(0)')
            for r, off in g_regs:
                k(f'buffer_store_dwordx4 {v(r,4)}, v{vL16}, {s(S_WS,4)}, {s(sGW)} offen offset:{off}')
                k(f'buffer_store_dwordx4 {v(r+4,4)}, v{vL16}, {s(S_WS,4)}, {s(sGW)} offen offset:{off + 1024}')
                vm += ['g', 'g']
        if i + DEPTH < 36:
            issue(i + DEPTH)
    k('s_waitcnt vmcnt(0) lgkmcnt(0)')
    k('s_barrier')
    writeback(pending)
    k('s_waitcnt lgkmcnt(0)')

def stamp(k, name, diag):
    if diag and name in CFG['stamps']:
        idx = CFG['stamps'].index(name)
        op = 's_memrealtime' if CFG.get('rt') else 's_memtime'
        k(f'{op} {s(sTM + 2 * idx, 2)}')

def max_ops(regs, tmp):
    regs = list(regs)
    out = [f'v_max3_u32 v{tmp}, v{regs[0]}, v{regs[1]}, v{regs[2]}']
    rest = regs[3:]
    while rest:
        if len(rest) >= 2:
            out.append(f'v_max3_u32 v{tmp}, v{tmp}, v{rest[0]}, v{rest[1]}'); rest = rest[2:]
        else:
            out.append(f'v_max_u32 v{tmp}, v{tmp}, v{rest[0]}'); rest = rest[1:]
    return out

def retry_branch(k, tmp, retry_stub):
    k(f'v_cmp_eq_u32 vcc, {-1 if not CFG.get("x_nocomm") else 17}, v{tmp}')
    k(f's_cbranch_vccnz {retry_stub}')

def masked_retry_stub(k, stub, check, cont, loads, depth):
    k.label(stub)
    k(f's_sub_u32 {s(sBUD)}, {s(sBUD)}, 1')
    giveup = k.newlabel('giveup')
    k(f's_cbranch_scc1 {giveup}')
    k('s_mov_b64 exec, vcc')
    for op in loads:
        k(op)
    k('s_mov_b64 exec, -1')
    k(f's_branch {check}')
    k.label(giveup)
    k(f's_mov_b32 {s(sBUD)}, 0')
    k(f's_branch {cont}')

def offsets_ops():
    return [
        f's_and_b32 {s(sPZ0)}, {s(sSTEP)}, 1',
        f's_sub_u32 {s(sPZ1)}, 0, {s(sPZ0)}',
        f's_add_u32 {s(sT0)}, {s(sSTEP)}, 1',
        f's_and_b32 {s(sT0)}, {s(sT0)}, 3',
        f's_lshl_b32 {s(sT0)}, {s(sT0)}, 15',
        f's_add_u32 {s(sMLR)}, {s(sT0)}, {s(cMLR)}',
        f's_add_u32 {s(sMRR)}, {s(sT0)}, {s(cMRR)}',
        f's_add_u32 {s(sMLW)}, {s(sT0)}, {s(cMLW)}',
        f's_add_u32 {s(sMRW)}, {s(sT0)}, {s(cMRW)}',
        f's_xor_b32 {s(sMLZ)}, {s(sMLW)}, 0x10000',
        f's_xor_b32 {s(sMRZ)}, {s(sMRW)}, 0x10000',
    ]

def emit_publish(k, val, sc, remote):
    k(f's_mov_b64 exec, {s(sMASK_LO8,2)}')
    k(f'buffer_store_dword v{val}, v{vPUB}, {s(S_WS,4)}, {s(sMLW)} offen{sc}')
    if remote:
        k(f'buffer_store_dword v{val}, v{vPUB}, {s(S_WS,4)}, {s(sMRW)} offen sc1')
    k('s_mov_b64 exec, -1')

def k_dma_ops():
    return [f's_mov_b32 m0, {s(sKVM0)}'] + [f'buffer_load_dwordx4 v{vL16}, {s(S_WS,4)}, {s(sKV)} offen offset:{j * 1024} sc1 lds' for j in range(2)]
def v_dma_ops():
    return [f's_add_u32 m0, {s(sKVM0)}, 8192', f's_add_u32 {s(sT1)}, {s(sKV)}, 8192'] + [f'buffer_load_dwordx4 v{vL16}, {s(S_WS,4)}, {s(sT1)} offen offset:{j * 1024} sc1 lds' for j in range(2)]

def lds_op_read_ops(key, dst):
    b, imm = lds_w_addr(PLACE[key][1])
    return [f'ds_read_b128 {v(dst,4)}, v{b} offset:{imm}', f'ds_read_b128 {v(dst+4,4)}, v{b} offset:{imm + 1024}']

class LG:
    def __init__(self, k):
        self.k = k; self.q = []
    def op(self, text, tag):
        self.k(text); self.q.append(tag)
    def wait(self, tag):
        if tag in self.q:
            last = max(i for i, t in enumerate(self.q) if t == tag)
            self.k(f's_waitcnt lgkmcnt({min(len(self.q) - 1 - last, 15)})')
            del self.q[:last + 1]
    def drain(self):
        self.k('s_waitcnt lgkmcnt(0)'); self.q = []

def delay(k, n):
    while n > 0:
        m = min(n, 16); k(f's_nop {m-1}'); n -= m


def kv_flag_wait(k, t0, t1):
    top, done = k.newlabel('kvf'), k.newlabel('kvd')
    k(f'v_lshrrev_b32 v{t0}, 2, v{vL16}')
    k(f'v_min_u32 v{t0}, 64, v{t0}')
    k.label(top)
    k(f'buffer_load_dword v{t1}, v{t0}, {s(S_WS,4)}, {s(sKVF)} offen sc1')
    k('s_waitcnt vmcnt(0)')
    k(f'v_cmp_eq_u32 vcc, 0, v{t1}')
    k(f's_ff1_i32_b64 {s(sKNOWN)}, vcc')
    k(f's_lshl_b32 {s(sKNOWN)}, {s(sKNOWN)}, 2')
    k(f's_cmp_eq_u32 {s(sKNOWN)}, 64')
    k(f's_cselect_b32 {s(sKNOWN)}, 128, {s(sKNOWN)}')
    k(f's_add_u32 {s(sT0)}, {s(sSTEP)}, 2')
    k(f's_cmp_lt_u32 {s(sT0)}, {s(sKNOWN)}')
    k(f's_cbranch_scc1 {done}')
    k('s_sleep 2')
    k(f's_sub_u32 {s(sBUD)}, {s(sBUD)}, 1')
    k(f's_cbranch_scc0 {top}')
    k(f's_mov_b32 {s(sBUD)}, 0')
    k(f's_mov_b32 {s(sKNOWN)}, 128')
    k.label(done)

def diag_store(k):
    R_ = SL[1]
    k('s_waitcnt lgkmcnt(0)')
    for i in range(9):
        k(f'v_writelane_b32 v{R_}, {s(sTM + 2*i)}, {i}')
    k(f'v_writelane_b32 v{R_}, {s(sB0)}, 9')
    k(f'v_writelane_b32 v{R_}, {s(sB1_)}, 10')
    k(f'v_writelane_b32 v{R_}, {s(sBUD)}, 11')
    k(f'v_lshrrev_b32 v{R_+1}, 2, v{vL16}')
    k('s_mov_b64 exec, 0xffff')
    k(f'buffer_store_dword v{R_}, v{R_+1}, {s(S_WS,4)}, {s(sTS)} offen')
    k('s_mov_b64 exec, -1')
    k(f's_add_u32 {s(sTS)}, {s(sTS)}, 64')

def emit_prologue(k, sc_label_pairs):
    k(f's_mov_b32 {s(sSTEP)}, -1')
    k(f'v_lshrrev_b32 v20, 4, v{vL16}')
    bits(k, 21, 20, [(0, 1, 4)], 23)
    k(f'v_mov_b32 v22, 0x3f80')
    k(f'v_lshlrev_b32 v21, v21, v22')
    k(f'v_bfe_u32 v22, v20, 1, 3')
    for i in range(4):
        k(f'v_cmp_eq_u32 vcc, {i}, v22')
        k(f'v_cndmask_b32 v{24+i}, 0, v21, vcc')
    k(f'ds_write_b128 v{vL16}, v[24:27] offset:{L_SEL}')
    for i in range(4):
        k(f'v_mov_b32 v{ONES+i}, 0x3f803f80')
    k(f's_mov_b32 {s(sLIM)}, {CFG["lim"]}')
    k(f's_mul_i32 {s(sT0)}, {s(sX)}, {PA_BT}')
    k(f's_add_u32 {s(sT0)}, {s(sT0)}, {PA}')
    k(f's_lshl_b32 {s(sT1)}, {s(sH)}, 7')
    k(f's_add_u32 {s(sPAW)}, {s(sT0)}, {s(sT1)}')
    k(f's_lshl_b32 {s(sT1)}, {s(sCI)}, 12')
    k(f's_add_u32 {s(sPAR)}, {s(sT0)}, {s(sT1)}')
    for op in offsets_ops():
        k(op)
    k(f's_lshl_b32 {s(sKV)}, {s(sH)}, 14')
    k(f's_lshl_b32 {s(sT0)}, {s(sW)}, 11')
    k(f's_add_u32 {s(sKV)}, {s(sKV)}, {s(sT0)}')
    k(f's_add_u32 {s(sKV)}, {s(sKV)}, {KV}')
    k(f's_add_u32 {s(sKVM0)}, {s(sT0)}, {L_KT}')
    k(f's_lshl_b32 {s(sT0)}, {s(sH)}, 12')
    k(f's_add_u32 {s(sT0)}, {s(sT0)}, {KVM}')
    k(f's_add_u32 {s(sT1)}, {s(sT0)}, 2048')
    k(f's_cmp_eq_u32 {s(sX)}, 0')
    k(f's_cselect_b32 {s(sPUBK)}, {s(sT0)}, 0x40000000')
    k(f's_cselect_b32 {s(sPUBV)}, 0x40000000, {s(sT1)}')
    nocons = k.newlabel('nocons')
    k(f's_cmp_eq_u32 {s(sCI)}, -1')
    k(f's_cbranch_scc1 {nocons}')
    bits(k, 21, 20, [(4, 1, 2), (5, 1, 1)], 23)
    k(f'v_bfe_u32 v22, v20, 2, 1')
    k(f'v_and_b32 v23, 3, v20')
    k(f's_and_b32 {s(sT0)}, {s(sCI)}, 1')
    k(f's_lshl_b32 {s(sT0)}, {s(sT0)}, 2')
    k(f'v_add_u32 v23, {s(sT0)}, v23')
    k(f'v_mul_u32_u24 v23, 1280, v23')
    k(f's_and_b32 {s(sT2)}, {s(sCI)}, 2')
    k(f's_lshl_b32 {s(sT2)}, {s(sT2)}, 3')
    shr, cont = k.newlabel('shr'), k.newlabel('cont')
    k(f's_cmp_ge_u32 {s(sCI)}, 32')
    k(f's_cbranch_scc1 {shr}')
    k(f's_lshr_b32 {s(sT0)}, {s(sCI)}, 3')
    k(f's_lshl_b32 {s(sT0)}, {s(sT0)}, 6')
    k(f's_and_b32 {s(sT1)}, {s(sCI)}, 4')
    k(f's_lshl_b32 {s(sT1)}, {s(sT1)}, 1')
    k(f's_add_u32 {s(sT0)}, {s(sT0)}, {s(sT1)}')
    k(f's_lshl_b32 {s(sT1)}, {s(sX)}, 8')
    k(f's_add_u32 {s(sT0)}, {s(sT0)}, {s(sT1)}')
    k(f's_add_u32 {s(sT0)}, {s(sT0)}, {s(sT2)}')
    k(f'v_lshl_add_u32 v24, v22, 5, v21')
    k(f'v_add_u32 v24, {s(sT0)}, v24')
    k(f'v_add_u32 v25, 1, v24')
    k(f's_branch {cont}')
    k.label(shr)
    k(f's_sub_u32 {s(sT0)}, {s(sCI)}, 32')
    k(f's_lshr_b32 {s(sT0)}, {s(sT0)}, 2')
    k(f's_lshl_b32 {s(sT0)}, {s(sT0)}, 5')
    k(f's_add_u32 {s(sT0)}, {s(sT0)}, 512')
    k(f's_add_u32 {s(sT0)}, {s(sT0)}, {s(sT2)}')
    k(f'v_lshl_add_u32 v24, v21, 1, v22')
    k(f'v_add_u32 v24, {s(sT0)}, v24')
    k(f'v_add_u32 v25, 2, v24')
    k.label(cont)
    k(f'v_lshl_add_u32 v24, v24, 1, v23')
    k(f'v_lshl_add_u32 v25, v25, 1, v23')
    k(f'buffer_load_ushort v26, v24, {s(S_M0,4)}, 0 offen')
    k(f'buffer_load_ushort v27, v25, {s(S_M0,4)}, 0 offen')
    k('s_waitcnt vmcnt(0)')
    k('v_lshl_or_b32 v26, v27, 16, v26')
    k.label(nocons)
    if CFG['fused']:
        k(f's_mov_b32 {s(sT0)}, 96')
        tok.emit_wait(k, S_DBG, sT0, 1, 0, 1, 28, 29, lane=20)
        k(f's_mov_b32 {s(sT0)}, {FL_INIT}')
        tok.emit_wait(k, S_WS, sT0, 1, 0, 64, 28, 29, lane=20)
        k(f's_lshl_b32 {s(sKVF)}, {s(sH)}, 7')
        k(f's_add_u32 {s(sKVF)}, {s(sKVF)}, {FL_KV}')
        kv_flag_wait(k, 28, 29)
    bits(k, 28, 20, [(0, 4, 7), (4, 1, 13)], 23)
    k(f'ds_write_b32 v{vL16}, v28 offset:{L_TCH}')
    k(f's_add_u32 {s(sTCH)}, {s(sKV)}, {32 * 16384}')
    k(f'buffer_load_dword v29, v28, {s(S_WS,4)}, {s(sKV)} offen sc1')
    k(f'buffer_load_dword v28, v28, {s(S_WS,4)}, {s(sTCH)} offen sc1')
    k('s_waitcnt vmcnt(0) lgkmcnt(0)')

def emit_loop(k, glob, diag, end_label, cons, poller, name):
    sc = ' sc1' if glob else ''
    top = f'rec_top_{name}'
    SMF = 'v_smfmac_f32_16x16x64_bf16'
    MF32 = 'v_mfma_f32_16x16x32_bf16'
    MF16 = 'v_mfma_f32_16x16x16_bf16'
    FILL = f'v_mov_b32 v{vPUB}, v{vPUB}'
    A0, A1, A2, A3 = AW, AW + 4, AW + 8, AW + 12
    stubs = []
    MV = ACCK
    def pub_local():
        k(f's_mov_b64 exec, {s(sMASK_LO8,2)}')
        k(f'buffer_store_dword v{MV}, v{vPUB}, {s(S_WS,4)}, {s(sMLW)} offen{sc}')
        if cons == 'E' and CFG['delay_r'] == 0 and not CFG.get('x_nox'):
            k(f'buffer_store_dword v{MV}, v{vPUB}, {s(S_WS,4)}, {s(sMRW)} offen sc1')
        k('s_mov_b64 exec, -1')
    k.label(f'rec_entry_{name}')
    if cons:
        k(f'v_mov_b32 v{MV}, v26')
        pub_local()
        if diag:
            k(f's_sub_u32 {s(sTS)}, {s(sTS)}, 64')
    if CFG['fill']:
        k.filler(FILL)
    k.raw('.p2align 3')
    k.label(top)
    k(f's_add_u32 {s(sSTEP)}, {s(sSTEP)}, 1')
    if not cons:
        stamp(k, 'top', diag)
    PL = SL[0]
    seq = [(m, c, 0, t) for c in range(6) for t in range(2) for m in 'qkv']
    lds_ops = [key for key in seq if PLACE[key][0] == 'l']
    slot_of = {}
    nxt = 0
    prep = []
    for sl in (SL[1], SL[2], SL[3]):
        slot_of[lds_ops[nxt]] = sl
        prep += lds_op_read_ops(lds_ops[nxt], sl)
        nxt += 1
    prep += [f'v_mov_b64 {v(MISC,2)}, -1', f'v_mov_b64 {v(MISC+2,2)}, -1']
    zero = [f'v_mov_b64 {v(r,2)}, 0' for r in range(ACCQ, ACCQ + 12, 2)]
    resets = []
    if cons:
        resets += ['s_mov_b64 exec, 0xff', f'buffer_store_dwordx4 {v(MISC,4)}, v{vL16}, {s(S_WS,4)}, {s(sMLZ)} offen{sc}', 's_mov_b64 exec, -1']
    pl_ops = [f'buffer_load_dwordx4 {v(PL+4*j,4)}, v{vPERM}, {s(S_WS,4)}, {s(sMLR)} offen offset:{1024*j} sc1' for j in range(2)]
    def kvcheck():
        if CFG['fused']:
            kvs, kvc = k.newlabel('kv_stub'), k.newlabel('kv_cont')
            k(f's_add_u32 {s(sT0)}, {s(sSTEP)}, 2')
            k(f's_cmp_ge_u32 {s(sT0)}, {s(sKNOWN)}')
            k(f's_cbranch_scc1 {kvs}')
            k.label(kvc)
            stubs.append(('kv', kvs, kvc))
    if cons:
        k('s_barrier')
        if diag:
            diag_store(k)
            stamp(k, 'top', diag)
    for op in prep:
        k(op)
    if cons != 'E':
        for op in zero:
            k(op)
    if cons != 'E':
        kvcheck()
    if not cons:
        k('s_barrier')
    if not glob and not poller:
        for op in resets:
            k(op)
    if poller:
        delay(k, CFG['delay_b'] if not cons else max(CFG['delay_b'] - 20, 0))
        check, stub, cont = k.newlabel('pl_check'), k.newlabel('pl_stub'), k.newlabel('pl_cont')
        stamp(k, 'l_issue', diag)
        for op in pl_ops:
            k(op)
        if not glob:
            for op in resets:
                k(op)
        for _ in range(CFG['extra_b']):
            delay(k, CFG['gap_b'])
            for op in pl_ops:
                k(op)
        k.label(check)
        k(f's_waitcnt vmcnt({2 * CFG["extra_b"]})')
        for op in max_ops(range(PL, PL + 8), A3):
            k(op)
        for j in range(2):
            k(f'ds_write_b128 v{vLW0}, {v(PL+4*j,4)} offset:{L_M - 2048 + 1024*j}')
        retry_branch(k, A3, stub)
        stubs.append(('m', stub, check, cont, pl_ops))
        k.label(cont)
    else:
        k(f's_waitcnt vmcnt({(1 if CFG["delay_r"] or CFG.get("x_nox") else 2) + (0 if glob else 1) + (1 if diag else 0)})')
        if CFG['delay_r']:
            delay(k, CFG['delay_r'])
            k(f's_mov_b64 exec, {s(sMASK_LO8,2)}')
            k(f'buffer_store_dword v{MV}, v{vPUB}, {s(S_WS,4)}, {s(sMRW)} offen sc1')
            k('s_mov_b64 exec, -1')
        k(f'v_mov_b32 v{SL[0]}, -1')
        for op in zero:
            k(op)
        kvcheck()
    if glob:
        for op in resets:
            k(op)
    if diag:
        k(f's_mov_b32 {s(sB0)}, {s(sBUD)}')
    rem_load = f'buffer_load_dwordx4 {v(MISC,4)}, v{vPERM}, {s(S_WS,4)}, {s(sMRR if not CFG.get("x_nox") else sGW)} offen sc1'
    k('s_waitcnt lgkmcnt(0)')
    stamp(k, 'preB1', diag)
    k('s_barrier')
    stamp(k, 'B1', diag)
    lg = LG(k)
    acc = {'q': ACCQ, 'k': ACCK, 'v': ACCV}
    def rdA(i):
        return f'ds_read_b128 {v(AW + 4*(i%4),4)}, v{(vL16, vL16X)[i&1]} offset:{L_M + 1024*(i>>1)}'
    for i in range(4):
        lg.op(rdA(i), ('A', i))
    k(rem_load)
    nlater = 0
    if cons == 'E':
        k(f's_mov_b64 exec, {s(sMASK_LO8,2)}')
        k(f'buffer_store_dword v{SL[0]}, v{vPUB}, {s(S_WS,4)}, {s(sMRZ)} offen sc1')
        k('s_mov_b64 exec, -1')
        nlater += 1
    def gl(t, h):
        return f'buffer_load_dwordx4 {v(SL[t]+4*h,4)}, v{vL16}, {s(S_WS,4)}, {s(sGW)} offen offset:{2048*t+1024*h}'
    RA = [SL[2], SL[2] + 4, SL[3], SL[3] + 4, A0, A1, A2, A3]
    def rdR(i):
        return ('lg', f'ds_read_b128 {v(RA[i],4)}, v{(vL16, vL16X)[i&1]} offset:{L_R + 2048*(i>>1)}', ('R', i))
    side = {}
    def put(i, op, front=False):
        lst = side.setdefault(i, [])
        lst.insert(0, op) if front else lst.append(op)
    RC = CFG['rem_chk']
    CKR = MISC
    rstub, rcont = k.newlabel('rem_stub'), k.newlabel('rem_cont')
    mo = max_ops(range(MISC, MISC + 4), CKR)
    vd = v_dma_ops()
    kd = k_dma_ops()
    put(1, gl(0, 0)); put(4, gl(0, 1))
    put(6, kd[0]); put(7, kd[1]); put(10, kd[2])
    put(27, vd[0]); put(27, vd[1]); put(27, vd[2]); put(28, vd[3])
    nlater += 4
    put(RC, ('fn', lambda: stamp(k, 'remchk', diag)))
    put(RC, f's_waitcnt vmcnt({nlater})')
    put(RC, ('lg', f'ds_write_b128 v{vLW0}, {v(MISC,4)} offset:{L_R}', 'rw'))
    put(RC + 2, mo[0])
    put(RC + 3, mo[1])
    put(RC + 4, f'v_cmp_eq_u32 vcc, {-1 if not (CFG.get("x_nocomm") or CFG.get("x_nox")) else 17}, v{CKR}')
    put(RC + 5, f's_cbranch_vccnz {rstub}'); put(RC + 5, ('lab', rcont))
    put(RC + 6, ('lg', f'ds_read_b32 v{MISC}, v{vL16} offset:{L_TCH}', 'tch'))
    stubs.append(('r', rstub, rcont, rem_load, mo, CKR))
    put(29, ('fn', lambda: (lg.drain(), stamp(k, 'preB2', diag), k('s_barrier'))))
    put(29, rdR(0)); put(30, rdR(1)); put(31, rdR(2)); put(32, rdR(3)); put(33, rdR(4)); put(34, rdR(5)); put(35, rdR(6))
    uses_left = {sl: 0 for sl in SL}
    for i, key in enumerate(seq):
        m, c, _, t = key
        ai = 2 * c + t
        lg.wait(('A', ai))
        pl = PLACE[key]
        if pl[0] == 'r':
            B = opreg(pl[1])
        else:
            lg.wait(key); B = v(slot_of[key], 8)
        k(f'{SMF} {v(acc[m],4)}, {v(AW+4*(ai%4),4)}, {B}, v{vIDX}')
        if pl[0] != 'r':
            if nxt < len(lds_ops) and not (slot_of[key] == SL[1] and len(lds_ops) - nxt <= 1):
                nk_ = lds_ops[nxt]; slot_of[nk_] = slot_of[key]; nxt += 1
                ops = lds_op_read_ops(nk_, slot_of[key])
                lg.op(ops[0], nk_)
                put(i + 1, ('lg', ops[1], nk_), True)
            elif slot_of[key] == SL[1]:
                assert i <= RC + 1, i
                put(RC + 1, gl(1, 0)); put(RC + 1, gl(1, 1))
        if m == 'v' and ai + 4 < 12:
            put(i + 2, ('lg', rdA(ai + 4), ('A', ai + 4)), True)
        for op in side.get(i, []):
            if isinstance(op, tuple):
                if op[0] == 'lg':
                    lg.op(op[1], op[2])
                elif op[0] == 'lab':
                    k.label(op[1])
                else:
                    op[1]()
            else:
                k(op)
    assert nxt == len(lds_ops)
    if diag:
        k(f's_mov_b32 {s(sB1_)}, {s(sBUD)}')
    stamp(k, 'locdone', diag)
    salu = [f's_add_u32 {s(sTCH)}, {s(sKV)}, {64 * 16384}', f's_mov_b32 m0, {L_JUNK}'] + offsets_ops() + [f's_add_u32 {s(sKV)}, {s(sKV)}, {32 * 16384}']
    def rm(n):
        m = 'qkv'[n // 8]; i = n % 8
        lg.wait(('R', i))
        if n == 14:
            k('s_waitcnt vmcnt(3)')
        pl = PLACE[(m, 6 + (i>>1), 0, i&1)]
        B = opreg(pl[1]) if pl[0] == 'r' else v(SL[i & 1], 8)
        k(f'{SMF} {v(acc[m],4)}, {v(RA[i],4)}, {B}, v{vIDX}')
        if salu:
            k(salu.pop(0))
    F = MISC
    rm(0); lg.op(*rdR(7)[1:])
    rm(1)
    rm(2)
    k(f's_mov_b64 exec, {s(sMASK_LT32,2)}')
    k(f'buffer_load_dword v{F}, {s(S_WS,4)}, {s(sTCH)} offen sc1 lds')
    k('s_mov_b64 exec, -1')
    for n in range(3, 10):
        rm(n)
    for i in range(4):
        k(f'v_mul_f32 v{ACCQ+i}, {s(sC)}, v{ACCQ+i}')
        rm(10 + i)
    k(f'v_cvt_pk_bf16_f32 v{F}, v{ACCQ}, v{ACCQ+1}')
    rm(14)
    k(f'v_cvt_pk_bf16_f32 v{F+1}, v{ACCQ+2}, v{ACCQ+3}')
    rm(15)
    lg.op(f'ds_write_b64 v{vXW}, {v(F,2)} offset:{L_QX}', 'qw')
    assert not salu
    QTR = [SL[0], SL[0] + 4, SL[1], SL[1] + 4]
    KMR = RA[:4]
    def qrd(j, hh):
        lg.op(f'ds_read_b64_tr_b16 {v(QTR[j]+2*hh,2)}, v{vTR} offset:{L_QX + j*512 + hh*256}', ('qt', j))
    def ktrd(kt, j):
        lg.op(f'ds_read_b128 {v(RA[4*kt+j],4)}, v{vL16} offset:{L_KT + kt*4096 + j*1024}', ('kt', kt, j))
    def kmrd(j):
        for hh in range(2):
            lg.op(f'ds_read_b64_tr_b16 {v(KMR[j]+2*hh,2)}, v{vTR} offset:{L_KX + j*512 + hh*256}', ('km', j))
    rm(16)
    rm(17)
    k(f'v_cvt_pk_bf16_f32 v{F+2}, v{ACCK}, v{ACCK+1}')
    k(f'v_cvt_pk_bf16_f32 v{F+3}, v{ACCK+2}, v{ACCK+3}')
    lg.op(f'ds_write_b64 v{vXW}, {v(F+2,2)} offset:{L_KX}', 'kw')
    rm(18)
    lg.wait('qw')
    stamp(k, 'preB3', diag)
    k('s_barrier')
    rm(19); qrd(0, 0); qrd(0, 1); ktrd(0, 0)
    rm(20); qrd(1, 0); qrd(1, 1); ktrd(0, 1)
    rm(21); ktrd(0, 2); qrd(2, 0)
    lg.wait('kw')
    k('s_barrier')
    stamp(k, 'B4', diag)
    rm(22); qrd(2, 1); ktrd(0, 3)
    rm(23); qrd(3, 0); qrd(3, 1)
    k(f'buffer_store_dwordx2 {v(F+2,2)}, v{vXW}, {s(S_WS,4)}, {s(sPUBK)} offen sc1')
    ST, SM = ACCQ, MISC
    def st(kt, j):
        lg.wait(('qt', j)); lg.wait(('kt', kt, j))
        k(f'{MF32} {v(ST+4*kt,4)}, {v(RA[4*kt+j],4)}, {v(QTR[j],4)}, {"0" if j == 0 else v(ST+4*kt,4)}')
    def sm(j):
        lg.wait(('km', j))
        k(f'{MF32} {v(SM,4)}, {v(KMR[j],4)}, {v(QTR[j],4)}, {"0" if j == 0 else v(SM,4)}')
    CK, OWA = ACCV + 2, ACCV + 3
    VTK, VA, OP, OA = A0, A2, A3, SL[2]
    def chk(r, first=False):
        if first:
            k(f'v_max3_f32 v{CK}, |v{r}|, |v{r+1}|, |v{r+2}|')
            k(f'v_max_f32 v{CK}, v{CK}, |v{r+3}|')
        else:
            k(f'v_max3_f32 v{CK}, v{CK}, |v{r}|, |v{r+1}|')
            k(f'v_max3_f32 v{CK}, v{CK}, |v{r+2}|, |v{r+3}|')
    ex = lambda r: k(f'v_exp_f32 v{r}, v{r}')
    cv = lambda d, r: k(f'v_cvt_pk_bf16_f32 v{d}, v{r}, v{r+1}')
    st(0, 0); ktrd(1, 0); ktrd(1, 1)
    st(0, 1); ktrd(1, 2); ktrd(1, 3)
    st(0, 2); kmrd(0)
    st(0, 3); kmrd(1)
    st(1, 0); kmrd(2)
    st(1, 1); kmrd(3)
    cv(ACCV, ACCV); cv(ACCV + 1, ACCV + 2)
    st(1, 2); chk(ST, True)
    k('s_waitcnt vmcnt(2)')
    k(f'buffer_store_dwordx2 {v(ACCV,2)}, v{vXW}, {s(S_WS,4)}, {s(sPUBV)} offen sc1')
    for t in range(2):
        lg.op(f'ds_read_b128 {v(VTK+4*t,4)}, v{vLW0} offset:{L_VT + 1024*t}', 'vt')
    st(1, 3); ex(ST)
    sm(0); ex(ST + 1)
    sm(1); ex(ST + 2)
    sm(2); ex(ST + 3)
    sm(3); chk(ST + 4)
    k(f'v_cndmask_b32 v{VA}, 0, v{ACCV}, {s(sMASK_LT32,2)}')
    k(f'v_cndmask_b32 v{VA+1}, 0, v{ACCV+1}, {s(sMASK_LT32,2)}')
    k(f'v_cndmask_b32 v{VA+2}, 0, v{ACCV}, {s(sMASK_GE32,2)}')
    k(f'v_cndmask_b32 v{VA+3}, 0, v{ACCV+1}, {s(sMASK_GE32,2)}')
    stamp(k, 'presm', diag)
    pre = lds_op_read_ops(('o', 0, 0, 0), SL[0]) + lds_op_read_ops(('o', 0, 0, 1), SL[1])
    ex(ST + 4); ex(ST + 5); ex(ST + 6); ex(ST + 7)
    cv(ST, ST); cv(ST + 1, ST + 2); cv(ST + 2, ST + 4); cv(ST + 3, ST + 6)
    chk(SM)
    lg.wait('vt')
    k(f'{MF32} {v(OA,4)}, {v(VTK,4)}, {v(ST,4)}, 0')
    ex(SM)
    k(f'{MF32} {v(OA+4,4)}, {v(VTK+4,4)}, {v(ST,4)}, 0')
    ex(SM + 1)
    k(f'{MF32} {v(SL[3],4)}, {v(ST,4)}, {v(ONES,4)}, 0')
    ex(SM + 2); ex(SM + 3)
    RL = SL[3]
    k(f'v_cmp_nge_f32 vcc, {s(sLIM)}, v{CK}')
    cv(SM, SM); cv(SM + 1, SM + 2)
    slow, back = k.newlabel('sm_slow'), k.newlabel('sm_back')
    k(f's_cbranch_vccnz {slow}')
    k.label(back)
    stubs.append(('sm', slow, back))
    k(f'v_cndmask_b32 v{SM+2}, 0, v{SM}, {s(sMASK_LT32,2)}')
    k(f'v_cndmask_b32 v{SM+3}, 0, v{SM+1}, {s(sMASK_LT32,2)}')
    k(f'{MF16} {v(OA,4)}, {v(VA,2)}, {v(SM,2)}, {v(OA,4)}')
    k(f'v_add_u32 v{OWA}, {s(sOW)}, v{vL16}')
    k(f'{MF16} {v(OA+4,4)}, {v(VA+2,2)}, {v(SM,2)}, {v(OA+4,4)}')
    k(f'v_mov_b64 {v(ACCK,2)}, 0')
    k(f'{MF16} {v(RL,4)}, {v(SM+2,2)}, {v(ONES,2)}, {v(RL,4)}')
    k(f'v_mov_b64 {v(ACCK+2,2)}, 0')
    k(f'v_mov_b64 {v(ACCQ,2)}, 0'); k(f'v_mov_b64 {v(ACCQ+2,2)}, 0')
    wo_slot = {('o', 0, 0, 0): SL[0], ('o', 0, 0, 1): SL[1], ('o', 1, 0, 0): SL[2], ('o', 1, 0, 1): SL[3] + 4,
               ('o', 1, 2, 0): SL[0], ('o', 1, 2, 1): SL[1]}
    for i in range(4):
        cv(OP + i, OA + 2 * i)
    stamp(k, 'owr', diag)
    k(f's_mov_b64 exec, {s(sMASK_OW,2)}')
    k(f'ds_write_b128 v{OWA}, {v(OP,4)} offset:{L_OX}')
    k('s_mov_b64 exec, -1')
    k(f's_cmp_eq_u32 {s(sSTEP)}, 63')
    k(f's_cbranch_scc1 {end_label}')
    for op in pre:
        k(op)
    k('s_waitcnt lgkmcnt(4)')
    stamp(k, 'preB5', diag)
    k('s_barrier')
    lg = LG(k)
    OX = [A0, A1, A2, A3]
    for i in range(4):
        lg.op(f'ds_read_b128 {v(OX[i],4)}, v{(vL16, vL16X)[i&1]} offset:{L_OX + 2048*(i>>1)}', ('o', i))
    def word(key, h):
        lg.op(lds_op_read_ops(key, wo_slot[key])[h], key)
    k(f's_add_u32 {s(sPUBK)}, {s(sPUBK)}, {32 * 4096}')
    k(f's_add_u32 {s(sPUBV)}, {s(sPUBV)}, {32 * 4096}')
    def wo(p, i):
        key = ('o', i >> 1, p, i & 1)
        lg.wait(('o', i)); lg.wait(key)
        B = v(wo_slot[key], 8) if key in wo_slot else opreg(PLACE[key][1])
        k(f'{SMF} {v(ACCQ+4*p,4)}, {v(OX[i],4)}, {B}, v{vIDX}')
    def nrm(r, i):
        k(f'v_mul_f32 v{r+i}, v{r+i}, v{RL+i}')
    z = lambda r: k(f'v_mov_b64 {v(r,2)}, 0')
    rc = lambda i: k(f'v_rcp_f32 v{RL+i}, v{RL+i}')
    tag = lambda r: k(f'v_and_or_b32 v{r}, v{r}, -2, {s(sPZ0)}')
    word(('o', 1, 0, 0), 0); word(('o', 1, 0, 0), 1)
    wo(1, 0); word(('o', 1, 0, 1), 0)
    wo(1, 1); word(('o', 1, 0, 1), 1)
    wo(0, 0); rc(0)
    wo(0, 1); rc(1)
    wo(1, 2); word(('o', 1, 2, 0), 0); word(('o', 1, 2, 0), 1)
    wo(1, 3); word(('o', 1, 2, 1), 0); word(('o', 1, 2, 1), 1)
    wo(0, 2); rc(2); z(ACCV)
    wo(0, 3); rc(3); z(ACCV + 2)
    nrm(ACCK, 0)
    wo(2, 0); nrm(ACCK, 1); nrm(ACCK, 2)
    wo(2, 1); nrm(ACCK, 3); cv(ACCK, ACCK)
    wo(2, 2); cv(ACCK + 1, ACCK + 2); tag(ACCK)
    wo(2, 3)
    for i in (2, 3, 0, 1):
        nrm(ACCQ, i)
    cv(ACCQ + 3, ACCQ + 2); cv(ACCQ + 2, ACCQ); tag(ACCQ + 2)
    for i in range(4):
        nrm(ACCV, i)
    k(f'buffer_store_dwordx4 {v(ACCQ+2,4)}, v{vPAE}, {s(S_WS,4)}, {s(sPAW)} offen{sc}')
    cv(ACCV, ACCV); cv(ACCV + 1, ACCV + 2); tag(ACCV)
    k(f'buffer_store_dwordx2 {v(ACCV,2)}, v{vPAS}, {s(S_WS,4)}, {s(sPAW)} offen{sc}')
    stamp(k, 'st1', diag)
    SEL = SL[2]
    if cons:
        k(f'ds_read_b128 {v(SEL,4)}, v{vL16} offset:{L_SEL}')
    if cons:
        check, stub, cont = k.newlabel('ra_check'), k.newlabel('ra_stub'), k.newlabel('ra_cont')
        X, D_, TM = AW, SL[3], MISC
        a_ops = [f'buffer_load_dwordx4 {v(X+4*j,4)}, v{vL16}, {s(S_WS,4)}, {s(sPAR)} offen offset:{1024*j} sc1' for j in range(4)]
        delay(k, CFG['delay_a'] if cons == 'E' else CFG['delay_as'])
        stamp(k, 'a_issue', diag)
        for op in a_ops:
            k(op)
        EA = CFG['extra_a']
        for _ in range(EA):
            delay(k, CFG['gap_a'])
            for op in a_ops:
                k(op)
        k('s_waitcnt lgkmcnt(0)')
        k.label(check)
        for j in range(4):
            k(f's_waitcnt vmcnt({4 * EA + 3 - j})')
            r = X + 4 * j
            k(f'v_bitop3_b32 v{TM + (1 if j else 0)}, v{r}, v{r+2}, {s(sPZ1)} bitop3:0x7e')
            if j:
                k(f'v_or_b32 v{TM}, v{TM}, v{TM+1}')
            k(f'{MF32} {v(D_,4)}, {v(r,4)}, {v(SEL,4)}, {"0" if j == 0 else v(D_,4)}')
        stamp(k, 'a_last', diag)
        k.filler(None)
        k(f'v_and_b32 v{TM}, 1, v{TM}')
        k(f'v_cmp_eq_u32 vcc, {1 if not CFG.get("x_nocomm") else 17}, v{TM}')
        k(f's_cbranch_vccnz {stub}')
        k.credit(4)
        stubs.append(('m', stub, check, cont, a_ops))
        k.label(cont)
        k(f'v_permlane32_swap_b32 v{D_}, v{D_+2}')
        k(f'v_permlane32_swap_b32 v{D_+1}, v{D_+3}')
        k(f'v_pk_add_f32 {v(D_,2)}, {v(D_,2)}, {v(D_+2,2)}')
        k(f'v_cvt_pk_bf16_f32 v{MV}, v{D_}, v{D_+1}')
        pub_local()
        stamp(k, 'pub', diag)
    elif diag:
        diag_store(k)
    k(f's_branch {top}')
    k.filler(None)
    for st_ in stubs:
        if st_[0] == 'm':
            masked_retry_stub(k, st_[1], st_[2], st_[3], st_[4], 1)
        elif st_[0] == 'kv':
            k.label(st_[1])
            kv_flag_wait(k, A3, A3 + 1) if cons != 'E' and cons != 'S' else kv_flag_wait(k, SL[0] + 2, SL[0] + 3)
            k(f's_branch {st_[2]}')
        elif st_[0] == 'r':
            _, stub, cont, ld, mo_, ck = st_
            again, giveup = k.newlabel('rem_again'), k.newlabel('rem_give')
            k.label(stub)
            k(f's_sub_u32 {s(sBUD)}, {s(sBUD)}, 1')
            k(f's_cbranch_scc1 {giveup}')
            k(ld)
            k('s_waitcnt vmcnt(0)')
            k(f'ds_write_b128 v{vLW0}, {v(MISC,4)} offset:{L_R}')
            k('s_waitcnt lgkmcnt(0)')
            for op in mo_:
                k(op)
            k(f'v_cmp_eq_u32 vcc, -1, v{ck}')
            k(f's_cbranch_vccnz {stub}')
            k(f's_branch {cont}')
            k.label(giveup)
            k(f's_mov_b32 {s(sBUD)}, 0')
            k(f's_branch {cont}')
        else:
            _, slow_, back_ = st_
            k.label(slow_)
            k('s_nop 7')
            T4 = SL[3]
            for kt in range(2):
                for j in range(4):
                    k(f'ds_read_b128 {v(T4,4)}, v{vL16} offset:{L_KT + kt*4096 + j*1024}')
                    k('s_waitcnt lgkmcnt(0)')
                    k(f'{MF32} {v(ST+4*kt,4)}, {v(T4,4)}, {v(QTR[j],4)}, {"0" if j == 0 else v(ST+4*kt,4)}')
                    k('s_nop 3')
            for j in range(4):
                for hh in range(2):
                    k(f'ds_read_b64_tr_b16 {v(T4+2*hh,2)}, v{vTR} offset:{L_KX + j*512 + hh*256}')
                k('s_waitcnt lgkmcnt(0)')
                k(f'{MF32} {v(SM,4)}, {v(T4,4)}, {v(QTR[j],4)}, {"0" if j == 0 else v(SM,4)}')
                k('s_nop 3')
            allS = list(range(ST, ST + 8)) + list(range(SM, SM + 4))
            M, M2 = T4, T4 + 1
            k(f'v_max3_f32 v{M}, v{allS[0]}, v{allS[1]}, v{allS[2]}')
            for i in range(3, 11, 2):
                k(f'v_max3_f32 v{M}, v{M}, v{allS[i]}, v{allS[i+1]}')
            k(f'v_max_f32 v{M}, v{M}, v{allS[11]}')
            for sw in ('v_permlane16_swap_b32', 'v_permlane32_swap_b32'):
                k(f'v_mov_b32 v{M2}, v{M}')
                k(f'{sw} v{M}, v{M2}')
                k(f'v_max_f32 v{M}, v{M}, v{M2}')
            for r in allS:
                k(f'v_sub_f32 v{r}, v{r}, v{M}')
            for r in allS:
                ex(r)
            cv(ST, ST); cv(ST + 1, ST + 2); cv(ST + 2, ST + 4); cv(ST + 3, ST + 6)
            cv(SM, SM); cv(SM + 1, SM + 2)
            k(f'{MF32} {v(OA,4)}, {v(VTK,4)}, {v(ST,4)}, 0')
            k(f'{MF32} {v(OA+4,4)}, {v(VTK+4,4)}, {v(ST,4)}, 0')
            k(f'{MF32} {v(SL[3],4)}, {v(ST,4)}, {v(ONES,4)}, 0')
            k('s_nop 7')
            k(f's_branch {back_}')

def emit_team(k, diag, end_label, force_glob=False):
    emit_setup(k)
    w1 = k.newlabel('reg')
    k(f's_cmp_lg_u32 {s(sW)}, 0')
    k(f's_cbranch_scc1 {w1}')
    k(f's_lshl_b32 {s(sT0)}, {s(sFOR)}, 16')
    k(f's_add_u32 {s(sT0)}, {s(sT0)}, 1')
    k(f's_lshl_b32 {s(sT1)}, {s(sPOL)}, 8')
    k(f's_cmp_eq_u32 {s(sX)}, 0')
    k(f's_cselect_b32 {s(sT1)}, {s(sT1)}, 0')
    k(f's_add_u32 {s(sT0)}, {s(sT0)}, {s(sT1)}')
    k(f'v_mov_b32 v30, {s(sT0)}')
    k(f'v_mov_b32 v31, 64')
    k('s_mov_b64 exec, 1')
    k(f'buffer_atomic_add v30, v31, {s(S_DBG,4)}, 0 offen')
    k('s_mov_b64 exec, -1')
    k('s_waitcnt vmcnt(0)')
    k.label(w1)
    stamp(k, 'ld0', diag)
    emit_loader(k)
    stamp(k, 'ld1', diag)
    rp = k.newlabel('mode')
    ok = k.newlabel('modeok')
    k(f'v_mov_b32 v31, 64')
    k.label(rp)
    k(f'buffer_load_dword v30, v31, {s(S_DBG,4)}, 0 offen sc1')
    k('s_waitcnt vmcnt(0)')
    k(f'v_readfirstlane_b32 {s(sT3)}, v30')
    k(f's_and_b32 {s(sT1)}, {s(sT3)}, 0xff')
    k(f's_cmp_ge_u32 {s(sT1)}, 64')
    k(f's_cbranch_scc1 {ok}')
    k(f's_sub_u32 {s(sBUD)}, {s(sBUD)}, 1')
    k(f's_cbranch_scc0 {rp}')
    k(f's_mov_b32 {s(sBUD)}, 0')
    k.label(ok)
    k('s_barrier')
    k(f's_bfe_u32 {s(sT1)}, {s(sT3)}, 0x80008')
    k(f's_cmp_gt_u32 {s(sT1)}, 16')
    k(f's_cselect_b32 {s(sT1)}, {8192 if not CFG.get("invpol") else 0}, {0 if not CFG.get("invpol") else 8192}')
    k(f's_add_u32 {s(cMRR)}, {s(cMRR)}, {s(sT1)}')
    k(f's_add_u32 {s(cMRW)}, {s(cMRW)}, {s(sT1)}')
    emit_prologue(k, None)
    gl = k.newlabel('globmode')
    k(f's_lshr_b32 {s(sT3)}, {s(sT3)}, 16')
    k(f's_cmp_lg_u32 {s(sT3)}, {0 if not force_glob else 12345}')
    k(f's_cbranch_scc1 {gl}')
    for glob in (False, True):
        m = 'g' if glob else 'l'
        if glob:
            k.label(gl)
        k(f's_cmp_eq_u32 {s(sW)}, 0')
        k(f's_cbranch_scc1 rec_entry_E{m}')
        k(f's_cmp_lg_u32 {s(sCI)}, -1')
        k(f's_cbranch_scc1 rec_entry_S{m}')
        emit_loop(k, glob, diag, end_label, None, True, 'P' + m)
        emit_loop(k, glob, diag, end_label, 'E', False, 'E' + m)
        emit_loop(k, glob, diag, end_label, 'S', True, 'S' + m)
```

```python
from asmlib import *
from layout import *

S_WS = 8
S_B0, S_B1 = 12, 16
S_X, S_OUT = 20, 24
sW = 36
sT0, sT1, sT2, sT3 = 54, 55, 56, 57
sA, sB, sM0, sCNT = 40, 41, 42, 43
sE0, sE1, sE2 = 44, 45, 46
MF32 = 'v_mfma_f32_16x16x32_bf16'

def load_srd(k, sreg, karg):
    k(f's_load_dwordx2 {s(sreg,2)}, s[0:1], {karg}')
def fin_srd(k, sreg, nbytes):
    k(f's_and_b32 {s(sreg+1)}, {s(sreg+1)}, 0xffff')
    k(f's_mov_b32 {s(sreg+2)}, {nbytes}')
    k(f's_mov_b32 {s(sreg+3)}, 0x20000')

def bits(k, dst, L, spec, tmp, first=True):
    for i, (pos, width, sh) in enumerate(spec):
        k(f'v_bfe_u32 v{tmp}, v{L}, {pos}, {width}')
        if i == 0 and first:
            k(f'v_lshlrev_b32 v{dst}, {sh}, v{tmp}')
        else:
            k(f'v_lshl_add_u32 v{dst}, v{tmp}, {sh}, v{dst}')

def rbf(k, r, tmp=None):
    k(f'v_cvt_pk_bf16_f32 v{r}, v{r}, v{r}')
    k(f'v_lshlrev_b32 v{r}, 16, v{r}')

def rbf2(k, r0, r1):
    k(f'v_cvt_pk_bf16_f32 v{r1}, v{r0}, v{r1}')
    k(f'v_lshlrev_b32 v{r0}, 16, v{r1}')
    k(f'v_and_b32 v{r1}, 0xffff0000, v{r1}')

def unpack(k, src, lo, hi):
    k(f'v_lshlrev_b32 v{lo}, 16, v{src}')
    k(f'v_and_b32 v{hi}, 0xffff0000, v{src}')

LOG2E = 0x3fb8aa3b

def silu(k, r, t):
    k(f'v_mul_f32 v{t}, 0xbfb8aa3b, v{r}')
    k(f'v_exp_f32 v{t}, v{t}')
    k(f'v_add_f32 v{t}, 1.0, v{t}')
    k(f'v_rcp_f32 v{t}, v{t}')
    k(f'v_mul_f32 v{r}, v{r}, v{t}')

def emit_mod(k, stask, sc=''):
    T, OFF, C0, ACC, W = 1, 2, 4, 16, 32
    k(f'v_lshrrev_b32 v3, 2, v0')
    k(f'v_mul_u32_u24 v{OFF}, {10 * 7680}, v3')
    k(f'v_and_b32 v{T}, 3, v0')
    k(f'v_lshl_add_u32 v{OFF}, v{T}, 4, v{OFF}')
    k(f's_lshl_b32 {s(sT0)}, {s(stask)}, 6')
    for i in range(10):
        k(f'buffer_load_dwordx4 {v(W+4*i,4)}, v{OFF}, {s(S_B0,4)}, {s(sT0)} offen')
        if i < 9:
            k(f's_add_u32 {s(sT0)}, {s(sT0)}, 7680')
    k(f'v_mul_u32_u24 v{T}, 20, v3')
    for i in range(5):
        k(f'buffer_load_dword v{24+i}, v{T}, {s(S_B1,4)}, 0 offen offset:{4*i}')
    k('s_waitcnt vmcnt(0)')
    for i in range(5):
        unpack(k, 24 + i, C0 + 2 * i, C0 + 2 * i + 1)
    for i in range(10):
        silu(k, C0 + i, T)
    for i in range(0, 10, 2):
        rbf2(k, C0 + i, C0 + i + 1)
    for i in range(10):
        for d in range(4):
            unpack(k, W + 4 * i + d, 24, 25)
            if i == 0:
                k(f'v_mul_f32 v{ACC+2*d}, v{C0}, v24')
                k(f'v_mul_f32 v{ACC+2*d+1}, v{C0}, v25')
            else:
                k(f'v_fmac_f32 v{ACC+2*d}, v{C0+i}, v24')
                k(f'v_fmac_f32 v{ACC+2*d+1}, v{C0+i}, v25')
    k(f'v_lshlrev_b32 v{T}, 5, v0')
    k(f'ds_write_b128 v{T}, {v(ACC,4)}')
    k(f'ds_write_b128 v{T}, {v(ACC+4,4)} offset:16')
    k('s_waitcnt lgkmcnt(0)')
    k('s_barrier')
    k(f'v_and_b32 v{T}, 31, v0')
    k(f'v_lshlrev_b32 v{T}, 2, v{T}')
    k(f'v_lshrrev_b32 v3, 5, v0')
    k(f'v_lshl_add_u32 v3, v3, 10, v{T}')
    for i in range(8):
        k(f'ds_read_b32 v{ACC+i}, v3 offset:{128*i}')
    k('s_waitcnt lgkmcnt(0)')
    for i in range(1, 8):
        k(f'v_add_f32 v{ACC}, v{ACC}, v{ACC+i}')
    k(f'v_lshlrev_b32 v3, 2, v0')
    k(f'ds_write_b32 v3, v{ACC} offset:8192')
    k('s_waitcnt lgkmcnt(0)')
    k('s_barrier')
    for i in range(8):
        k(f'ds_read_b32 v{ACC+i}, v{T} offset:{8192 + 128*i}')
    k('s_waitcnt lgkmcnt(0)')
    for i in range(1, 8):
        k(f'v_add_f32 v{ACC}, v{ACC}, v{ACC+i}')
    rbf(k, ACC)
    k(f'v_add_f32 v{ACC+1}, 1.0, v{ACC}')
    rbf(k, ACC + 1)
    k(f's_sub_u32 {s(sT0)}, {s(stask)}, 20')
    k(f's_cmp_lt_u32 {s(sT0)}, 20')
    k(f's_cselect_b32 {s(sT1)}, 1, 0')
    k(f's_sub_u32 {s(sT0)}, {s(stask)}, 80')
    k(f's_cmp_lt_u32 {s(sT0)}, 20')
    k(f's_cselect_b32 {s(sT1)}, 1, {s(sT1)}')
    k(f's_cmp_eq_u32 {s(sT1)}, 1')
    k(f's_cselect_b64 vcc, -1, 0')
    k(f'v_cndmask_b32 v{ACC}, v{ACC}, v{ACC+1}, vcc')
    k(f's_lshl_b32 {s(sT0)}, {s(stask)}, 7')
    k(f's_add_u32 {s(sT0)}, {s(sT0)}, {MOD}')
    k(f'v_cmp_gt_u32 vcc, 32, v0')
    k(f's_and_saveexec_b64 {s(sT2,2)}, vcc')
    skip = k.newlabel('modskip')
    k(f's_cbranch_execz {skip}')
    k(f'buffer_store_dword v{ACC}, v{T}, {s(S_WS,4)}, {s(sT0)} offen{sc}')
    k.label(skip)
    k('s_mov_b64 exec, -1')

def row16_sum(k, r):
    for sh in (1, 2, 4, 8):
        k(f'v_add_f32 v{r}, v{r}, v{r} row_ror:{sh}')

def emit_ln1(k, srow, pre_wait):
    RO, CO, TO, T = 1, 2, 3, 4
    XR, V, SC, SH = 8, 32, 72, 112
    k(f'v_lshrrev_b32 v{T}, 4, v0')
    k(f'v_add_u32 v{T}, {s(srow)}, v{T}')
    k(f'v_mul_u32_u24 v{RO}, 1280, v{T}')
    k(f'v_and_b32 v5, 15, v0')
    k(f'v_lshl_add_u32 v{RO}, v5, 4, v{RO}')
    k(f'v_lshlrev_b32 v{CO}, 5, v5')
    k(f'v_lshrrev_b32 v6, 4, v{T}')
    k(f'v_mul_u32_u24 v{TO}, 20480, v6')
    k(f'v_and_b32 v6, 15, v{T}')
    k(f'v_lshl_add_u32 v{TO}, v6, 4, v{TO}')
    bits(k, TO, 0, [(0, 2, 8), (2, 2, 10)], 6, first=False)
    for i in range(5):
        k(f'buffer_load_dwordx4 {v(XR+4*i,4)}, v{RO}, {s(S_X,4)}, 0 offen offset:{256*i}')
    k('s_waitcnt vmcnt(0)')
    for i in range(20):
        unpack(k, XR + i, V + 2 * i, V + 2 * i + 1)
    MU, VAR, D0 = 5, 6, 28
    k(f'v_pk_add_f32 {v(D0,2)}, {v(V,2)}, {v(V+2,2)}')
    for i in range(4, 40, 2):
        k(f'v_pk_add_f32 {v(D0,2)}, {v(D0,2)}, {v(V+i,2)}')
    k(f'v_add_f32 v{MU}, v{D0}, v{D0+1}')
    row16_sum(k, MU)
    k(f'v_mul_f32 v{MU}, 0x3acccccd, v{MU}')
    k(f'v_mov_b32 v{VAR}, 0')
    for i in range(40):
        k(f'v_sub_f32 v{D0 + (i&1)}, v{V+i}, v{MU}')
        k(f'v_fmac_f32 v{VAR}, v{D0 + (i&1)}, v{D0 + (i&1)}')
    row16_sum(k, VAR)
    k(f'v_mul_f32 v{VAR}, 0x3acccccd, v{VAR}')
    rbf2(k, MU, VAR)
    k(f'v_add_f32 v{VAR}, 0x3727c5ac, v{VAR}')
    rbf(k, VAR)
    k(f'v_sqrt_f32 v{VAR}, v{VAR}')
    rbf(k, VAR)
    k(f'v_rcp_f32 v{D0}, v{VAR}')
    k(f'v_mov_b32 v{D0+2}, v{MU}')
    for i in range(0, 40, 2):
        k(f'v_pk_add_f32 {v(V+i,2)}, {v(V+i,2)}, {v(D0+2,2)} op_sel_hi:[1,0] neg_lo:[0,1] neg_hi:[0,1]')
        rbf2(k, V + i, V + i + 1)
        k(f'v_pk_mul_f32 {v(V+i,2)}, {v(V+i,2)}, {v(D0,2)} op_sel_hi:[1,0]')
        rbf2(k, V + i, V + i + 1)
    pre_wait()
    k(f's_mov_b32 {s(sT0)}, {MOD}')
    k(f's_mov_b32 {s(sT2)}, {MOD + 2560}')
    for i in range(5):
        for h in range(2):
            k(f'buffer_load_dwordx4 {v(SC+8*i+4*h,4)}, v{CO}, {s(S_WS,4)}, {s(sT2)} offen offset:{512*i+16*h} sc1')
            k(f'buffer_load_dwordx4 {v(SH+8*i+4*h,4)}, v{CO}, {s(S_WS,4)}, {s(sT0)} offen offset:{512*i+16*h} sc1')
    OUT = 152
    k(f's_mov_b32 {s(sT1)}, {H}')
    for i in range(5):
        k(f's_waitcnt vmcnt({16 - 3*i})')
        for j in range(8 * i, 8 * i + 8, 2):
            k(f'v_pk_mul_f32 {v(V+j,2)}, {v(V+j,2)}, {v(SC+j,2)}')
            rbf2(k, V + j, V + j + 1)
            k(f'v_pk_add_f32 {v(V+j,2)}, {v(V+j,2)}, {v(SH+j,2)}')
            k(f'v_cvt_pk_bf16_f32 v{OUT+j//2}, v{V+j}, v{V+j+1}')
        k(f'buffer_store_dwordx4 {v(OUT+4*i,4)}, v{TO}, {s(S_WS,4)}, {s(sT1)} offen sc1')
        k(f's_add_u32 {s(sT1)}, {s(sT1)}, 4096')

def b_lane_setup(k, dst, rd0, ldb, perm, T, nbase):
    if perm:
        k(f'v_lshrrev_b32 v{dst}, 2, v0')
    else:
        bits(k, dst, 0, [(4, 2, 3), (2, 2, 0)], T)
    k(f's_mov_b32 {s(sT1)}, {ldb}')
    k(f'v_mul_lo_u32 v{dst}, v{dst}, {s(sT1)}')
    k(f'v_lshrrev_b32 v{T}, 3, v0')
    k(f'v_and_b32 v{T}, 2, v{T}')
    k(f'v_xor_b32 v{T}, v{T}, v0')
    k(f'v_and_b32 v{T}, 3, v{T}')
    k(f'v_lshl_add_u32 v{dst}, v{T}, 4, v{dst}')
    bits(k, rd0, 0, [(2, 4, 6), (4, 1, 5), (0, 2, 3)], T)
    k(f'v_xor_b32 v{rd0+1}, 32, v{rd0}')
    for b in range(1, nbase):
        k(f'v_add_u32 v{rd0+2*b}, {b << 16}, v{rd0}')
        k(f'v_add_u32 v{rd0+2*b+1}, {b << 16}, v{rd0+1}')

def emit_gemm(k, RT, CT, NK, NS, ldb, a_rt_stride, perm, trans, srd_of, name, ldsc='', gcol=None, pre_wait=None, overlap=None, early=False):
    assert NK % NS == 0 and CT % 4 == 0
    NPW = CT // 4
    vAO, T, vRD, vBO = 1, 2, 4, 8
    AB = 16
    BF = AB + NS * RT * 4
    NF = 8
    LA = 6
    assert (NS * CT) % NF == 0
    ACC = 128
    assert BF + 4 * NF <= ACC and ACC + RT * CT * 4 <= 256
    STG = CT * 1024
    assert NS * STG <= 131072
    hrow = 16 if perm else 4
    k(f'v_lshlrev_b32 v{vAO}, 4, v0')
    b_lane_setup(k, vBO, vRD, ldb, perm, T, 2)
    k(f's_and_b32 {s(sT0)}, {s(sW)}, 1')
    k(f's_mul_i32 {s(sT0)}, {s(sT0)}, {hrow * ldb}')
    k(f's_lshr_b32 {s(sT1)}, {s(sW)}, 1')
    k(f's_lshl_b32 {s(sT1)}, {s(sT1)}, 6')
    k(f's_add_u32 {s(sT0)}, {s(sT0)}, {s(sT1)}')
    k(f'v_add_u32 v{vBO}, {s(sT0)}, v{vBO}')
    gcol = gcol or (lambda i: 128 * i)
    for i in range(NPW - 1, -1, -1):
        k(f'v_add_u32 v{vBO+i}, {gcol(i)}, v{vBO}')
    k(f's_lshl_b32 {s(sM0)}, {s(sW)}, 10')
    def b_ops(slot):
        ops = []
        for i in range(NPW):
            ops.append(f's_add_u32 m0, {s(sM0)}, {slot*STG + i*4096}')
            ops.append(f'buffer_load_dwordx4 v{vBO+i}, {s(srd_of(i),4)}, {s(sB)} offen lds')
        ops.append(f's_add_u32 {s(sB)}, {s(sB)}, {32*ldb}')
        return ops
    def a_ops(slot):
        ops = []
        for rt in range(RT):
            if rt == 0:
                ops.append(f'buffer_load_dwordx4 {v(AB+(slot*RT)*4,4)}, v{vAO}, {s(S_WS,4)}, {s(sA)} offen{ldsc}')
            else:
                ops.append(f's_add_u32 {s(sT1)}, {s(sA)}, {rt*a_rt_stride}')
                ops.append(f'buffer_load_dwordx4 {v(AB+(slot*RT+rt)*4,4)}, v{vAO}, {s(S_WS,4)}, {s(sT1)} offen{ldsc}')
        ops.append(f's_add_u32 {s(sA)}, {s(sA)}, 1024')
        return ops
    vm = []
    def emit(ops, tag):
        for op in ops:
            k(op)
            if op.startswith('buffer_'):
                vm.append(tag)
    def vwait(tag):
        idx = [i for i, t in enumerate(vm) if t <= tag]
        n = len(vm) - 1 - max(idx) if idx else len(vm)
        k(f's_waitcnt vmcnt({n})')
        if idx:
            del vm[:max(idx) + 1]
        return n
    for sl in range(NS - 1):
        emit(b_ops(sl), sl)
    if overlap and early:
        overlap(len(vm))
    if pre_wait:
        pre_wait()
    for sl in range(NS - 1):
        emit(a_ops(sl), sl)
    if overlap and not early:
        overlap(len(vm))
    def brd(slot, c, n):
        for hh in range(2):
            o_ = slot * STG + (c >> 1) * 2048 + hh * 1024
            k(f'ds_read_b64_tr_b16 {v(BF + 4*(n%NF) + 2*hh, 2)}, v{vRD + 2*(o_ >> 16) + (c & 1)} offset:{o_ & 0xffff}')
    vwait(0)
    k('s_barrier')
    for n in range(LA):
        brd(0, n, n)
    def body(base, steady):
        n = 0
        for sl in range(NS):
            ks = base + sl
            if steady:
                k(f's_waitcnt vmcnt({(NS-3)*(NPW+RT)})')
            else:
                vwait(ks + 1)
            k('s_barrier')
            ops = b_ops((sl + NS - 1) % NS) + a_ops((sl + NS - 1) % NS)
            for c in range(CT):
                if c % 2 == 0:
                    k(f's_waitcnt lgkmcnt({2*(LA-2)})')
                for rt in range(RT):
                    acc = v(ACC + (rt * CT + c) * 4, 4)
                    A_, B_ = v(AB + (sl * RT + rt) * 4, 4), v(BF + 4 * (n % NF), 4)
                    if trans[c]:
                        A_, B_ = B_, A_
                    k(f'{MF32} {acc}, {A_}, {B_}, {"0" if ks == 0 else acc}')
                    if rt == 0:
                        c2 = c + LA
                        brd(sl if c2 < CT else (sl + 1) % NS, c2 % CT, n + LA)
                    elif ops:
                        emit(ops[:2], ks + NS - 1); del ops[:2]
                n += 1
            assert not ops
    body(0, False)
    k(f's_mov_b32 {s(sCNT)}, {NK // NS - 1}')
    loop = f'{name}_loop'
    k.raw('.p2align 3')
    k.label(loop)
    body(NS, True)
    k(f's_sub_u32 {s(sCNT)}, {s(sCNT)}, 1')
    k(f's_cmp_lg_u32 {s(sCNT)}, 0')
    k(f's_cbranch_scc1 {loop}')
    k('s_waitcnt vmcnt(0) lgkmcnt(0)')
    k('s_barrier')

def emit_burst_b(k, CT, NK, ldb, perm, srd, sBo, lds0):
    STG = CT * 1024
    NKW = (NK + 3) // 4
    assert lds0 + NKW * 4 * STG <= 163840
    hrow = 16 if perm else 4
    b_lane_setup(k, 3, 4, ldb, perm, 2, 1)
    k(f's_mul_i32 {s(sT0)}, {s(sW)}, {32*ldb}')
    k(f's_add_u32 {s(sBo)}, {s(sBo)}, {s(sT0)}')
    k(f's_mul_i32 {s(sM0)}, {s(sW)}, {STG}')
    for i in range(NKW):
        for d in range(CT):
            k(f's_add_u32 m0, {s(sM0)}, {lds0 + i*4*STG + d*1024}')
            k(f's_add_u32 {s(sT0)}, {s(sBo)}, {i*128*ldb + (d & 1)*hrow*ldb + (d >> 1)*64}')
            k(f'buffer_load_dwordx4 v3, {s(srd,4)}, {s(sT0)} offen lds')

def emit_burst(k, CT, NK, ldb, perm, srd, pre_wait, lds0=0, ldsc=' sc1', mid=None, b_done=False):
    assert CT % 2 == 0
    vAO, T, vBO, vRD = 1, 2, 3, 4
    AB = 16
    NF = 8
    BF = AB + NK * 4
    if BF + 4 * NF + 4 * CT > 256:
        NF = 4
    ACC = BF + 4 * NF
    useA = ACC + 4 * CT > 256
    accr = (lambda c: a(4 * c, 4)) if useA else (lambda c: v(ACC + 4 * c, 4))
    STG = CT * 1024
    NKW = (NK + 3) // 4
    assert lds0 + NKW * 4 * STG <= 163840
    hrow = 16 if perm else 4
    if not b_done:
        emit_burst_b(k, CT, NK, ldb, perm, srd, sB, lds0)
    k(f'v_lshlrev_b32 v{vAO}, 4, v0')
    b_lane_setup(k, vBO, vRD, ldb, perm, T, 3)
    if mid:
        mid()
    pre_wait()
    for ks in range(NK):
        if ks and ks % 4 == 0:
            k(f's_add_u32 {s(sA)}, {s(sA)}, 4096')
        k(f'buffer_load_dwordx4 {v(AB+4*ks,4)}, v{vAO}, {s(S_WS,4)}, {s(sA)} offen offset:{(ks&3)*1024}{ldsc}')
    if not b_done:
        k('s_barrier')
    LA = NF - 1
    TOT = NK * CT
    def brd(n):
        ks, c = divmod(n, CT)
        for hh in range(2):
            o_ = lds0 + ks * STG + (c >> 1) * 2048 + hh * 1024
            k(f'ds_read_b64_tr_b16 {v(BF + 4*(n%NF) + 2*hh, 2)}, v{vRD + 2*(o_ >> 16) + (c & 1)} offset:{o_ & 0xffff}')
    for n in range(LA):
        brd(n)
    for n in range(TOT):
        ks, c = divmod(n, CT)
        ahead = min(LA - 1, TOT - 1 - n)
        if c == 0:
            k(f's_waitcnt vmcnt({NK-1-ks}) lgkmcnt({2*ahead})')
        else:
            k(f's_waitcnt lgkmcnt({2*ahead})')
        k(f'{MF32} {accr(c)}, {v(BF + 4*(n%NF),4)}, {v(AB+4*ks,4)}, {"0" if ks == 0 else accr(c)}')
        if n + LA < TOT:
            brd(n + LA)
    assert not useA
    return ACC

def acc_read(k, dst, accidx, n=4):
    for i in range(n):
        k(f'v_accvgpr_read_b32 v{dst+i}, a{accidx+i}')

def emit_qkv_main(k, isq, sRB, sHD, sOUT, name, pre_wait, overlap, RT=2, NS=5):
    CT = 16
    k(f's_lshl_b32 {s(sE1)}, {s(sRB)}, 2')
    k(f's_add_u32 {s(sE1)}, {s(sE1)}, {s(sW)}')
    k(f's_mul_i32 {s(sA)}, {s(sE1)}, {RT*20480}')
    k(f's_add_u32 {s(sA)}, {s(sA)}, {H}')
    k(f's_lshl_b32 {s(sB)}, {s(sHD)}, {9 if isq else 8}')
    if isq:
        emit_gemm(k, RT, CT, 20, NS, 8192, 20480, False, [True] * 16, lambda i: S_B0, name, ' sc1', pre_wait=pre_wait, overlap=overlap, early=True)
    else:
        emit_gemm(k, RT, CT, 20, NS, 8192, 20480, False, [True] * 8 + [False] * 8, lambda i: S_B0 if i < 2 else S_B1, name, ' sc1',
                  gcol=lambda i: 128 * (i & 1), pre_wait=pre_wait, overlap=overlap)
    k(f's_lshl_b32 {s(sOUT)}, {s(sE1)}, {18 if isq else 19}')
    k(f's_lshl_b32 {s(sT1)}, {s(sHD)}, 14')
    k(f's_add_u32 {s(sOUT)}, {s(sOUT)}, {s(sT1)}')
    k(f's_add_u32 {s(sOUT)}, {s(sOUT)}, {QT if isq else KV}')

def emit_qkv_epi(k, isq, sOUT):
    CT, ACC = 16, 128
    n = 0
    def piece(t0, t1, off):
        nonlocal n
        R = 88 + 4 * (n % 10); n += 1
        for i, t in enumerate((t0, t1)):
            k(f'v_cvt_pk_bf16_f32 v{R+2*i}, v{ACC+4*t}, v{ACC+4*t+1}')
            k(f'v_cvt_pk_bf16_f32 v{R+2*i+1}, v{ACC+4*t+2}, v{ACC+4*t+3}')
        if off and off % 4096 == 0:
            k(f's_add_u32 {s(sOUT)}, {s(sOUT)}, 4096')
        k(f'buffer_store_dwordx4 {v(R,4)}, v1, {s(S_WS,4)}, {s(sOUT)} offen offset:{off & 0xfff} sc1')
    for half in range(2):
        if isq or half == 0:
            for kt in range(2):
                for j in range(4):
                    c = 8 * half + 2 * j
                    piece(kt * CT + c, kt * CT + c + 1, half * 8192 + kt * 4096 + j * 1024)
        else:
            for et in range(8):
                piece(8 + et, CT + 8 + et, 8192 + et * 1024)
            k(f's_sub_u32 {s(sT0)}, {s(sOUT)}, {KV + 12288}')
            k(f's_lshr_b32 {s(sT0)}, {s(sT0)}, 2')
            k(f's_add_u32 {s(sT0)}, {s(sT0)}, {KVM}')
            k(f'v_mov_b64 {v(ACC,2)}, -1')
            k(f'v_mov_b64 {v(ACC+2,2)}, -1')
            for i in range(4):
                k(f'buffer_store_dwordx4 {v(ACC,4)}, v1, {s(S_WS,4)}, {s(sT0)} offen offset:{1024*i} sc1')

def emit_att_setup(k):
    k('v_lshlrev_b32 v1, 4, v0')
    bits(k, 2, 0, [(2, 4, 4), (0, 1, 3)], 4)
    bits(k, 3, 0, [(0, 4, 4), (4, 1, 3)], 4)
    k(f's_lshl_b32 {s(sT0)}, {s(sW)}, 12')
    k(f'v_add_u32 v2, {s(sT0)}, v2')
    k(f'v_add_u32 v3, {s(sT0)}, v3')
    k('v_and_b32 v4, 15, v0')
    k('v_lshrrev_b32 v5, 4, v0')
    k('v_lshlrev_b32 v5, 2, v5')
    for r in range(4):
        k(f'v_add_u32 v6, {r}, v5')
        k(f'v_cmp_le_u32 {s(60+2*r,2)}, v6, v4')
    k(f's_mov_b64 {s(68,2)}, 0xffffffff')

def emit_att_task(k, sSEG, sHD, ldsc='', stsc='', wait_kvm=None):
    Q, K_, V_, KMm, VMm, S, P, O = 8, 40, 72, 104, 120, 136, 160, 8
    k(f's_lshl_b32 {s(sT0)}, {s(sSEG)}, 5')
    k(f's_add_u32 {s(sT0)}, {s(sT0)}, {s(sHD)}')
    k(f's_lshl_b32 {s(sT1)}, {s(sT0)}, 13')
    k(f's_add_u32 {s(sT1)}, {s(sT1)}, {QT}')
    k(f's_lshl_b32 {s(sT2)}, {s(sT0)}, 14')
    k(f's_add_u32 {s(sT2)}, {s(sT2)}, {KV}')
    k(f's_lshl_b32 {s(sT3)}, {s(sT0)}, 12')
    k(f's_add_u32 {s(sT3)}, {s(sT3)}, {KVM}')
    def ld8(dst, so):
        for i in range(8):
            if i == 4:
                k(f's_add_u32 {s(so)}, {s(so)}, 4096')
            k(f'buffer_load_dwordx4 {v(dst+4*i,4)}, v1, {s(S_WS,4)}, {s(so)} offen offset:{(i&3)*1024}{ldsc}')
    ld8(Q, sT1); ld8(K_, sT2)
    k(f's_add_u32 {s(sT2)}, {s(sT2)}, 4096')
    ld8(V_, sT2)
    if wait_kvm:
        wait_kvm()
    else:
        k(f's_lshl_b32 m0, {s(sW)}, 12')
        for i in range(4):
            k(f'buffer_load_dwordx4 v1, {s(S_WS,4)}, {s(sT3)} offen offset:{i*1024} lds')
        k('s_waitcnt vmcnt(0)')
    for j in range(4):
        for hh in range(2):
            k(f'ds_read_b64_tr_b16 {v(KMm+4*j+2*hh,2)}, v2 offset:{j*512+hh*256}')
    for et in range(8):
        k(f'ds_read_b64 {v(VMm+2*et,2)}, v3 offset:{2048 + et*256}')
    tiles = [(0, 1), (1, 1), (1, 2), (0, 0), (1, 0)]
    for idx, (qt, t) in enumerate(tiles):
        if idx == 3:
            k('s_waitcnt lgkmcnt(8)')
        for j in range(4):
            A_ = v(KMm + 4 * j, 4) if t == 0 else v(K_ + 16 * (t - 1) + 4 * j, 4)
            D = v(S + 12 * qt + 4 * t, 4)
            k(f'{MF32} {D}, {A_}, {v(Q+16*qt+4*j,4)}, {"0" if j == 0 else D}')
    NEGBIG = 0xce6e6b28
    k(f'v_mov_b32 v6, {NEGBIG}')
    k(f's_mov_b32 {s(sE0)}, 0x3db504f3')
    k(f's_mov_b32 {s(sE1)}, {LOG2E}')
    for qt in range(2):
        regs = list(range(S + 12 * qt, S + 12 * qt + (8 if qt == 0 else 12)))
        for i in range(0, len(regs), 2):
            rbf2(k, regs[i], regs[i + 1])
            k(f'v_mul_f32 v{regs[i]}, {s(sE0)}, v{regs[i]}')
            k(f'v_mul_f32 v{regs[i+1]}, {s(sE0)}, v{regs[i+1]}')
            rbf2(k, regs[i], regs[i + 1])
        for r in range(4):
            k(f'v_cndmask_b32 v{regs[r]}, v6, v{regs[r]}, {s(68,2)}')
            k(f'v_cndmask_b32 v{regs[-4+r]}, v6, v{regs[-4+r]}, {s(60+2*r,2)}')
        M, M2 = 4, 5
        k(f'v_max3_f32 v{M}, v{regs[0]}, v{regs[1]}, v{regs[2]}')
        rest = regs[3:]
        while rest:
            if len(rest) >= 2:
                k(f'v_max3_f32 v{M}, v{M}, v{rest[0]}, v{rest[1]}'); rest = rest[2:]
            else:
                k(f'v_max_f32 v{M}, v{M}, v{rest[0]}'); rest = rest[1:]
        for sw in ('v_permlane16_swap_b32', 'v_permlane32_swap_b32'):
            k(f'v_mov_b32 v{M2}, v{M}')
            k(f'{sw} v{M}, v{M2}')
            k(f'v_max_f32 v{M}, v{M}, v{M2}')
        for r in regs:
            k(f'v_sub_f32 v{r}, v{r}, v{M}')
            k(f'v_mul_f32 v{r}, {s(sE1)}, v{r}')
            k(f'v_exp_f32 v{r}, v{r}')
        k(f'v_add_f32 v{M}, v{regs[0]}, v{regs[1]}')
        for r in regs[2:]:
            k(f'v_add_f32 v{M}, v{M}, v{r}')
        for sw in ('v_permlane16_swap_b32', 'v_permlane32_swap_b32'):
            k(f'v_mov_b32 v{M2}, v{M}')
            k(f'{sw} v{M}, v{M2}')
            k(f'v_add_f32 v{M}, v{M}, v{M2}')
        k(f'v_rcp_f32 v{M}, v{M}')
        for r in regs:
            k(f'v_mul_f32 v{r}, v{r}, v{M}')
        for i in range(2):
            k(f'v_cvt_pk_bf16_f32 v{P+8*qt+4+i}, v{regs[2*i]}, v{regs[2*i+1]}')
        for i in range(4):
            if 4 + 2 * i < len(regs):
                k(f'v_cvt_pk_bf16_f32 v{P+8*qt+i}, v{regs[4+2*i]}, v{regs[4+2*i+1]}')
            else:
                k(f'v_mov_b32 v{P+8*qt+i}, 0')
    k('s_waitcnt lgkmcnt(0)')
    for qt in range(2):
        for et in range(8):
            D = v(O + 32 * qt + 4 * et, 4)
            k(f'{MF32} {D}, {v(V_+4*et,4)}, {v(P+8*qt,4)}, 0')
        for et in range(8):
            D = v(O + 32 * qt + 4 * et, 4)
            k(f'v_mfma_f32_16x16x16_bf16 {D}, {v(VMm+2*et,2)}, {v(P+8*qt+4,2)}, {D}')
    k(f's_lshl_b32 {s(sT0)}, {s(sSEG)}, 18')
    k(f's_lshl_b32 {s(sT1)}, {s(sHD)}, 12')
    k(f's_add_u32 {s(sT0)}, {s(sT0)}, {s(sT1)}')
    k(f's_add_u32 {s(sT0)}, {s(sT0)}, {OO}')
    for qt in range(2):
        for j in range(4):
            R = S + 4 * ((4 * qt + j) % 6)
            for i in range(4):
                k(f'v_cvt_pk_bf16_f32 v{R+i}, v{O+32*qt+8*j+2*i}, v{O+32*qt+8*j+2*i+1}')
            k(f'buffer_store_dwordx4 {v(R,4)}, v1, {s(S_WS,4)}, {s(sT0)} offen offset:{j*1024}{stsc}')
        if qt == 0:
            k(f's_add_u32 {s(sT0)}, {s(sT0)}, {128*1024}')

def emit_wo_task(k, sG, sCB, sSP, CT, NSPLIT, pre_wait):
    NK = 128 // NSPLIT
    k(f's_lshl_b32 {s(sE1)}, {s(sG)}, 2')
    k(f's_add_u32 {s(sE1)}, {s(sE1)}, {s(sW)}')
    k(f's_lshl_b32 {s(sA)}, {s(sE1)}, 17')
    k(f's_mul_i32 {s(sT1)}, {s(sSP)}, {NK*1024}')
    k(f's_add_u32 {s(sA)}, {s(sA)}, {s(sT1)}')
    k(f's_add_u32 {s(sA)}, {s(sA)}, {OO}')
    k(f's_mul_i32 {s(sB)}, {s(sSP)}, {NK*32*1280}')
    k(f's_mul_i32 {s(sT1)}, {s(sCB)}, {CT*32}')
    k(f's_add_u32 {s(sB)}, {s(sB)}, {s(sT1)}')
    k(f's_mul_i32 {s(sE0)}, {s(sSP)}, {2048*2560}')
    k(f's_lshl_b32 {s(sT1)}, {s(sT1)}, 3')
    k(f's_add_u32 {s(sE0)}, {s(sE0)}, {s(sT1)}')
    k(f's_mul_i32 {s(sT1)}, {s(sE1)}, {16*2560}')
    k(f's_add_u32 {s(sE0)}, {s(sE0)}, {s(sT1)}')
    k(f's_add_u32 {s(sE0)}, {s(sE0)}, {PART}')
    def mid():
        k('v_bfe_u32 v12, v0, 2, 2')
        k('v_mul_u32_u24 v12, 10240, v12')
        bits(k, 12, 0, [(4, 2, 6), (0, 2, 4)], 2, first=False)
    ACC = emit_burst(k, CT, NK, 1280, True, S_B0, pre_wait, mid=mid, b_done=True)
    for c in range(CT):
        k(f'buffer_store_dwordx4 {v(ACC+4*c,4)}, v12, {s(S_WS,4)}, {s(sE0)} offen offset:{256*c} sc1')

def emit_ff1_task(k, sG, sCB, CT, pre_wait, lds0=0):
    k(f's_lshl_b32 {s(sE1)}, {s(sG)}, 2')
    k(f's_add_u32 {s(sE1)}, {s(sE1)}, {s(sW)}')
    k(f's_mul_i32 {s(sA)}, {s(sE1)}, 20480')
    k(f's_add_u32 {s(sA)}, {s(sA)}, {H2}')
    k(f's_mul_i32 {s(sB)}, {s(sCB)}, {CT*32}')
    k(f's_mul_i32 {s(sE0)}, {s(sE1)}, {54*1024}')
    k(f's_mul_i32 {s(sT1)}, {s(sCB)}, {CT//2*1024}')
    k(f's_add_u32 {s(sE0)}, {s(sE0)}, {s(sT1)}')
    k(f's_add_u32 {s(sE0)}, {s(sE0)}, {FF}')
    ACC = emit_burst(k, CT, 20, 3456, False, S_B0, pre_wait, lds0=lds0, b_done=True)
    for j in range(CT // 2):
        R = ACC + 8 * j
        for i in range(0, 8, 2):
            rbf2(k, R + i, R + i + 1)
        TT = 16
        for i in range(8):
            k(f'v_mul_f32 v{TT+i}, 0xbfb8aa3b, v{R+i}')
        for i in range(8):
            k(f'v_exp_f32 v{TT+i}, v{TT+i}')
        for i in range(8):
            k(f'v_add_f32 v{TT+i}, 1.0, v{TT+i}')
        for i in range(8):
            k(f'v_rcp_f32 v{TT+i}, v{TT+i}')
        for i in range(0, 8, 2):
            k(f'v_pk_mul_f32 {v(R+i,2)}, {v(R+i,2)}, {v(TT+i,2)}')
        for i in range(4):
            k(f'v_cvt_pk_bf16_f32 v{32+4*j+i}, v{R+2*i}, v{R+2*i+1}')
        k(f'buffer_store_dwordx4 {v(32+4*j,4)}, v1, {s(S_WS,4)}, {s(sE0)} offen offset:{j*1024} sc1')

def emit_ff2_task(k, sG, sCB, CT, pre_wait, lds0=0):
    k(f's_lshl_b32 {s(sE1)}, {s(sG)}, 2')
    k(f's_add_u32 {s(sE1)}, {s(sE1)}, {s(sW)}')
    k(f's_mul_i32 {s(sA)}, {s(sE1)}, {54*1024}')
    k(f's_add_u32 {s(sA)}, {s(sA)}, {FF}')
    k(f's_mul_i32 {s(sB)}, {s(sCB)}, {CT*32}')
    k(f's_mul_i32 {s(sE0)}, {s(sE1)}, {16*1280}')
    k(f's_add_u32 {s(sE0)}, {s(sE0)}, {s(sB)}')
    k(f's_lshl_b32 {s(sE2)}, {s(sB)}, 1')
    k(f's_add_u32 {s(sE2)}, {s(sE2)}, {MOD + 5*2560}')
    def mid():
        k('v_and_b32 v12, 15, v0')
        k('v_mul_u32_u24 v12, 1280, v12')
        bits(k, 12, 0, [(4, 2, 3)], 2, first=False)
        bits(k, 13, 0, [(4, 2, 4)], 2)
        for c in range(CT):
            k(f'buffer_load_dwordx4 {a(8+4*c,4)}, v13, {s(S_WS,4)}, {s(sE2)} offen offset:{64*c} sc1')
    def pw():
        pre_wait()
        k(f's_add_u32 {s(sT0)}, {s(sE0)}, {X1}')
        for c in range(CT):
            k(f'buffer_load_dwordx2 {a(2*c,2)}, v12, {s(S_WS,4)}, {s(sT0)} offen offset:{32*c} sc1')
    ACC = emit_burst(k, CT, 54, 1280, True, S_B0, pw, lds0=lds0, mid=mid, b_done=True)
    XB, GB = 16, 24
    acc_read(k, XB, 0, 2 * CT)
    acc_read(k, GB, 8, 4 * CT)
    for c in range(CT):
        for h in range(2):
            r = ACC + 4 * c + 2 * h
            rbf2(k, r, r + 1)
            k(f'v_pk_mul_f32 {v(r,2)}, {v(r,2)}, {v(GB+4*c+2*h,2)}')
            rbf2(k, r, r + 1)
            unpack(k, XB + 2 * c + h, 6, 7)
            k(f'v_pk_add_f32 {v(r,2)}, {v(r,2)}, v[6:7]')
            k(f'v_cvt_pk_bf16_f32 v{XB+2*c+h}, v{r}, v{r+1}')
        k(f'buffer_store_dwordx2 {v(XB+2*c,2)}, v12, {s(S_OUT,4)}, {s(sE0)} offen offset:{32*c}')

def wave_sum(k, r, t):
    row16_sum(k, r)
    for sw in ('v_permlane16_swap_b32', 'v_permlane32_swap_b32'):
        k(f'v_mov_b32 v{t}, v{r}')
        k(f'{sw} v{r}, v{t}')
        k(f'v_add_f32 v{r}, v{r}, v{t}')

def quad_sum(k, r, t):
    k(f'v_add_f32 v{r}, v{r}, v{r} row_ror:4')
    k(f'v_add_f32 v{r}, v{r}, v{r} row_ror:8')
    for sw in ('v_permlane16_swap_b32', 'v_permlane32_swap_b32'):
        k(f'v_mov_b32 v{t}, v{r}')
        k(f'{sw} v{r}, v{t}')
        k(f'v_add_f32 v{r}, v{r}, v{t}')

def emit_ln2_quad(k, sq, nsplit, pre_wait, ldsx, top_label):
    L16, CO, RO, TO, MU, VAR, T, LX = 1, 2, 3, 4, 5, 6, 7, 10
    D0 = 8
    XR, G, SC, SH, P = 12, 20, 32, 44, 56
    V = P
    NP = 3
    k(f'v_lshlrev_b32 v{L16}, 4, v0')
    k(f's_lshl_b32 {s(sT0)}, {s(sW)}, 8')
    k(f'v_and_b32 v{CO}, 0x3c0, v{L16}')
    k(f'v_lshrrev_b32 v{CO}, 2, v{CO}')
    k(f'v_add_u32 v{CO}, {s(sT0)}, v{CO}')
    k(f'v_and_b32 v{T}, 3, v0')
    k(f'v_mul_u32_u24 v{RO}, 1280, v{T}')
    k(f'v_lshrrev_b32 v{D0}, 1, v{CO}')
    k(f'v_add_u32 v{RO}, v{RO}, v{D0}')
    bits(k, TO, 0, [(5, 1, 10), (3, 2, 8), (0, 2, 4), (2, 1, 3)], D0)
    k(f's_lshl_b32 {s(sT0)}, {s(sW)}, 11')
    k(f'v_add_u32 v{TO}, {s(sT0)}, v{TO}')
    k(f's_lshl_b32 {s(sT0)}, {s(sW)}, 4')
    k(f'v_lshl_add_u32 v{LX}, v{T}, 2, {s(sT0)}')
    k(f'v_lshlrev_b32 v{LX+1}, 2, v{T}')
    last = k.newlabel('ln2n')
    def guarded(fn):
        for p in range(2):
            fn(p)
        sk = k.newlabel('ln2s')
        k(f's_cmp_ge_u32 {s(sW)}, 2'); k(f's_cbranch_scc1 {sk}')
        fn(2)
        k.label(sk)
    for r in [XR + 4, G + 8, G + 10, SC + 8, SC + 10, SH + 8, SH + 10]:
        k(f'v_mov_b64 {v(r,2)}, 0')
    def ld_mod(p):
        for dst, idx in ((G, 2), (SC, 4), (SH, 3)):
            k(f's_mov_b32 {s(sT0)}, {MOD + idx * 2560}')
            k(f'buffer_load_dwordx4 {v(dst+4*p,4)}, v{CO}, {s(S_WS,4)}, {s(sT0)} offen offset:{1024*p} sc1')
    guarded(ld_mod)
    k.label(top_label)
    k(f's_mul_i32 {s(sE0)}, {s(sq)}, 5120')
    guarded(lambda p: k(f'buffer_load_dwordx2 {v(XR+2*p,2)}, v{RO}, {s(S_X,4)}, {s(sE0)} offen offset:{512*p}'))
    pre_wait()
    k(f's_lshl_b32 {s(sT0)}, {s(sE0)}, 1')
    k(f's_lshl_b32 {s(sT1)}, {s(sW)}, 10')
    k(f's_add_u32 {s(sT0)}, {s(sT0)}, {s(sT1)}')
    k(f's_add_u32 {s(sT0)}, {s(sT0)}, {PART}')
    k(f's_cmp_lt_u32 {s(sW)}, 2')
    k(f's_cselect_b32 {s(sT2)}, 2, 1')
    k(f's_lshl_b32 {s(sT2)}, {s(sT2)}, 12')
    for sp in range(nsplit):
        k(f's_add_u32 {s(sT1)}, {s(sT0)}, 4096')
        k(f's_add_u32 {s(sT3)}, {s(sT0)}, {s(sT2)}')
        for p, so in enumerate((sT0, sT1, sT3)):
            k(f'buffer_load_dwordx4 {v(P+12*sp+4*p,4)}, v{L16}, {s(S_WS,4)}, {s(so)} offen sc1')
        k(f's_add_u32 {s(sT0)}, {s(sT0)}, {2048*2560}')
    for sp in range(1, nsplit):
        k(f's_waitcnt vmcnt({3*(nsplit-1-sp)})')
        for i in range(0, 12, 2):
            k(f'v_pk_add_f32 {v(V+i,2)}, {v(V+i,2)}, {v(P+12*sp+i,2)}')
    for i in range(0, 12, 2):
        rbf2(k, V + i, V + i + 1)
        k(f'v_pk_mul_f32 {v(V+i,2)}, {v(V+i,2)}, {v(G+i,2)}')
        rbf2(k, V + i, V + i + 1)
        unpack(k, XR + i // 2, D0, D0 + 1)
        k(f'v_pk_add_f32 {v(V+i,2)}, {v(V+i,2)}, {v(D0,2)}')
        k(f'v_cvt_pk_bf16_f32 v{XR+i//2}, v{V+i}, v{V+i+1}')
        unpack(k, XR + i // 2, V + i, V + i + 1)
    k(f'v_pk_add_f32 {v(D0,2)}, {v(V,2)}, {v(V+2,2)}')
    for i in range(4, 12, 2):
        k(f'v_pk_add_f32 {v(D0,2)}, {v(D0,2)}, {v(V+i,2)}')
    k(f'v_add_f32 v{MU}, v{D0}, v{D0+1}')
    quad_sum(k, MU, T)
    k(f'ds_write_b32 v{LX}, v{MU} offset:{ldsx}')
    k(f's_add_u32 {s(sT1)}, {s(sE0)}, {X1}')
    guarded(lambda p: k(f'buffer_store_dwordx2 {v(XR+2*p,2)}, v{RO}, {s(S_WS,4)}, {s(sT1)} offen offset:{512*p} sc1'))
    def xwave(dst, off):
        k('s_waitcnt lgkmcnt(0)')
        k('s_barrier')
        Q = P + 12
        k(f'ds_read2_b32 {v(Q,2)}, v{LX+1} offset0:{(off)//4} offset1:{(off+16)//4}' if False else f'ds_read_b32 v{Q}, v{LX+1} offset:{off}')
        for i in range(1, 4):
            k(f'ds_read_b32 v{Q+i}, v{LX+1} offset:{off+16*i}')
        k('s_waitcnt lgkmcnt(0)')
        k(f'v_pk_add_f32 {v(Q,2)}, {v(Q,2)}, {v(Q+2,2)}')
        k(f'v_add_f32 v{dst}, v{Q}, v{Q+1}')
        k(f'v_mul_f32 v{dst}, 0x3acccccd, v{dst}')
    xwave(MU, ldsx)
    k(f'v_mov_b32 v{VAR}, 0')
    def acc_var(p):
        for i in range(4 * p, 4 * p + 4):
            k(f'v_sub_f32 v{D0 + (i&1)}, v{V+i}, v{MU}')
            k(f'v_fmac_f32 v{VAR}, v{D0 + (i&1)}, v{D0 + (i&1)}')
    guarded(acc_var)
    quad_sum(k, VAR, T)
    k(f'ds_write_b32 v{LX}, v{VAR} offset:{ldsx + 64}')
    xwave(VAR, ldsx + 64)
    rbf2(k, MU, VAR)
    k(f'v_add_f32 v{VAR}, 0x3727c5ac, v{VAR}')
    rbf(k, VAR)
    k(f'v_sqrt_f32 v{VAR}, v{VAR}')
    rbf(k, VAR)
    k(f'v_rcp_f32 v{D0}, v{VAR}')
    k(f'v_mov_b32 v18, v{MU}')
    OUT = P + 16
    for i in range(0, 12, 2):
        k(f'v_pk_add_f32 {v(V+i,2)}, {v(V+i,2)}, {v(18,2)} op_sel_hi:[1,0] neg_lo:[0,1] neg_hi:[0,1]')
        rbf2(k, V + i, V + i + 1)
        k(f'v_pk_mul_f32 {v(V+i,2)}, {v(V+i,2)}, {v(D0,2)} op_sel_hi:[1,0]')
        rbf2(k, V + i, V + i + 1)
        k(f'v_pk_mul_f32 {v(V+i,2)}, {v(V+i,2)}, {v(SC+i,2)}')
        rbf2(k, V + i, V + i + 1)
        k(f'v_pk_add_f32 {v(V+i,2)}, {v(V+i,2)}, {v(SH+i,2)}')
        k(f'v_cvt_pk_bf16_f32 v{OUT+i//2}, v{V+i}, v{V+i+1}')
    k(f's_lshr_b32 {s(sT0)}, {s(sq)}, 2')
    k(f's_mul_i32 {s(sT0)}, {s(sT0)}, 20480')
    k(f's_and_b32 {s(sT1)}, {s(sq)}, 3')
    k(f's_lshl_b32 {s(sT1)}, {s(sT1)}, 6')
    k(f's_add_u32 {s(sT0)}, {s(sT0)}, {s(sT1)}')
    k(f's_add_u32 {s(sT0)}, {s(sT0)}, {H2}')
    def st_h2(p):
        k(f'buffer_store_dwordx2 {v(OUT+2*p,2)}, v{TO}, {s(S_WS,4)}, {s(sT0)} offen sc1')
        k(f's_add_u32 {s(sT0)}, {s(sT0)}, 8192')
    guarded(st_h2)

sBUD = 53
def emit_wait(k, srd, soff, n, stride, target, t0, t1, lane=0, sleep=2, wg=False):
    top, done = k.newlabel('wt'), k.newlabel('wd')
    if wg:
        k(f's_cmp_lg_u32 {s(sW)}, 0')
        k(f's_cbranch_scc1 {done}')
    k(f'v_min_u32 v{t0}, {n-1}, v{lane}')
    k(f'v_mul_u32_u24 v{t0}, {stride}, v{t0}')
    k.label(top)
    k(f'buffer_load_dword v{t1}, v{t0}, {s(srd,4)}, {s(soff)} offen sc1')
    k('s_waitcnt vmcnt(0)')
    k(f'v_cmp_gt_u32 vcc, {target}, v{t1}')
    k(f's_cbranch_vccz {done}')
    k(f's_sleep {sleep}')
    k(f's_sub_u32 {s(sBUD)}, {s(sBUD)}, 1')
    k(f's_cbranch_scc0 {top}')
    k(f's_mov_b32 {s(sBUD)}, 0')
    k.label(done)
    if wg:
        k('s_barrier')

def emit_signal(k, srd, soff, atomic, t0, t1, vm=0):
    skip = k.newlabel('sg')
    k(f's_waitcnt vmcnt({vm}) lgkmcnt(0)')
    k('s_barrier')
    k(f's_cmp_lg_u32 {s(sW)}, 0')
    k(f's_cbranch_scc1 {skip}')
    k(f'v_mov_b32 v{t0}, 0')
    k(f'v_mov_b32 v{t1}, 1')
    k('s_mov_b64 exec, 1')
    if atomic:
        k(f'buffer_atomic_add v{t1}, v{t0}, {s(srd,4)}, {s(soff)} offen')
    else:
        k(f'buffer_store_dword v{t1}, v{t0}, {s(srd,4)}, {s(soff)} offen sc1')
    k('s_mov_b64 exec, -1')
    k.label(skip)

def emit_signal_last(k, srd, soff, total, goff, t0, t1):
    skip = k.newlabel('sg')
    k('s_waitcnt vmcnt(0) lgkmcnt(0)')
    k('s_barrier')
    k(f's_cmp_lg_u32 {s(sW)}, 0')
    k(f's_cbranch_scc1 {skip}')
    k(f'v_mov_b32 v{t0}, 0')
    k(f'v_mov_b32 v{t1}, 1')
    k('s_mov_b64 exec, 1')
    k(f'buffer_atomic_add v{t1}, v{t0}, {s(srd,4)}, {s(soff)} offen sc0')
    k('s_waitcnt vmcnt(0)')
    k(f'v_readfirstlane_b32 {s(sT0)}, v{t1}')
    k('s_mov_b64 exec, -1')
    k(f's_cmp_lg_u32 {s(sT0)}, {total - 1}')
    k(f's_cbranch_scc1 {skip}')
    k(f'v_mov_b32 v{t0}, {goff}')
    k(f'v_mov_b32 v{t1}, 1')
    k('s_mov_b64 exec, 1')
    k(f'buffer_store_dword v{t1}, v{t0}, {s(srd,4)}, 0 offen sc1')
    k('s_mov_b64 exec, -1')
    k.label(skip)
```

```python
import sys
from asmlib import *
from layout import *
import rec, tok
from tok import *
NAME = 'adaLN_cond__memory_aug_recurrent_mem_tr__dense_activation_silu__prompt'
def desc(name, vgpr, acc):
    return f'''.p2align 6
.amdhsa_kernel {name}
  .amdhsa_next_free_vgpr {vgpr}
  .amdhsa_next_free_sgpr 102
  .amdhsa_accum_offset {acc}
  .amdhsa_group_segment_fixed_size 0
  .amdhsa_kernarg_size 120
  .amdhsa_user_sgpr_count 2
  .amdhsa_user_sgpr_kernarg_segment_ptr 1
  .amdhsa_system_sgpr_workgroup_id_x 1
.end_amdhsa_kernel
'''
XN = 2048 * 640 * 2
S_DBG = rec.S_DBG
sX, sH = rec.sX, rec.sH
sI, sR, sP0, sP1, sP2, sF, sG, sTASK = 70, 71, 72, 73, 74, 75, 76, 77
sJ, sPK, sPO, sPF = 82, 83, 84, 85

def set_srd(k, pairs):
    for sr, ka, nb in pairs:
        load_srd(k, sr, ka)
    k('s_waitcnt lgkmcnt(0)')
    for sr, ka, nb in pairs:
        fin_srd(k, sr, nb)

def div6(k, q, r_, x):
    k(f's_mul_i32 {s(q)}, {s(x)}, 171')
    k(f's_lshr_b32 {s(q)}, {s(q)}, 10')
    k(f's_mul_i32 {s(r_)}, {s(q)}, 6')
    k(f's_sub_u32 {s(r_)}, {s(x)}, {s(r_)}')

DIAG = False
sWT = 78
def wstamp(k, tag):
    if not DIAG:
        return
    skip = k.newlabel('ws')
    k(f's_cmp_lg_u32 {s(sW)}, 0'); k(f's_cbranch_scc1 {skip}')
    k('s_memrealtime s[80:81]')
    k('s_waitcnt lgkmcnt(0)')
    k('v_mov_b32 v124, s80'); k(f'v_mov_b32 v125, {tag}'); k('v_mov_b32 v126, 0')
    k('s_mov_b64 exec, 1')
    k(f'buffer_store_dwordx2 v[124:125], v126, {s(S_WS,4)}, {s(sWT)} offen')
    k('s_mov_b64 exec, -1')
    k(f's_add_u32 {s(sWT)}, {s(sWT)}, 8')
    k.label(skip)

def emit_worker(k, end):
    k(f's_mov_b32 {s(sBUD)}, 0x80000')
    k(f's_sub_u32 {s(sI)}, {s(sX)}, 2')
    k(f's_lshl_b32 {s(sI)}, {s(sI)}, 5')
    k(f's_add_u32 {s(sI)}, {s(sI)}, {s(sH)}')
    k(f's_lshl_b32 {s(sWT)}, {s(sI)}, 10'); k(f's_add_u32 {s(sWT)}, {s(sWT)}, {TS + 0x200000}')
    wstamp(k, 1)
    k(f's_mul_i32 {s(sR)}, {s(sH)}, 6')
    k(f's_add_u32 {s(sR)}, {s(sR)}, {s(sX)}')
    k(f's_sub_u32 {s(sR)}, {s(sR)}, 2')
    set_srd(k, [(S_B0, A_WMOD, 640 * 3840 * 2), (S_B1, A_C, 1280), (S_X, A_X, XN), (S_OUT, A_OUT, XN), (88, A_WK, 5242880), (92, A_WV, 5242880)])
    def warm(t0, t1):
        div6(k, sP2, sG, sI)
        k(f's_mul_i32 {s(sG)}, {s(sG)}, 103')
        k(f's_lshl_b32 {s(sT0)}, {s(sW)}, 5')
        k(f's_add_u32 {s(sG)}, {s(sG)}, {s(sT0)}')
        k(f's_lshl_b32 {s(sG)}, {s(sG)}, 13')
        k(f's_lshl_b32 {s(sT0)}, {s(sP2)}, 8')
        k(f's_add_u32 {s(sG)}, {s(sG)}, {s(sT0)}')
        bits(k, t0, 0, [(1, 5, 13), (0, 1, 7)], t1)
        k(f'buffer_load_dword v{t1}, v{t0}, s[88:91], {s(sG)} offen')
        k(f'buffer_load_dword v{t1}, v{t0}, s[92:95], {s(sG)} offen')
    def tid():
        k(f's_lshl_b32 {s(sT0)}, {s(sW)}, 6'); k(f'v_add_u32 v0, {s(sT0)}, v0')
    def wait1():
        k(f's_mov_b32 {s(sF)}, 96')
        emit_wait(k, S_DBG, sF, 1, 0, 1, 8, 9, sleep=4, wg=True)
    modsub_ret = 82
    doln, fill, nz, p1d = [k.newlabel(x) for x in ('doln', 'fill', 'nz', 'p1d')]
    k(f's_cmp_ge_u32 {s(sR)}, 64'); k(f's_cbranch_scc1 {doln}')
    tid()
    k(f's_cmp_ge_u32 {s(sR)}, 40'); k(f's_cbranch_scc1 {fill}')
    k(f's_cmp_ge_u32 {s(sR)}, 8'); k(f's_cbranch_scc1 {nz}')
    k('v_mov_b64 v[4:5], 0'); k('v_mov_b64 v[6:7], 0')
    k('v_lshlrev_b32 v1, 4, v0')
    k(f's_lshl_b32 {s(sT0)}, {s(sR)}, 12')
    k(f's_add_u32 {s(sT0)}, {s(sT0)}, {FL}')
    k(f'buffer_store_dwordx4 v[4:7], v1, {s(S_WS,4)}, {s(sT0)} offen sc1')
    k.label(nz)
    emit_mod(k, sR, ' sc1')
    k(f's_mov_b32 {s(sF)}, 240')
    emit_signal_last(k, S_DBG, sF, 40, 96, 4, 5)
    k.label(fill)
    wstamp(k, 2)
    k('v_mov_b64 v[4:5], -1'); k('v_mov_b64 v[6:7], -1')
    k('v_lshlrev_b32 v1, 4, v0')
    k(f's_mul_i32 {s(sT0)}, {s(sR)}, 18432')
    k(f's_add_u32 {s(sT0)}, {s(sT0)}, {PA}')
    for i in range(5):
        k(f'buffer_store_dwordx4 v[4:7], v1, {s(S_WS,4)}, {s(sT0)} offen sc1')
        k(f's_add_u32 {s(sT0)}, {s(sT0)}, {4096 if i < 3 else 2048}')
    k('v_and_b32 v0, 63, v0')
    warm(10, 11)
    wait1()
    k(f's_mov_b32 {s(sF)}, {FL_INIT}')
    emit_signal(k, S_WS, sF, True, 4, 5)
    k(f's_branch {p1d}')
    k.label(doln)
    k(f's_sub_u32 {s(sP1)}, {s(sR)}, 64')
    k(f's_lshl_b32 {s(sP0)}, {s(sP1)}, 2'); k(f's_add_u32 {s(sP0)}, {s(sP0)}, {s(sW)}'); k(f's_lshl_b32 {s(sP0)}, {s(sP0)}, 2')
    def wait1s():
        wstamp(k, 2); warm(10, 11); wait1(); wstamp(k, 5)
    emit_ln1(k, sP0, wait1s)
    k(f's_lshr_b32 {s(sF)}, {s(sP1)}, 3'); k(f's_lshl_b32 {s(sF)}, {s(sF)}, 7'); k(f's_add_u32 {s(sF)}, {s(sF)}, {FL_H}')
    emit_signal(k, S_WS, sF, True, 4, 5)
    k.label(p1d)
    k(f's_mov_b32 {s(sJ)}, {s(sR)}')
    wstamp(k, 3)
    k(f's_mov_b32 {s(sR)}, 0')
    rtop, doq, dokv, rnext, r3 = [k.newlabel(x) for x in ('rtop', 'doq', 'dokv', 'rnext', 'r3')]
    def late_signal(n):
        e3 = k.newlabel('e')
        k(f's_cmp_eq_u32 {s(sR)}, 0'); k(f's_cbranch_scc1 {e3}')
        emit_signal(k, S_WS, sPF, False, 14, 15, vm=n)
        wstamp(k, 4)
        k.label(e3)
    k.label(rtop)
    div6(k, sP1, sP0, sI)
    k(f's_cmp_eq_u32 {s(sR)}, 0'); k(f's_cbranch_scc1 {dokv}')
    k(f's_cmp_eq_u32 {s(sR)}, 3'); k(f's_cbranch_scc1 {r3}')
    k(f's_add_u32 {s(sP0)}, {s(sP0)}, 6')
    k(f's_cmp_eq_u32 {s(sR)}, 2'); k(f's_cbranch_scc1 {dokv}')
    k(f's_bitcmp0_b32 {s(sP1)}, 0')
    k(f's_cselect_b32 {s(sT0)}, 6, 0')
    k(f's_sub_u32 {s(sP0)}, {s(sP0)}, {s(sT0)}')
    k(f's_lshr_b32 {s(sP1)}, {s(sP1)}, 1')
    k(f's_branch {doq}')
    k.label(r3)
    k(f's_add_u32 {s(sP0)}, {s(sP0)}, 12')
    k(f's_cmp_lt_u32 {s(sP0)}, 16'); k(f's_cbranch_scc1 {dokv}')
    k(f's_and_b32 {s(sT0)}, {s(sP1)}, 1')
    k(f's_lshl_b32 {s(sT0)}, {s(sT0)}, 1')
    k(f's_add_u32 {s(sP0)}, {s(sP0)}, {s(sT0)}')
    k(f's_sub_u32 {s(sP0)}, {s(sP0)}, 4')
    k(f's_lshr_b32 {s(sP1)}, {s(sP1)}, 1')
    def waitH():
        sk = k.newlabel('hs')
        k(f's_cmp_lg_u32 {s(sR)}, 0'); k(f's_cbranch_scc1 {sk}')
        k(f's_lshl_b32 {s(sF)}, {s(sP0)}, 7'); k(f's_add_u32 {s(sF)}, {s(sF)}, {FL_H}')
        emit_wait(k, S_WS, sF, 1, 0, 8, 14, 15, sleep=3, wg=True)
        wstamp(k, 6)
        k.label(sk)
    def waitHall():
        sk = k.newlabel('hs')
        k(f's_cmp_lg_u32 {s(sR)}, 1'); k(f's_cbranch_scc1 {sk}')
        k(f's_mov_b32 {s(sF)}, {FL_H}')
        emit_wait(k, S_WS, sF, 16, 128, 8, 14, 15, sleep=6, wg=True)
        k.label(sk)
    def pend(base, kind):
        k(f's_lshl_b32 {s(sPF)}, {s(sP1)}, 7'); k(f's_lshl_b32 {s(sT0)}, {s(sP0)}, 2')
        k(f's_add_u32 {s(sPF)}, {s(sPF)}, {s(sT0)}'); k(f's_add_u32 {s(sPF)}, {s(sPF)}, {base}')
    k.label(doq)
    set_srd(k, [(S_B0, A_WQ, 5242880)])
    emit_qkv_main(k, True, sP0, sP1, sPO, 'qq', waitHall, late_signal)
    emit_qkv_epi(k, True, sPO)
    pend(FL_Q, 2)
    k(f's_branch {rnext}')
    k.label(dokv)
    set_srd(k, [(S_B0, A_WK, 5242880), (S_B1, A_WV, 5242880)])
    emit_qkv_main(k, False, sP0, sP1, sPO, 'kv', waitH, late_signal)
    wstamp(k, 7)
    emit_qkv_epi(k, False, sPO)
    pend(FL_KV, 1)
    k.label(rnext)
    k(f's_add_u32 {s(sR)}, {s(sR)}, 1')
    k(f's_cmp_lt_u32 {s(sR)}, 4'); k(f's_cbranch_scc1 {rtop}')
    late_signal(0)
    nom = k.newlabel('nom')
    k(f's_cmp_ge_u32 {s(sJ)}, 80'); k(f's_cbranch_scc1 {nom}')
    set_srd(k, [(S_B0, A_WMOD, 640 * 3840 * 2), (S_B1, A_C, 1280)])
    k(f's_add_u32 {s(sJ)}, {s(sJ)}, 40')
    tid()
    emit_mod(k, sJ, ' sc1')
    k('v_and_b32 v0, 63, v0')
    k(f's_mov_b32 {s(sF)}, {FL_INIT + 128}')
    emit_signal(k, S_WS, sF, True, 4, 5)
    k.label(nom)
    att, rff1, rff2, rln = k.newlabel('att'), k.newlabel('rff1'), k.newlabel('rff2'), k.newlabel('rln')
    k(f's_and_b32 {s(sG)}, {s(sX)}, 1')
    def gflag(base):
        k(f's_lshl_b32 {s(sF)}, {s(sG)}, 7'); k(f's_add_u32 {s(sF)}, {s(sF)}, {base}')
    def gnext(top, inc=2):
        k(f's_add_u32 {s(sG)}, {s(sG)}, {inc}')
        k(f's_cmp_lt_u32 {s(sG)}, 32'); k(f's_cbranch_scc1 {top}')
        k(f's_branch {end}')
    def b_ready(wait_mod):
        if wait_mod:
            k(f's_mov_b32 {s(sF)}, {FL_INIT + 128}')
            emit_wait(k, S_WS, sF, 1, 0, 80, 14, 15, sleep=8, wg=True)
        k('s_waitcnt vmcnt(0)'); k('s_barrier')
    k(f's_cmp_ge_u32 {s(sX)}, 6'); k(f's_cbranch_scc1 {rff2}')
    k(f's_cmp_ge_u32 {s(sX)}, 4'); k(f's_cbranch_scc1 {rff1}')
    set_srd(k, [(S_B0, A_WO, 5242880)])
    k(f's_lshr_b32 {s(sP1)}, {s(sH)}, 2'); k(f's_and_b32 {s(sP0)}, {s(sH)}, 3')
    k(f's_mul_i32 {s(sB)}, {s(sP1)}, {16*32*1280}'); k(f's_mul_i32 {s(sT1)}, {s(sP0)}, 320'); k(f's_add_u32 {s(sB)}, {s(sB)}, {s(sT1)}')
    emit_burst_b(k, 10, 16, 1280, True, S_B0, sB, 0)
    b_ready(False)
    top = k.newlabel('wotop'); k.label(top)
    def waitA():
        k(f's_lshl_b32 {s(sF)}, {s(sG)}, 6'); k(f's_lshl_b32 {s(sT0)}, {s(sP1)}, 2')
        k(f's_add_u32 {s(sF)}, {s(sF)}, {s(sT0)}'); k(f's_add_u32 {s(sF)}, {s(sF)}, {FL_ATT}')
        k(f's_lshr_b32 {s(sT0)}, {s(sW)}, 1'); k(f's_lshl_b32 {s(sT0)}, {s(sT0)}, 5'); k(f's_add_u32 {s(sF)}, {s(sF)}, {s(sT0)}')
        emit_wait(k, S_WS, sF, 1, 0, 1, 14, 15, sleep=4)
        wstamp(k, 10)
    emit_wo_task(k, sG, sP0, sP1, 10, 8, waitA)
    gflag(FL_WO); emit_signal(k, S_WS, sF, True, 4, 5)
    wstamp(k, 11)
    gnext(top)
    k.label(rff1)
    g5 = k.newlabel('g5')
    k(f's_cmp_eq_u32 {s(sX)}, 5'); k(f's_cbranch_scc1 {g5}')
    k(f's_cmp_ge_u32 {s(sH)}, 27'); k(f's_cbranch_scc1 {end}')
    set_srd(k, [(S_B0, A_W1, 640 * 1728 * 2)])
    k(f's_lshl_b32 {s(sB)}, {s(sH)}, 7')
    emit_burst_b(k, 4, 20, 3456, False, S_B0, sB, 0)
    b_ready(False)
    top = k.newlabel('f1top'); k.label(top)
    def waitL():
        gflag(FL_LN); emit_wait(k, S_WS, sF, 1, 0, 16, 14, 15, sleep=4, wg=True); wstamp(k, 14)
    emit_ff1_task(k, sG, sH, 4, waitL, lds0=0)
    gflag(FL_FF); emit_signal(k, S_WS, sF, True, 4, 5)
    wstamp(k, 15)
    gnext(top, 1)
    k.label(g5)
    k(f's_sub_u32 {s(sTASK)}, {s(sH)}, 16')
    k(f's_cmp_ge_u32 {s(sH)}, 16'); k(f's_cbranch_scc1 {att}')
    k(f's_mov_b32 {s(sTASK)}, {s(sH)}')
    k.label(rln)
    b_ready(True)
    k(f's_and_b32 {s(sG)}, {s(sTASK)}, 1')
    k(f's_lshr_b32 {s(sTASK)}, {s(sTASK)}, 1')
    k(f's_lshl_b32 {s(sP0)}, {s(sG)}, 4'); k(f's_add_u32 {s(sP0)}, {s(sP0)}, {s(sTASK)}')
    top = k.newlabel('lntop')
    def waitW():
        gflag(FL_WO); emit_wait(k, S_WS, sF, 1, 0, 32, 8, 9, sleep=4, wg=True); wstamp(k, 12)
    emit_ln2_quad(k, sP0, 8, waitW, 0, top)
    gflag(FL_LN); emit_signal(k, S_WS, sF, True, 8, 9)
    wstamp(k, 13)
    k(f's_add_u32 {s(sP0)}, {s(sP0)}, 32')
    gnext(top)
    k.label(rff2)
    k(f's_lshl_b32 {s(sT0)}, {s(sG)}, 2'); k(f's_add_u32 {s(sTASK)}, {s(sT0)}, {s(sH)}'); k(f's_sub_u32 {s(sTASK)}, {s(sTASK)}, 12')
    k(f's_cmp_ge_u32 {s(sH)}, 28'); k(f's_cbranch_scc1 {att}')
    k(f's_lshl_b32 {s(sT0)}, {s(sG)}, 3'); k(f's_add_u32 {s(sTASK)}, {s(sT0)}, {s(sH)}'); k(f's_sub_u32 {s(sTASK)}, {s(sTASK)}, 4')
    k(f's_cmp_ge_u32 {s(sH)}, 20'); k(f's_cbranch_scc1 {rln}')
    set_srd(k, [(S_B0, A_W2, 640 * 1728 * 2)])
    k(f's_lshl_b32 {s(sB)}, {s(sH)}, 6')
    emit_burst_b(k, 2, 54, 1280, True, S_B0, sB, 0)
    b_ready(True)
    top = k.newlabel('f2top'); k.label(top)
    def waitF():
        gflag(FL_FF); emit_wait(k, S_WS, sF, 1, 0, 27, 14, 15, sleep=4, wg=True); wstamp(k, 16)
    emit_ff2_task(k, sG, sH, 2, waitF)
    wstamp(k, 17)
    gnext(top)
    k.label(att)
    emit_att_setup(k)
    k(f's_lshr_b32 {s(sG)}, {s(sTASK)}, 3')
    k(f's_and_b32 {s(sTASK)}, {s(sTASK)}, 7')
    k(f's_lshl_b32 {s(sP1)}, {s(sTASK)}, 2'); k(f's_add_u32 {s(sP1)}, {s(sP1)}, {s(sW)}')
    k(f's_lshl_b32 {s(sF)}, {s(sP1)}, 7'); k(f's_add_u32 {s(sF)}, {s(sF)}, {FL_KV}')
    emit_wait(k, S_WS, sF, 16, 4, 1, 4, 5)
    k(f's_lshr_b32 {s(sF)}, {s(sP1)}, 1'); k(f's_lshl_b32 {s(sF)}, {s(sF)}, 7'); k(f's_add_u32 {s(sF)}, {s(sF)}, {FL_Q}')
    emit_wait(k, S_WS, sF, 16, 4, 1, 4, 5)
    atop = k.newlabel('atop')
    k.label(atop)
    def wait_kvm():
        top, done = k.newlabel('km'), k.newlabel('kmd')
        X = 136
        k.label(top)
        for i in range(4):
            k(f'buffer_load_dwordx4 {v(X+4*i,4)}, v1, {s(S_WS,4)}, {s(sT3)} offen offset:{i*1024} sc1')
        k('s_waitcnt vmcnt(0)')
        for op in rec.max_ops(range(X, X + 16), 4):
            k(op)
        k('v_cmp_eq_u32 vcc, -1, v4')
        k(f's_cbranch_vccz {done}')
        k('s_sleep 4')
        k(f's_sub_u32 {s(sBUD)}, {s(sBUD)}, 1')
        k(f's_cbranch_scc0 {top}')
        k(f's_mov_b32 {s(sBUD)}, 0')
        k.label(done)
        wstamp(k, 20)
        k(f's_lshl_b32 {s(sT0)}, {s(sW)}, 12')
        k(f'v_add_u32 v4, {s(sT0)}, v1')
        for i in range(4):
            k(f'ds_write_b128 v4, {v(X+4*i,4)} offset:{i*1024}')
        k('s_waitcnt lgkmcnt(0)')
    emit_att_task(k, sG, sP1, ' sc1', ' sc1', wait_kvm)
    k(f's_lshl_b32 {s(sF)}, {s(sG)}, 5'); k(f's_lshl_b32 {s(sT0)}, {s(sTASK)}, 2')
    k(f's_add_u32 {s(sF)}, {s(sF)}, {s(sT0)}'); k(f's_add_u32 {s(sF)}, {s(sF)}, {FL_ATT}')
    emit_signal(k, S_WS, sF, False, 4, 5)
    wstamp(k, 21)
    k(f's_add_u32 {s(sG)}, {s(sG)}, 3')
    k(f's_cmp_lt_u32 {s(sG)}, 64'); k(f's_cbranch_scc1 {atop}')

def build(as_list=True, diag=False):
    global DIAG
    DIAG = diag
    k = Asm()
    n = 'main_kernel' if as_list else NAME + '_kernel'
    k.raw(f'.globl {n}\n.p2align 8\n.type {n},@function'); k.label(n)
    rec.emit_role(k, 'main_end0')
    k(f's_cmp_ge_u32 {s(sX)}, 8'); k('s_cbranch_scc1 main_end0')
    k(f's_cmp_ge_u32 {s(sX)}, 2'); k('s_cbranch_scc1 main_worker')
    rec.emit_team(k, diag, 'main_end0')
    k.label('main_end0'); k('s_endpgm')
    k.label('main_worker')
    emit_worker(k, 'main_end')
    k.label('main_end'); k('s_endpgm')
    if as_list:
        head = f'; @launch kernel={n} grid=(256,1,1) block=(256,1,1) lds=163840\n'
    else:
        head = '; @launch grid=(256,1,1) block=(256,1,1) lds=163840\n'
    head += '.amdgcn_target "amdgcn-amd-amdhsa--gfx950"\n.text\n'
    return head + k.text() + '.section .rodata,"a"\n' + desc(n, 512, 256)
if __name__ == '__main__':
    rec.CFG.update(fused=True)
    for a_ in sys.argv[1:]:
        if '=' in a_:
            kk, vv = a_.split('=', 1); rec.CFG[kk] = eval(vv)
    open('v2.s', 'w').write(build(True, 'diag' in sys.argv))
    hdr = open('cdna_kernels/' + NAME + '.s.ref').read().split('\n')[:16]
    open('v2_final.s', 'w').write('\n'.join(hdr) + '\n' + build(False, False))
```

```python
WS_SIZE = 268435456
MOD   = 0x0000000
FILL0 = 0x0280000
MB    = 0x0280000
PA    = 0x02A0000
PA_BT = 48 * 4096
TWN   = 0x0300000
GW    = 0x0300000
FL    = 0x0240000
FL_INIT = FL
FL_H  = FL + 0x400
FL_KV = FL + 0x1000
FL_Q  = FL + 0x2000
FL_ATT = FL + 0x3000
FL_WO = FL + 0x4000
FL_LN = FL + 0x8000
FL_FF = FL + 0xC000
HINT  = 0x0281800
CAL   = 0x0220000
TS    = 0x0500000
H     = 0x0800000
X1    = 0x0C00000
H2    = 0x1000000
FF    = 0x1400000
QT    = 0x2000000
KV    = 0x3000000
KVM   = 0x5000000
OO    = 0x7000000
PART  = 0x8000000
A_X, A_MEM0, A_WQ, A_WK, A_WV, A_WO, A_SEG, A_BX, A_W1, A_W2, A_C, A_WMOD, A_OUT, A_DBG, A_WS = [8 * i for i in range(15)]
```

```python
from asmlib import *
from layout import *
import tok

S_WS = 8
S_WQ, S_WK, S_WV, S_WO = 12, 16, 20, 24
S_M0 = 28
S_DBG = 32
sW, sH, sX, sFOR = 36, 37, 38, 39
sSTEP = 40
sPAW, sPAR = 41, 42
sMLR, sMRR = 43, 44
sMLW, sMRW, sMLZ, sMRZ = 45, 46, 47, 48
sKV, sOW, sPUBK, sGW = 49, 50, 51, 52
sRETRY, sPZ0, sPZ1, sPOL, sKNOWN, sKVF = 101, 4, 5, 6, 7, 3
sBUD = 53
sT0, sT1, sT2, sT3 = 54, 55, 56, 57
sC = 58
sMASK_LO8 = 60
sMASK_OW = 62
sMASK_LT32 = 64
sMASK_GE32 = 66
sCI = 68
sTS = 69
sTM = 70
sB0, sB1_, sB2_ = 90, 91, 92
sROWO, sROWR = 94, 95
sKVM0, sTCH = 93, 100
cMLR, cMRR, cMLW, cMRW = 96, 97, 98, 99

vL16, vL16X, vIDX, vPERM, vPAE, vPAS, vXW, vTR, vPUB, vLW0, vLW1, vLW2 = range(12)
ONES = 12
sLIM = 92
L_SEL, L_JUNK, L_TCH = 0, 13312, 1024
ACCQ, ACCK, ACCV, AW = 16, 20, 24, 28
SL = [44 + 8 * i for i in range(4)]
MISC = 76
VW0 = 80

L_M, L_QX, L_KX, L_R, L_OX, L_KT, L_VT = 2048, 2048, 4096, 8192, 9216, 16384, 24576

def opreg(i):
    return a(8 * i, 8) if i < 32 else v(VW0 + 8 * (i - 32), 8)
def opreg_pair(i, q):
    return a(8 * i + 2 * q, 2) if i < 32 else v(VW0 + 8 * (i - 32) + 2 * q, 2)

LDS_STAGES = [('v', c, 0) for c in range(5)] + [('o', 0, 0), ('o', 1, 0), ('o', 1, 2)]
G_STAGE = ('k', 9, 0)
ALL_STAGES = [(m, c, 0) for m in 'qkv' for c in range(10)] + [('o', u, p) for u in range(2) for p in range(3)]
REG_STAGES = [st for st in ALL_STAGES if st not in LDS_STAGES and st != G_STAGE]
ORDER = [G_STAGE] + REG_STAGES + LDS_STAGES
assert len(ORDER) == 36
PLACE = {}
_n = 0
for st in REG_STAGES:
    for t in range(2):
        PLACE[st + (t,)] = ('r', _n); _n += 1
assert _n == 54
for i, st in enumerate(LDS_STAGES):
    for t in range(2):
        PLACE[st + (t,)] = ('l', 32768 + 16384 * i + 8192 * t)
for t in range(2):
    PLACE[G_STAGE + (t,)] = ('g', 2048 * t)

CFG = dict(delay_a=56, delay_as=56, extra_a=1, gap_a=28, delay_b=40, extra_b=1, gap_b=32, rem_chk=20, delay_r=0, v_before=4, delay_k=24, lim=0x67800000, fill=True, pol=0, fused=False, stamps=['top','preB1','locdone','preB2','B4','presm','preB5','wodone','pub'])

def lds_w_addr(off):
    return (vLW0, vLW1, vLW2)[off >> 16], off & 0xffff

def srd_fin(k, sreg, nbytes):
    k(f's_and_b32 {s(sreg+1)}, {s(sreg+1)}, 0xffff')
    k(f's_mov_b32 {s(sreg+2)}, {nbytes}')
    k(f's_mov_b32 {s(sreg+3)}, 0x20000')

def emit_role(k, exit_label):
    k('s_cmp_ge_u32 s2, 256')
    k(f's_cbranch_scc1 {exit_label}')
    for sr, ka in ((S_WS, A_WS), (S_WQ, A_WQ), (S_WK, A_WK), (S_WV, A_WV), (S_WO, A_WO), (S_M0, A_MEM0), (S_DBG, A_DBG)):
        k(f's_load_dwordx2 {s(sr,2)}, s[0:1], {ka}')
    k(f'v_lshrrev_b32 v1, 6, v0')
    k(f'v_and_b32 v0, 63, v0')
    k(f'v_readfirstlane_b32 {s(sW)}, v1')
    k(f's_getreg_b32 {s(sT0)}, hwreg(HW_REG_XCC_ID, 0, 4)')
    k(f's_and_b32 {s(sT0)}, {s(sT0)}, 7')
    k('s_waitcnt lgkmcnt(0)')
    for sr, nb in ((S_WS, WS_SIZE), (S_WQ, 5242880), (S_WK, 5242880), (S_WV, 5242880), (S_WO, 5242880), (S_M0, 10240), (S_DBG, 256)):
        srd_fin(k, sr, nb)
    lw, lt, lg, lc = k.newlabel('role_wait'), k.newlabel('role_try'), k.newlabel('role_got'), k.newlabel('role_cal')
    k(f's_cmp_eq_u32 {s(sW)}, 1')
    k(f's_cbranch_scc1 {lc}')
    k(f's_cmp_lg_u32 {s(sW)}, 0')
    k(f's_cbranch_scc1 {lw}')
    k(f's_mov_b32 {s(sX)}, {s(sT0)}')
    k(f's_mov_b32 {s(sT1)}, 1')
    k('s_mov_b64 exec, 1')
    k.label(lt)
    k('v_mov_b32 v2, 1')
    k(f's_lshl_b32 {s(sT2)}, {s(sX)}, 4')
    k(f's_cmp_lt_u32 {s(sX)}, 2')
    k(f's_cselect_b32 {s(sT3)}, 0, 96')
    k(f's_add_u32 {s(sT2)}, {s(sT2)}, {s(sT3)}')
    k(f'v_mov_b32 v3, {s(sT2)}')
    k(f'buffer_atomic_add v2, v3, {s(S_DBG,4)}, 0 offen sc0')
    k('s_waitcnt vmcnt(0)')
    k(f'v_readfirstlane_b32 {s(sH)}, v2')
    k(f's_cmp_lt_u32 {s(sH)}, 32')
    k(f's_cbranch_scc1 {lg}')
    k(f's_add_u32 {s(sT1)}, {s(sT1)}, 1')
    k(f's_and_b32 {s(sX)}, {s(sT1)}, 7')
    k(f's_cmp_lt_u32 {s(sT1)}, 10')
    k(f's_cbranch_scc1 {lt}')
    k(f's_mov_b32 {s(sX)}, 8')
    k.label(lg)
    k(f's_lshl_b32 {s(sT2)}, {s(sX)}, 8')
    k(f's_or_b32 {s(sT2)}, {s(sT2)}, {s(sH)}')
    k(f'v_mov_b32 v2, {s(sT2)}')
    k('v_mov_b32 v3, 0')
    k('ds_write_b32 v3, v2')
    k('s_mov_b64 exec, -1')
    k('s_waitcnt lgkmcnt(0)')
    k(f's_branch {lw}')
    k.label(lc)
    k(f's_cmp_lg_u32 {s(sT0)}, 0')
    k(f's_cbranch_scc1 {lw}')
    k(f's_lshr_b32 {s(sT1)}, s2, 3')
    k(f's_and_b32 {s(sT1)}, {s(sT1)}, 31')
    k(f's_lshl_b32 {s(sT1)}, {s(sT1)}, 7')
    k(f's_add_u32 {s(sT1)}, {s(sT1)}, {CAL}')
    k(f's_add_u32 {s(sT2)}, {s(sT1)}, 8192')
    k('v_mov_b32 v3, 0')
    k('s_mov_b64 exec, 1')
    k(f'buffer_store_dword v3, v3, {s(S_WS,4)}, {s(sT1)} offen sc1')
    k(f'buffer_store_dword v3, v3, {s(S_WS,4)}, {s(sT2)} offen sc1')
    k('s_waitcnt vmcnt(0)')
    k('s_memtime s[70:71]')
    k(f'buffer_store_dword v3, v3, {s(S_WS,4)}, {s(sT1)} offen sc1')
    k('s_waitcnt vmcnt(0)')
    k('s_memtime s[72:73]')
    k(f'buffer_store_dword v3, v3, {s(S_WS,4)}, {s(sT2)} offen sc1')
    k('s_waitcnt vmcnt(0)')
    k('s_memtime s[74:75]')
    k('s_waitcnt lgkmcnt(0)')
    k('s_sub_u32 s70, s72, s70')
    k('s_sub_u32 s72, s74, s72')
    k('s_cmp_lt_u32 s72, s70')
    k(f's_cselect_b32 {s(sT1)}, 1, 0')
    k(f'v_mov_b32 v2, {s(sT1)}')
    k('ds_write_b32 v3, v2 offset:4')
    k('s_mov_b64 exec, -1')
    k('s_waitcnt lgkmcnt(0)')
    k.label(lw)
    k('s_barrier')
    k('v_mov_b32 v3, 0')
    k('ds_read_b64 v[4:5], v3')
    k('s_waitcnt lgkmcnt(0)')
    k(f'v_readfirstlane_b32 {s(sT2)}, v4')
    k(f'v_readfirstlane_b32 {s(sPOL)}, v5')
    k(f's_and_b32 {s(sPOL)}, {s(sPOL)}, 1')
    k(f's_lshr_b32 {s(sX)}, {s(sT2)}, 8')
    k(f's_and_b32 {s(sH)}, {s(sT2)}, 31')
    k(f's_cmp_lg_u32 {s(sX)}, {s(sT0)}')
    k(f's_cselect_b32 {s(sFOR)}, 1, 0')
    k('s_barrier')

def bits(k, dst, L, spec, tmp, first=True):
    for i, (pos, width, sh) in enumerate(spec):
        k(f'v_bfe_u32 v{tmp}, v{L}, {pos}, {width}')
        if i == 0 and first:
            k(f'v_lshlrev_b32 v{dst}, {sh}, v{tmp}')
        else:
            k(f'v_lshl_add_u32 v{dst}, v{tmp}, {sh}, v{dst}')

def emit_setup(k):
    L, T = 20, 23
    k(f'v_mov_b32 v{L}, v0')
    k(f'v_lshlrev_b32 v{vL16}, 4, v{L}')
    k(f'v_xor_b32 v{vL16X}, 128, v{vL16}')
    k(f's_mov_b32 {s(sMASK_LO8)}, 0x00ff00ff')
    k(f's_mov_b32 {s(sMASK_LO8+1)}, 0x00ff00ff')
    k(f's_mov_b64 {s(sMASK_LT32,2)}, 0xffffffff')
    k(f's_not_b64 {s(sMASK_GE32,2)}, {s(sMASK_LT32,2)}')
    k(f's_not_b64 {s(sMASK_OW,2)}, {s(sMASK_LO8,2)}')
    k(f's_bitcmp1_b32 {s(sW)}, 0')
    k(f's_cselect_b64 {s(sMASK_OW,2)}, {s(sMASK_OW,2)}, {s(sMASK_LO8,2)}')
    k(f'v_mov_b32 v21, 0xeeee')
    k(f'v_mov_b32 v22, 0x4444')
    k(f'v_cndmask_b32 v{vIDX}, v21, v22, {s(sMASK_LO8,2)}')
    bits(k, vPERM, L, [(3, 1, 9), (4, 1, 8), (2, 1, 7), (5, 1, 6), (0, 2, 4)], T)
    bits(k, vPAE, L, [(3, 1, 14), (4, 2, 12), (0, 3, 4)], T)
    k(f's_lshl_b32 {s(sT0)}, {s(sW)}, 15')
    k(f'v_add_u32 v{vPAE}, {s(sT0)}, v{vPAE}')
    bits(k, vPAS, L, [(4, 2, 12), (0, 4, 3)], T)
    k(f's_lshl_b32 {s(sT0)}, {s(sW)}, 14')
    k(f's_add_u32 {s(sT0)}, {s(sT0)}, {32 * 4096}')
    k(f'v_add_u32 v{vPAS}, {s(sT0)}, v{vPAS}')
    bits(k, vXW, L, [(0, 4, 4), (4, 1, 3), (5, 1, 8)], T)
    k(f's_lshl_b32 {s(sT0)}, {s(sW)}, 9')
    k(f'v_add_u32 v{vXW}, {s(sT0)}, v{vXW}')
    bits(k, vTR, L, [(2, 4, 4), (0, 1, 3)], T)
    bits(k, vPUB, L, [(0, 4, 4), (4, 2, 2)], T)
    k(f's_lshl_b32 {s(sT0)}, {s(sW)}, 11')
    k(f'v_add_u32 v{vLW0}, {s(sT0)}, v{vL16}')
    k(f'v_add_u32 v{vLW1}, 0x10000, v{vLW0}')
    k(f'v_add_u32 v{vLW2}, 0x20000, v{vLW0}')
    k(f's_mov_b32 {s(sC)}, 0x3e0293ee')
    k(f's_mov_b32 {s(sC+1)}, 0x3e0293ee')
    k(f's_mov_b32 {s(sBUD)}, 0x40000')
    k(f's_lshr_b32 {s(sOW)}, {s(sW)}, 1')
    k(f's_lshl_b32 {s(sOW)}, {s(sOW)}, 11')
    l1, l2 = k.newlabel('ci'), k.newlabel('ci')
    k(f's_mov_b32 {s(sCI)}, {s(sH)}')
    k(f's_cmp_eq_u32 {s(sW)}, 0')
    k(f's_cbranch_scc1 {l1}')
    k(f's_add_u32 {s(sCI)}, {s(sH)}, 32')
    k(f's_cmp_lg_u32 {s(sW)}, 2')
    k(f's_cbranch_scc1 {l2}')
    k(f's_cmp_lt_u32 {s(sH)}, 16')
    k(f's_cbranch_scc1 {l1}')
    k.label(l2)
    k(f's_mov_b32 {s(sCI)}, -1')
    k.label(l1)
    k(f's_lshl_b32 {s(sT0)}, {s(sX)}, 5')
    k(f's_add_u32 {s(sT0)}, {s(sT0)}, {s(sH)}')
    k(f's_lshl_b32 {s(sT0)}, {s(sT0)}, 2')
    k(f's_add_u32 {s(sT0)}, {s(sT0)}, {s(sW)}')
    k(f's_lshl_b32 {s(sTS)}, {s(sT0)}, 13')
    k(f's_add_u32 {s(sTS)}, {s(sTS)}, {TS}')
    k(f's_lshl_b32 {s(sT0)}, {s(sT0)}, 12')
    k(f's_add_u32 {s(sGW)}, {s(sT0)}, {GW}')
    k(f's_lshl_b32 {s(sT0)}, {s(sH)}, 8')
    k(f's_lshl_b32 {s(sROWO)}, {s(sX)}, 21')
    k(f's_xor_b32 {s(sROWR)}, {s(sROWO)}, 0x200000')
    k(f's_add_u32 {s(sROWO)}, {s(sROWO)}, {s(sT0)}')
    k(f's_add_u32 {s(sROWR)}, {s(sROWR)}, {s(sT0)}')
    k(f's_lshl_b32 {s(sT0)}, {s(sX)}, 13')
    k(f's_add_u32 {s(sT0)}, {s(sT0)}, {MB}')
    k(f's_lshl_b32 {s(sT1)}, {s(sW)}, 11')
    k(f's_add_u32 {s(cMLR)}, {s(sT0)}, {s(sT1)}')
    k(f's_sub_u32 {s(cMLR)}, {s(cMLR)}, 2048')
    k(f's_lshl_b32 {s(sT1)}, {s(sCI)}, 7')
    k(f's_add_u32 {s(cMLW)}, {s(sT0)}, {s(sT1)}')
    k(f's_lshl_b32 {s(sT0)}, {s(sX)}, 12')
    k(f's_add_u32 {s(sT0)}, {s(sT0)}, {MB + 16384 + 8192 * CFG["pol"]}')
    k(f's_add_u32 {s(cMRW)}, {s(sT0)}, {s(sT1)}')
    k(f's_xor_b32 {s(sT0)}, {s(sT0)}, 4096')
    k(f's_lshl_b32 {s(sT1)}, {s(sW)}, 10')
    k(f's_add_u32 {s(cMRR)}, {s(sT0)}, {s(sT1)}')

def emit_loader(k, early=None):
    L, T = 20, 23
    vQ, vOE, vOS = 24, 25, 26
    rE, rS, rO = 27, 28, 29
    tA, tB = 30, 31
    k(f's_lshl_b32 {s(sT0)}, {s(sW)}, 4')
    k(f'v_lshrrev_b32 v21, 4, v{L}')
    k(f'v_add_u32 v21, {s(sT0)}, v21')
    k(f'v_lshlrev_b32 v{vQ}, 13, v21')
    bits(k, vQ, L, [(0, 4, 4)], T, first=False)
    k(f'v_mul_u32_u24 v{vOS}, 1280, v21')
    k(f'v_mov_b32 v{vOE}, v{vOS}')
    bits(k, vOE, L, [(2, 2, 7), (0, 2, 4)], T, first=False)
    bits(k, vOS, L, [(0, 4, 4)], T, first=False)
    def rowexpr(dst, sh_r0, sh_r1, sh_g0, sh_g1):
        bits(k, dst, L, [(0, 2, 3), (3, 1, 5), (2, 1, 8 + sh_r0), (3, 1, 8 + sh_r1), (4, 1, 8 + sh_g0), (5, 1, 8 + sh_g1)], T)
        k(f's_lshl_b32 {s(sT0)}, {s(sW)}, 6')
        k(f'v_add_u32 v{dst}, {s(sT0)}, v{dst}')
    rowexpr(rE, 0, 3, 1, 4)
    rowexpr(rS, 1, 5, 2, 4)
    rowexpr(rO, 0, 5, 4, 2)
    sbit = {'E': 256 << 3, 'S': 256 << 5, 'O': 256 << 5}
    qrow = {'E': lambda q: 32 * (q >> 1) + 4 * (q & 1), 'S': lambda q: (q >> 1) + 8 * (q & 1), 'O': lambda q: 8 * (q >> 1) + 2 * (q & 1)}
    sWOE, sWOS, sQS, sM0W = sPAW, sPAR, sMLR, sMRR
    k(f's_mul_i32 {s(sWOS)}, {s(sH)}, 163840')
    k(f's_lshl_b32 {s(sT0)}, {s(sX)}, 9')
    k(f's_add_u32 {s(sWOE)}, {s(sWOS)}, {s(sT0)}')
    k(f's_add_u32 {s(sWOS)}, {s(sWOS)}, 1024')
    k(f's_lshl_b32 {s(sQS)}, {s(sH)}, 8')
    k(f's_add_u32 {s(sQS)}, {s(sQS)}, {512 * 8192}')
    k(f's_lshl_b32 {s(sM0W)}, {s(sW)}, 12')
    vm = []
    def issue(i):
        mat, c, p = ORDER[i]
        slot = ((i + 4) % 10) * 16384
        for j in range(4):
            if mat == 'o':
                sr = S_WO
                if p < 2:
                    base, vo, off = sWOE, vOE, c * 64 * 1280 + 64 * p + j * 4 * 1280
                else:
                    base, vo, off = sWOS, vOS, c * 64 * 1280 + j * 4 * 1280
            else:
                sr = {'q': S_WQ, 'k': S_WK, 'v': S_WV}[mat]
                vo = vQ
                if c < 4:
                    base, off = sROWO, c * 64 * 8192
                elif c < 6:
                    base, off = sQS, (c - 4) * 64 * 8192
                else:
                    base, off = sROWR, (c - 6) * 64 * 8192
                off += j * 4 * 8192
            k(f's_add_u32 {s(sT0)}, {s(base)}, {off}')
            k(f's_add_u32 m0, {s(sM0W)}, {slot + j * 1024}')
            k(f'buffer_load_dwordx4 v{vo}, {s(sr,4)}, {s(sT0)} offen{CFG.get("ldmod", "")} lds')
            vm.append(i)
    DEPTH = CFG.get('depth', 8)
    for i in range(DEPTH):
        issue(i)
    TMP = [44, 60]
    pending = None
    def writeback(pend):
        regs, offs = pend
        for r, off in zip(regs, offs):
            b, imm = lds_w_addr(off)
            k(f'ds_write_b128 v{b}, {v(r,4)} offset:{imm}')
            k(f'ds_write_b128 v{b}, {v(r+4,4)} offset:{imm + 1024}')
    for i in range(36):
        mat, c, p = ORDER[i]
        slot = ((i + 4) % 10) * 16384
        last = max(ix for ix, t in enumerate(vm) if t == i)
        k(f's_waitcnt vmcnt({len(vm) - 1 - last}) lgkmcnt(0)')
        k('s_barrier')
        if pending:
            writeback(pending); pending = None
        kind = 'O' if mat == 'o' else ('S' if c in (4, 5) else 'E')
        rb = {'E': rE, 'S': rS, 'O': rO}[kind]
        k(f'v_add_u32 v{tA}, {slot}, v{rb}')
        k(f'v_xor_b32 v{tB}, {sbit[kind]}, v{tA}')
        tmp = TMP[i & 1]
        wb_regs, wb_offs, g_regs = [], [], []
        for t in range(2):
            pl = PLACE[(mat, c, p, t)]
            for q in range(4):
                dst = opreg_pair(pl[1], q) if pl[0] == 'r' else v(tmp + 8 * t + 2 * q, 2)
                k(f'ds_read_b64_tr_b16 {dst}, v{(tA, tB)[t]} offset:{qrow[kind](q) * 256}')
            if pl[0] == 'l':
                wb_regs.append(tmp + 8 * t); wb_offs.append(pl[1])
            if pl[0] == 'g':
                g_regs.append((tmp + 8 * t, pl[1]))
        if wb_regs:
            pending = (wb_regs, wb_offs)
        if g_regs:
            k('s_waitcnt lgkmcnt(0)')
            for r, off in g_regs:
                k(f'buffer_store_dwordx4 {v(r,4)}, v{vL16}, {s(S_WS,4)}, {s(sGW)} offen offset:{off}')
                k(f'buffer_store_dwordx4 {v(r+4,4)}, v{vL16}, {s(S_WS,4)}, {s(sGW)} offen offset:{off + 1024}')
                vm += ['g', 'g']
        if i + DEPTH < 36:
            issue(i + DEPTH)
        if early and i in early:
            vm.extend(['e'] * early[i]())
    k('s_waitcnt vmcnt(0) lgkmcnt(0)')
    k('s_barrier')
    writeback(pending)
    k('s_waitcnt lgkmcnt(0)')

def stamp(k, name, diag):
    if diag and name in CFG['stamps']:
        idx = CFG['stamps'].index(name)
        op = 's_memrealtime' if CFG.get('rt') else 's_memtime'
        k(f'{op} {s(sTM + 2 * idx, 2)}')

def max_ops(regs, tmp):
    regs = list(regs)
    out = [f'v_max3_u32 v{tmp}, v{regs[0]}, v{regs[1]}, v{regs[2]}']
    rest = regs[3:]
    while rest:
        if len(rest) >= 2:
            out.append(f'v_max3_u32 v{tmp}, v{tmp}, v{rest[0]}, v{rest[1]}'); rest = rest[2:]
        else:
            out.append(f'v_max_u32 v{tmp}, v{tmp}, v{rest[0]}'); rest = rest[1:]
    return out

def retry_branch(k, tmp, retry_stub):
    k(f'v_cmp_eq_u32 vcc, {-1 if not CFG.get("x_nocomm") else 17}, v{tmp}')
    k(f's_cbranch_vccnz {retry_stub}')

def masked_retry_stub(k, stub, check, cont, loads, depth):
    k.label(stub)
    k(f's_sub_u32 {s(sBUD)}, {s(sBUD)}, 1')
    giveup = k.newlabel('giveup')
    k(f's_cbranch_scc1 {giveup}')
    k('s_mov_b64 exec, vcc')
    for op in loads:
        k(op)
    k('s_mov_b64 exec, -1')
    k(f's_branch {check}')
    k.label(giveup)
    k(f's_mov_b32 {s(sBUD)}, 0')
    k(f's_branch {cont}')

def offsets_ops():
    return [
        f's_and_b32 {s(sPZ0)}, {s(sSTEP)}, 1',
        f's_sub_u32 {s(sPZ1)}, 0, {s(sPZ0)}',
        f's_add_u32 {s(sT0)}, {s(sSTEP)}, 1',
        f's_and_b32 {s(sT0)}, {s(sT0)}, 3',
        f's_lshl_b32 {s(sT0)}, {s(sT0)}, 15',
        f's_add_u32 {s(sMLR)}, {s(sT0)}, {s(cMLR)}',
        f's_add_u32 {s(sMRR)}, {s(sT0)}, {s(cMRR)}',
        f's_add_u32 {s(sMLW)}, {s(sT0)}, {s(cMLW)}',
        f's_add_u32 {s(sMRW)}, {s(sT0)}, {s(cMRW)}',
        f's_xor_b32 {s(sMLZ)}, {s(sMLW)}, 0x10000',
        f's_xor_b32 {s(sMRZ)}, {s(sMRW)}, 0x10000',
    ]

def emit_publish(k, val, sc, remote):
    k(f's_mov_b64 exec, {s(sMASK_LO8,2)}')
    k(f'buffer_store_dword v{val}, v{vPUB}, {s(S_WS,4)}, {s(sMLW)} offen{sc}')
    if remote:
        k(f'buffer_store_dword v{val}, v{vPUB}, {s(S_WS,4)}, {s(sMRW)} offen sc1')
    k('s_mov_b64 exec, -1')

def k_dma_ops():
    return [f's_mov_b32 m0, {s(sKVM0)}'] + [f'buffer_load_dwordx4 v{vL16}, {s(S_WS,4)}, {s(sKV)} offen offset:{j * 1024} sc1 lds' for j in range(2)]
def v_dma_ops():
    return [f's_add_u32 m0, {s(sKVM0)}, 8192', f's_add_u32 {s(sT1)}, {s(sKV)}, 8192'] + [f'buffer_load_dwordx4 v{vL16}, {s(S_WS,4)}, {s(sT1)} offen offset:{j * 1024} sc1 lds' for j in range(2)]

def lds_op_read_ops(key, dst):
    b, imm = lds_w_addr(PLACE[key][1])
    return [f'ds_read_b128 {v(dst,4)}, v{b} offset:{imm}', f'ds_read_b128 {v(dst+4,4)}, v{b} offset:{imm + 1024}']

class LG:
    def __init__(self, k):
        self.k = k; self.q = []
    def op(self, text, tag):
        self.k(text); self.q.append(tag)
    def wait(self, tag):
        if tag in self.q:
            last = max(i for i, t in enumerate(self.q) if t == tag)
            self.k(f's_waitcnt lgkmcnt({min(len(self.q) - 1 - last, 15)})')
            del self.q[:last + 1]
    def drain(self):
        self.k('s_waitcnt lgkmcnt(0)'); self.q = []

def delay(k, n):
    while n > 0:
        m = min(n, 16); k(f's_nop {m-1}'); n -= m


def kv_flag_wait(k, t0, t1):
    top, done = k.newlabel('kvf'), k.newlabel('kvd')
    k(f'v_lshrrev_b32 v{t0}, 2, v{vL16}')
    k(f'v_min_u32 v{t0}, 64, v{t0}')
    k.label(top)
    k(f'buffer_load_dword v{t1}, v{t0}, {s(S_WS,4)}, {s(sKVF)} offen sc1')
    k('s_waitcnt vmcnt(0)')
    k(f'v_cmp_gt_u32 vcc, 2, v{t1}')
    k(f's_ff1_i32_b64 {s(sKNOWN)}, vcc')
    k(f's_lshl_b32 {s(sKNOWN)}, {s(sKNOWN)}, 2')
    k(f's_cmp_eq_u32 {s(sKNOWN)}, 64')
    k(f's_cselect_b32 {s(sKNOWN)}, 128, {s(sKNOWN)}')
    k(f's_add_u32 {s(sT0)}, {s(sSTEP)}, 2')
    k(f's_cmp_lt_u32 {s(sT0)}, {s(sKNOWN)}')
    k(f's_cbranch_scc1 {done}')
    k('s_sleep 2')
    k(f's_sub_u32 {s(sBUD)}, {s(sBUD)}, 1')
    k(f's_cbranch_scc0 {top}')
    k(f's_mov_b32 {s(sBUD)}, 0')
    k(f's_mov_b32 {s(sKNOWN)}, 128')
    k.label(done)

def diag_store(k):
    R_ = SL[1]
    k('s_waitcnt lgkmcnt(0)')
    for i in range(9):
        k(f'v_writelane_b32 v{R_}, {s(sTM + 2*i)}, {i}')
    k(f'v_writelane_b32 v{R_}, {s(sB0)}, 9')
    k(f'v_writelane_b32 v{R_}, {s(sB1_)}, 10')
    k(f'v_writelane_b32 v{R_}, {s(sBUD)}, 11')
    k(f'v_lshrrev_b32 v{R_+1}, 2, v{vL16}')
    k('s_mov_b64 exec, 0xffff')
    k(f'buffer_store_dword v{R_}, v{R_+1}, {s(S_WS,4)}, {s(sTS)} offen')
    k('s_mov_b64 exec, -1')
    k(f's_add_u32 {s(sTS)}, {s(sTS)}, 64')

M0V = 32

def emit_m0_loads(k):
    nocons = k.newlabel('nocons')
    k(f's_cmp_eq_u32 {s(sCI)}, -1')
    k(f's_cbranch_scc1 {nocons}')
    bits(k, 21, 20, [(4, 1, 2), (5, 1, 1)], 23)
    k(f'v_bfe_u32 v22, v20, 2, 1')
    k(f'v_and_b32 v23, 3, v20')
    k(f's_and_b32 {s(sT0)}, {s(sCI)}, 1')
    k(f's_lshl_b32 {s(sT0)}, {s(sT0)}, 2')
    k(f'v_add_u32 v23, {s(sT0)}, v23')
    k(f'v_mul_u32_u24 v23, 1280, v23')
    k(f's_and_b32 {s(sT2)}, {s(sCI)}, 2')
    k(f's_lshl_b32 {s(sT2)}, {s(sT2)}, 3')
    shr, cont = k.newlabel('shr'), k.newlabel('cont')
    k(f's_cmp_ge_u32 {s(sCI)}, 32')
    k(f's_cbranch_scc1 {shr}')
    k(f's_lshr_b32 {s(sT0)}, {s(sCI)}, 3')
    k(f's_lshl_b32 {s(sT0)}, {s(sT0)}, 6')
    k(f's_and_b32 {s(sT1)}, {s(sCI)}, 4')
    k(f's_lshl_b32 {s(sT1)}, {s(sT1)}, 1')
    k(f's_add_u32 {s(sT0)}, {s(sT0)}, {s(sT1)}')
    k(f's_lshl_b32 {s(sT1)}, {s(sX)}, 8')
    k(f's_add_u32 {s(sT0)}, {s(sT0)}, {s(sT1)}')
    k(f's_add_u32 {s(sT0)}, {s(sT0)}, {s(sT2)}')
    k(f'v_lshl_add_u32 v24, v22, 5, v21')
    k(f'v_add_u32 v24, {s(sT0)}, v24')
    k(f'v_add_u32 v25, 1, v24')
    k(f's_branch {cont}')
    k.label(shr)
    k(f's_sub_u32 {s(sT0)}, {s(sCI)}, 32')
    k(f's_lshr_b32 {s(sT0)}, {s(sT0)}, 2')
    k(f's_lshl_b32 {s(sT0)}, {s(sT0)}, 5')
    k(f's_add_u32 {s(sT0)}, {s(sT0)}, 512')
    k(f's_add_u32 {s(sT0)}, {s(sT0)}, {s(sT2)}')
    k(f'v_lshl_add_u32 v24, v21, 1, v22')
    k(f'v_add_u32 v24, {s(sT0)}, v24')
    k(f'v_add_u32 v25, 2, v24')
    k.label(cont)
    k(f'v_lshl_add_u32 v24, v24, 1, v23')
    k(f'v_lshl_add_u32 v25, v25, 1, v23')
    k(f'buffer_load_ushort v{M0V}, v24, {s(S_M0,4)}, 0 offen')
    k(f'buffer_load_ushort v{M0V+1}, v25, {s(S_M0,4)}, 0 offen')
    k.label(nocons)

def emit_prologue(k, sc_label_pairs):
    k(f's_mov_b32 {s(sSTEP)}, -1')
    k(f'v_lshrrev_b32 v20, 4, v{vL16}')
    bits(k, 21, 20, [(0, 1, 4)], 23)
    k(f'v_mov_b32 v22, 0x3f80')
    k(f'v_lshlrev_b32 v21, v21, v22')
    k(f'v_bfe_u32 v22, v20, 1, 3')
    for i in range(4):
        k(f'v_cmp_eq_u32 vcc, {i}, v22')
        k(f'v_cndmask_b32 v{24+i}, 0, v21, vcc')
    k(f'ds_write_b128 v{vL16}, v[24:27] offset:{L_SEL}')
    for i in range(4):
        k(f'v_mov_b32 v{ONES+i}, 0x3f803f80')
    k(f's_mov_b32 {s(sLIM)}, {CFG["lim"]}')
    k(f's_mul_i32 {s(sT0)}, {s(sX)}, {PA_BT}')
    k(f's_add_u32 {s(sT0)}, {s(sT0)}, {PA}')
    k(f's_lshl_b32 {s(sT1)}, {s(sH)}, 7')
    k(f's_add_u32 {s(sPAW)}, {s(sT0)}, {s(sT1)}')
    k(f's_lshl_b32 {s(sT1)}, {s(sCI)}, 12')
    k(f's_add_u32 {s(sPAR)}, {s(sT0)}, {s(sT1)}')
    for op in offsets_ops():
        k(op)
    k(f's_lshl_b32 {s(sKV)}, {s(sH)}, 14')
    k(f's_lshl_b32 {s(sT0)}, {s(sW)}, 11')
    k(f's_add_u32 {s(sKV)}, {s(sKV)}, {s(sT0)}')
    k(f's_add_u32 {s(sKV)}, {s(sKV)}, {KV}')
    k(f's_add_u32 {s(sKVM0)}, {s(sT0)}, {L_KT}')
    k(f's_lshl_b32 {s(sT0)}, {s(sH)}, 12')
    k(f's_add_u32 {s(sT0)}, {s(sT0)}, {KVM}')
    k(f's_lshl_b32 {s(sT1)}, {s(sW)}, 10')
    k(f's_add_u32 {s(sT0)}, {s(sT0)}, {s(sT1)}')
    k(f's_cmp_eq_u32 {s(sX)}, 0')
    k(f's_cselect_b32 {s(sPUBK)}, {s(sT0)}, 0x40000000')
    k(f's_mov_b32 {s(sRETRY)}, 0')
    k(f'v_lshl_or_b32 v26, v{M0V+1}, 16, v{M0V}')
    if CFG['fused']:
        k(f's_lshl_b32 {s(sKVF)}, {s(sH)}, 7')
        k(f's_add_u32 {s(sKVF)}, {s(sKVF)}, {FL_KV}')
        kv_flag_wait(k, 28, 29)
    bits(k, 28, 20, [(0, 4, 7), (4, 1, 13)], 23)
    k(f'ds_write_b32 v{vL16}, v28 offset:{L_TCH}')
    k(f's_add_u32 {s(sTCH)}, {s(sKV)}, {32 * 16384}')
    k(f's_mov_b32 m0, {L_JUNK}')
    k(f'buffer_load_dword v28, {s(S_WS,4)}, {s(sKV)} offen sc1 lds')
    k(f'buffer_load_dword v28, {s(S_WS,4)}, {s(sTCH)} offen sc1 lds')
    k('s_waitcnt lgkmcnt(0)')

def emit_loop(k, glob, diag, end_label, cons, poller, name):
    sc = ' sc1' if glob else ''
    top = f'rec_top_{name}'
    SMF = 'v_smfmac_f32_16x16x64_bf16'
    MF32 = 'v_mfma_f32_16x16x32_bf16'
    MF16 = 'v_mfma_f32_16x16x16_bf16'
    FILL = f'v_mov_b32 v{vPUB}, v{vPUB}'
    A0, A1, A2, A3 = AW, AW + 4, AW + 8, AW + 12
    stubs = []
    MV = ACCK
    def pub_local():
        k(f's_mov_b64 exec, {s(sMASK_LO8,2)}')
        k(f'buffer_store_dword v{MV}, v{vPUB}, {s(S_WS,4)}, {s(sMLW)} offen{sc}')
        if cons == 'E' and CFG['delay_r'] == 0 and not CFG.get('x_nox'):
            k(f'buffer_store_dword v{MV}, v{vPUB}, {s(S_WS,4)}, {s(sMRW)} offen sc1')
        k('s_mov_b64 exec, -1')
    k.label(f'rec_entry_{name}')
    if cons:
        k(f'v_mov_b32 v{MV}, v26')
        pub_local()
        if diag:
            k(f's_sub_u32 {s(sTS)}, {s(sTS)}, 64')
    if CFG['fill']:
        k.filler(FILL)
    k.raw('.p2align 3')
    k.label(top)
    k(f's_add_u32 {s(sSTEP)}, {s(sSTEP)}, 1')
    if not cons:
        stamp(k, 'top', diag)
    PL = SL[0]
    seq = [(m, c, 0, t) for c in range(6) for t in range(2) for m in 'qkv']
    lds_ops = [key for key in seq if PLACE[key][0] == 'l']
    slot_of = {}
    nxt = 0
    prep = []
    for sl in (SL[1], SL[2], SL[3]):
        slot_of[lds_ops[nxt]] = sl
        prep += lds_op_read_ops(lds_ops[nxt], sl)
        nxt += 1
    prep += [f'v_mov_b64 {v(MISC,2)}, -1', f'v_mov_b64 {v(MISC+2,2)}, -1']
    zero = [f'v_mov_b64 {v(r,2)}, 0' for r in range(ACCQ, ACCQ + 12, 2)]
    resets = []
    if cons:
        resets += ['s_mov_b64 exec, 0xff', f'buffer_store_dwordx4 {v(MISC,4)}, v{vL16}, {s(S_WS,4)}, {s(sMLZ)} offen{sc}', 's_mov_b64 exec, -1']
    pl_ops = [f'buffer_load_dwordx4 {v(PL+4*j,4)}, v{vPERM}, {s(S_WS,4)}, {s(sMLR)} offen offset:{1024*j} sc1' for j in range(2)]
    def kvcheck():
        if CFG['fused']:
            kvs, kvc = k.newlabel('kv_stub'), k.newlabel('kv_cont')
            k(f's_add_u32 {s(sT0)}, {s(sSTEP)}, 2')
            k(f's_cmp_ge_u32 {s(sT0)}, {s(sKNOWN)}')
            k(f's_cbranch_scc1 {kvs}')
            k.label(kvc)
            stubs.append(('kv', kvs, kvc))
    if cons:
        k('s_barrier')
        if diag:
            diag_store(k)
            stamp(k, 'top', diag)
    for op in prep:
        k(op)
    if cons != 'E':
        for op in zero:
            k(op)
    if cons != 'E':
        kvcheck()
    if not cons:
        k('s_barrier')
    if not glob and not poller:
        for op in resets:
            k(op)
    if poller:
        delay(k, CFG['delay_b'] if not cons else max(CFG['delay_b'] - 20, 0))
        check, stub, cont = k.newlabel('pl_check'), k.newlabel('pl_stub'), k.newlabel('pl_cont')
        stamp(k, 'l_issue', diag)
        for op in pl_ops:
            k(op)
        if not glob:
            for op in resets:
                k(op)
        for _ in range(CFG['extra_b']):
            delay(k, CFG['gap_b'])
            for op in pl_ops:
                k(op)
        k.label(check)
        k(f's_waitcnt vmcnt({2 * CFG["extra_b"]})')
        for op in max_ops(range(PL, PL + 8), A3):
            k(op)
        for j in range(2):
            k(f'ds_write_b128 v{vLW0}, {v(PL+4*j,4)} offset:{L_M - 2048 + 1024*j}')
        retry_branch(k, A3, stub)
        stubs.append(('m', stub, check, cont, pl_ops))
        k.label(cont)
    else:
        k(f's_waitcnt vmcnt({(1 if CFG["delay_r"] or CFG.get("x_nox") else 2) + (0 if glob else 1) + (1 if diag else 0)})')
        if CFG['delay_r']:
            delay(k, CFG['delay_r'])
            k(f's_mov_b64 exec, {s(sMASK_LO8,2)}')
            k(f'buffer_store_dword v{MV}, v{vPUB}, {s(S_WS,4)}, {s(sMRW)} offen sc1')
            k('s_mov_b64 exec, -1')
        k(f'v_mov_b32 v{SL[0]}, -1')
        for op in zero:
            k(op)
        kvcheck()
    if glob:
        for op in resets:
            k(op)
    if diag:
        k(f's_mov_b32 {s(sB0)}, {s(sBUD)}')
    rem_load = f'buffer_load_dwordx4 {v(MISC,4)}, v{vPERM}, {s(S_WS,4)}, {s(sMRR if not CFG.get("x_nox") else sGW)} offen sc1'
    k('s_waitcnt lgkmcnt(0)')
    stamp(k, 'preB1', diag)
    k('s_barrier')
    stamp(k, 'B1', diag)
    lg = LG(k)
    acc = {'q': ACCQ, 'k': ACCK, 'v': ACCV}
    def rdA(i):
        return f'ds_read_b128 {v(AW + 4*(i%4),4)}, v{(vL16, vL16X)[i&1]} offset:{L_M + 1024*(i>>1)}'
    for i in range(4):
        lg.op(rdA(i), ('A', i))
    k(rem_load)
    nlater = 0
    mrz = [f's_mov_b64 exec, {s(sMASK_LO8,2)}', f'buffer_store_dword v{SL[0]}, v{vPUB}, {s(S_WS,4)}, {s(sMRZ)} offen sc1', 's_mov_b64 exec, -1']
    if cons == 'E':
        nlater += 1
    def gl(t, h):
        return f'buffer_load_dwordx4 {v(SL[t]+4*h,4)}, v{vL16}, {s(S_WS,4)}, {s(sGW)} offen offset:{2048*t+1024*h}'
    RA = [SL[2], SL[2] + 4, SL[3], SL[3] + 4, A0, A1, A2, A3]
    def rdR(i):
        return ('lg', f'ds_read_b128 {v(RA[i],4)}, v{(vL16, vL16X)[i&1]} offset:{L_R + 2048*(i>>1)}', ('R', i))
    side = {}
    def put(i, op, front=False):
        lst = side.setdefault(i, [])
        lst.insert(0, op) if front else lst.append(op)
    RC = CFG['rem_chk']
    CKR = MISC
    rstub, rcont = k.newlabel('rem_stub'), k.newlabel('rem_cont')
    mo = max_ops(range(MISC, MISC + 4), CKR)
    vd = v_dma_ops()
    kd = k_dma_ops()
    if cons == 'E':
        for op in mrz:
            put(0, op)
    put(1, gl(0, 0)); put(4, gl(0, 1))
    put(6, kd[0]); put(7, kd[1]); put(10, kd[2])
    put(27, vd[0]); put(27, vd[1]); put(27, vd[2]); put(28, vd[3])
    nlater += 4
    put(RC, ('fn', lambda: stamp(k, 'remchk', diag)))
    put(RC, f's_waitcnt vmcnt({nlater})')
    put(RC, ('lg', f'ds_write_b128 v{vLW0}, {v(MISC,4)} offset:{L_R}', 'rw'))
    put(RC + 2, mo[0])
    put(RC + 3, mo[1])
    put(RC + 4, f'v_cmp_eq_u32 vcc, {-1 if not (CFG.get("x_nocomm") or CFG.get("x_nox")) else 17}, v{CKR}')
    put(RC + 5, f's_cbranch_vccnz {rstub}'); put(RC + 5, ('lab', rcont))
    put(RC + 6, ('lg', f'ds_read_b32 v{MISC}, v{vL16} offset:{L_TCH}', 'tch'))
    stubs.append(('r', rstub, rcont, rem_load, mo, CKR))
    put(29, ('fn', lambda: (lg.drain(), stamp(k, 'preB2', diag), k('s_barrier'))))
    put(29, rdR(0)); put(30, rdR(1)); put(31, rdR(2)); put(32, rdR(3)); put(33, rdR(4)); put(34, rdR(5)); put(35, rdR(6))
    uses_left = {sl: 0 for sl in SL}
    for i, key in enumerate(seq):
        m, c, _, t = key
        ai = 2 * c + t
        lg.wait(('A', ai))
        pl = PLACE[key]
        if pl[0] == 'r':
            B = opreg(pl[1])
        else:
            lg.wait(key); B = v(slot_of[key], 8)
        k(f'{SMF} {v(acc[m],4)}, {v(AW+4*(ai%4),4)}, {B}, v{vIDX}')
        if pl[0] != 'r':
            if nxt < len(lds_ops) and not (slot_of[key] == SL[1] and len(lds_ops) - nxt <= 1):
                nk_ = lds_ops[nxt]; slot_of[nk_] = slot_of[key]; nxt += 1
                ops = lds_op_read_ops(nk_, slot_of[key])
                lg.op(ops[0], nk_)
                put(i + 1, ('lg', ops[1], nk_), True)
            elif slot_of[key] == SL[1]:
                assert i <= RC + 1, i
                put(RC + 1, gl(1, 0)); put(RC + 1, gl(1, 1))
        if m == 'v' and ai + 4 < 12:
            put(i + 2, ('lg', rdA(ai + 4), ('A', ai + 4)), True)
        for op in side.get(i, []):
            if isinstance(op, tuple):
                if op[0] == 'lg':
                    lg.op(op[1], op[2])
                elif op[0] == 'lab':
                    k.label(op[1])
                else:
                    op[1]()
            else:
                k(op)
    assert nxt == len(lds_ops)
    if diag:
        k(f's_mov_b32 {s(sB1_)}, {s(sBUD)}')
    stamp(k, 'locdone', diag)
    salu = [f's_add_u32 {s(sTCH)}, {s(sKV)}, {64 * 16384}', f's_mov_b32 m0, {L_JUNK}'] + offsets_ops() + [f's_add_u32 {s(sKV)}, {s(sKV)}, {32 * 16384}']
    def rm(n):
        m = 'qkv'[n // 8]; i = n % 8
        lg.wait(('R', i))
        if n == 14:
            k('s_waitcnt vmcnt(3)')
        pl = PLACE[(m, 6 + (i>>1), 0, i&1)]
        B = opreg(pl[1]) if pl[0] == 'r' else v(SL[i & 1], 8)
        k(f'{SMF} {v(acc[m],4)}, {v(RA[i],4)}, {B}, v{vIDX}')
        if salu:
            k(salu.pop(0))
    F = MISC
    rm(0); lg.op(*rdR(7)[1:])
    rm(1)
    rm(2)
    k(f's_mov_b64 exec, {s(sMASK_LT32,2)}')
    k(f'buffer_load_dword v{F}, {s(S_WS,4)}, {s(sTCH)} offen sc1 lds')
    k('s_mov_b64 exec, -1')
    for n in range(3, 10):
        rm(n)
    for i in range(4):
        k(f'v_mul_f32 v{ACCQ+i}, {s(sC)}, v{ACCQ+i}')
        rm(10 + i)
    k(f'v_cvt_pk_bf16_f32 v{F}, v{ACCQ}, v{ACCQ+1}')
    rm(14)
    k(f'v_cvt_pk_bf16_f32 v{F+1}, v{ACCQ+2}, v{ACCQ+3}')
    rm(15)
    lg.op(f'ds_write_b64 v{vXW}, {v(F,2)} offset:{L_QX}', 'qw')
    assert not salu
    QTR = [SL[0], SL[0] + 4, SL[1], SL[1] + 4]
    KMR = RA[:4]
    def qrd(j, hh):
        lg.op(f'ds_read_b64_tr_b16 {v(QTR[j]+2*hh,2)}, v{vTR} offset:{L_QX + j*512 + hh*256}', ('qt', j))
    def ktrd(kt, j):
        lg.op(f'ds_read_b128 {v(RA[4*kt+j],4)}, v{vL16} offset:{L_KT + kt*4096 + j*1024}', ('kt', kt, j))
    def kmrd(j):
        for hh in range(2):
            lg.op(f'ds_read_b64_tr_b16 {v(KMR[j]+2*hh,2)}, v{vTR} offset:{L_KX + j*512 + hh*256}', ('km', j))
    ex = lambda r: k(f'v_exp_f32 v{r}, v{r}')
    cv = lambda d, r: k(f'v_cvt_pk_bf16_f32 v{d}, v{r}, v{r+1}')
    z = lambda r: k(f'v_mov_b64 {v(r,2)}, 0')
    rm(16)
    rm(17)
    cv(F + 2, ACCK); cv(F + 3, ACCK + 2)
    lg.op(f'ds_write_b64 v{vXW}, {v(F+2,2)} offset:{L_KX}', 'kw')
    NB = CFG['v_before']
    for n in range(18, 18 + NB):
        rm(n)
    lg.wait('kw')
    stamp(k, 'preB3', diag)
    k('s_barrier')
    rest = list(range(18 + NB, 24))
    for j in range(4):
        qrd(j, 0); qrd(j, 1); ktrd(0, j)
        if len(rest) > 3 - j:
            rm(rest.pop(0))
    ST, SM = ACCQ, A3
    def st(kt, j, w=True):
        if w:
            lg.wait(('kt', kt, j))
        k(f'{MF32} {v(ST+4*kt,4)}, {v(RA[4*kt+j],4)}, {v(QTR[j],4)}, {"0" if j == 0 else v(ST+4*kt,4)}')
    def sm(j, w=True):
        if w:
            lg.wait(('km', j))
        k(f'{MF32} {v(SM,4)}, {v(KMR[j],4)}, {v(QTR[j],4)}, {"0" if j == 0 else v(SM,4)}')
    VTK, VA, OP, OA, RL = A0, ACCV, A2, SL[2], SL[3]
    VP = MISC
    lg.wait(('kt', 0, 1))
    st(0, 0, False); ktrd(1, 0); ktrd(1, 1)
    st(0, 1, False); ktrd(1, 2); ktrd(1, 3)
    lg.wait(('kt', 0, 3))
    st(0, 2, False); kmrd(0)
    st(0, 3, False); kmrd(1)
    lg.wait(('kt', 1, 1))
    st(1, 0, False); kmrd(2)
    st(1, 1, False); kmrd(3)
    lg.wait(('kt', 1, 3))
    st(1, 2, False); cv(VP, ACCV); cv(VP + 1, ACCV + 2)
    k('s_waitcnt vmcnt(1)')
    st(1, 3, False)
    for t in range(2):
        lg.op(f'ds_read_b128 {v(VTK+4*t,4)}, v{vLW0} offset:{L_VT + 1024*t}', 'vt')
    lg.wait(('km', 1))
    sm(0, False)
    k(f'buffer_store_dwordx4 {v(VP,4)}, v{vL16}, {s(S_WS,4)}, {s(sPUBK)} offen sc1')
    ex(ST)
    sm(1, False); ex(ST + 1)
    lg.wait(('km', 3))
    sm(2, False); ex(ST + 2)
    sm(3, False); ex(ST + 3)
    stamp(k, 'presm', diag)
    ex(ST + 4); ex(ST + 5); ex(ST + 6); ex(ST + 7)
    cv(ST, ST); cv(ST + 1, ST + 2); cv(ST + 2, ST + 4); cv(ST + 3, ST + 6)
    ex(SM)
    lg.wait('vt')
    k(f'{MF32} {v(OA,4)}, {v(VTK,4)}, {v(ST,4)}, 0')
    ex(SM + 1)
    k(f'{MF32} {v(OA+4,4)}, {v(VTK+4,4)}, {v(ST,4)}, 0')
    ex(SM + 2)
    k(f'{MF32} {v(RL,4)}, {v(ONES,4)}, {v(ST,4)}, 0')
    ex(SM + 3)
    k(f'v_cndmask_b32 v{VA}, 0, v{VP}, {s(sMASK_LT32,2)}')
    cv(SM, SM); cv(SM + 1, SM + 2)
    slow, back = k.newlabel('sm_slow'), k.newlabel('sm_back')
    k.label(back)
    k(f'v_cndmask_b32 v{SM+2}, 0, v{SM}, {s(sMASK_LT32,2)}')
    k(f'v_cndmask_b32 v{SM+3}, 0, v{SM+1}, {s(sMASK_LT32,2)}')
    k(f'v_cndmask_b32 v{VA+1}, 0, v{VP+1}, {s(sMASK_LT32,2)}')
    k(f'v_cndmask_b32 v{VA+2}, 0, v{VP}, {s(sMASK_GE32,2)}')
    k(f'{MF16} {v(RL,4)}, {v(ONES,2)}, {v(SM+2,2)}, {v(RL,4)}')
    k(f'v_cndmask_b32 v{VA+3}, 0, v{VP+1}, {s(sMASK_GE32,2)}')
    k(f'{MF16} {v(OA,4)}, {v(VA,2)}, {v(SM,2)}, {v(OA,4)}')
    OWA = ACCK
    k(f'v_add_u32 v{OWA}, {s(sOW)}, v{vL16}')
    k(f'{MF16} {v(OA+4,4)}, {v(VA+2,2)}, {v(SM,2)}, {v(OA+4,4)}')
    z(ACCQ); z(ACCQ + 2); z(ACCK + 2)
    k(f'v_rcp_f32 v{RL+2}, v{RL}')
    k(f'v_max_f32 v{RL+1}, v{RL}, v{RL+2}')
    for i in range(0, 8, 2):
        k(f'v_pk_mul_f32 {v(OA+i,2)}, {v(OA+i,2)}, {v(RL+2,2)} op_sel_hi:[1,0]')
    for i in range(4):
        cv(OP + i, OA + 2 * i)
    k(f'v_cmp_nge_f32 vcc, {s(sLIM)}, v{RL+1}')
    stamp(k, 'owr', diag)
    k(f's_mov_b64 exec, {s(sMASK_OW,2)}')
    k(f'ds_write_b128 v{OWA}, {v(OP,4)} offset:{L_OX}')
    k('s_mov_b64 exec, -1')
    k(f's_cbranch_vccnz {slow}')
    ok2 = k.newlabel('sm_ok')
    k.label(ok2)
    stubs.append(('sm', slow, back, ok2))
    wo_slot = {('o', 0, 0, 0): SL[0], ('o', 0, 0, 1): SL[1], ('o', 1, 0, 0): SL[2], ('o', 1, 0, 1): SL[3],
               ('o', 1, 2, 0): SL[0], ('o', 1, 2, 1): SL[1]}
    k(f's_cmp_eq_u32 {s(sSTEP)}, 63')
    k(f's_cbranch_scc1 {end_label}')
    for op in lds_op_read_ops(('o', 0, 0, 0), SL[0]):
        k(op)
    k('s_waitcnt lgkmcnt(2)')
    stamp(k, 'preB5', diag)
    k('s_barrier')
    lg = LG(k)
    OX = [A0, A1, A2, A3]
    for i in range(4):
        lg.op(f'ds_read_b128 {v(OX[i],4)}, v{(vL16, vL16X)[i&1]} offset:{L_OX + 2048*(i>>1)}', ('o', i))
    def word(key, h):
        lg.op(lds_op_read_ops(key, wo_slot[key])[h], key)
    def wo(p, i):
        key = ('o', i >> 1, p, i & 1)
        lg.wait(('o', i)); lg.wait(key)
        B = v(wo_slot[key], 8) if key in wo_slot else opreg(PLACE[key][1])
        k(f'{SMF} {v(ACCQ+4*p,4)}, {v(OX[i],4)}, {B}, v{vIDX}')
    tag = lambda r: k(f'v_and_or_b32 v{r}, v{r}, -2, {s(sPZ0)}')
    word(('o', 0, 0, 1), 0); word(('o', 0, 0, 1), 1)
    z(ACCK)
    k(f's_add_u32 {s(sPUBK)}, {s(sPUBK)}, {32 * 4096}')
    k(f's_mov_b32 {s(sRETRY)}, 0')
    wo(0, 0); word(('o', 1, 0, 0), 0)
    wo(1, 0); word(('o', 1, 0, 0), 1)
    wo(1, 1); word(('o', 1, 0, 1), 0)
    wo(0, 1); word(('o', 1, 0, 1), 1)
    wo(1, 2); word(('o', 1, 2, 0), 0); z(ACCV)
    wo(1, 3); word(('o', 1, 2, 0), 1); z(ACCV + 2)
    wo(0, 2); word(('o', 1, 2, 1), 0)
    wo(0, 3); word(('o', 1, 2, 1), 1)
    wo(2, 0); cv(ACCK, ACCK)
    wo(2, 1); cv(ACCK + 1, ACCK + 2)
    wo(2, 2); cv(ACCQ + 3, ACCQ + 2)
    wo(2, 3); cv(ACCQ + 2, ACCQ)
    tag(ACCK); tag(ACCQ + 2)
    k(f'buffer_store_dwordx4 {v(ACCQ+2,4)}, v{vPAE}, {s(S_WS,4)}, {s(sPAW)} offen{sc}')
    k.credit(2)
    cv(ACCV, ACCV); cv(ACCV + 1, ACCV + 2); tag(ACCV)
    k(f'buffer_store_dwordx2 {v(ACCV,2)}, v{vPAS}, {s(S_WS,4)}, {s(sPAW)} offen{sc}')
    stamp(k, 'st1', diag)
    SEL = SL[2]
    if cons:
        k(f'ds_read_b128 {v(SEL,4)}, v{vL16} offset:{L_SEL}')
    if cons:
        check, stub, cont = k.newlabel('ra_check'), k.newlabel('ra_stub'), k.newlabel('ra_cont')
        X, D_, TM = AW, SL[3], MISC
        a_ops = [f'buffer_load_dwordx4 {v(X+4*j,4)}, v{vL16}, {s(S_WS,4)}, {s(sPAR)} offen offset:{1024*j} sc1' for j in range(4)]
        delay(k, CFG['delay_a'] if cons == 'E' else CFG['delay_as'])
        stamp(k, 'a_issue', diag)
        for op in a_ops:
            k(op)
        EA = CFG['extra_a']
        for _ in range(EA):
            delay(k, CFG['gap_a'])
            for op in a_ops:
                k(op)
        k('s_waitcnt lgkmcnt(0)')
        k.label(check)
        for j in range(4):
            k(f's_waitcnt vmcnt({4 * EA + 3 - j})')
            r = X + 4 * j
            k(f'v_bitop3_b32 v{TM + (1 if j else 0)}, v{r}, v{r+2}, {s(sPZ1)} bitop3:0x7e')
            if j:
                k(f'v_or_b32 v{TM}, v{TM}, v{TM+1}')
            k(f'{MF32} {v(D_,4)}, {v(r,4)}, {v(SEL,4)}, {"0" if j == 0 else v(D_,4)}')
        stamp(k, 'a_last', diag)
        k.filler(None)
        k(f'v_and_b32 v{TM}, 1, v{TM}')
        k(f'v_cmp_eq_u32 vcc, {1 if not CFG.get("x_nocomm") else 17}, v{TM}')
        k(f's_cbranch_vccnz {stub}')
        k.credit(4)
        stubs.append(('m', stub, check, cont, a_ops))
        k.label(cont)
        k(f'v_permlane32_swap_b32 v{D_}, v{D_+2}')
        k(f'v_permlane32_swap_b32 v{D_+1}, v{D_+3}')
        k(f'v_pk_add_f32 {v(D_,2)}, {v(D_,2)}, {v(D_+2,2)}')
        k(f'v_cvt_pk_bf16_f32 v{MV}, v{D_}, v{D_+1}')
        pub_local()
        stamp(k, 'pub', diag)
    elif diag:
        diag_store(k)
    k(f's_branch {top}')
    k.filler(None)
    for st_ in stubs:
        if st_[0] == 'm':
            masked_retry_stub(k, st_[1], st_[2], st_[3], st_[4], 1)
        elif st_[0] == 'kv':
            k.label(st_[1])
            kv_flag_wait(k, A3, A3 + 1) if cons != 'E' and cons != 'S' else kv_flag_wait(k, SL[0] + 2, SL[0] + 3)
            k(f's_branch {st_[2]}')
        elif st_[0] == 'r':
            _, stub, cont, ld, mo_, ck = st_
            again, giveup = k.newlabel('rem_again'), k.newlabel('rem_give')
            k.label(stub)
            k(f's_sub_u32 {s(sBUD)}, {s(sBUD)}, 1')
            k(f's_cbranch_scc1 {giveup}')
            k(ld)
            k('s_waitcnt vmcnt(0)')
            k(f'ds_write_b128 v{vLW0}, {v(MISC,4)} offset:{L_R}')
            k('s_waitcnt lgkmcnt(0)')
            for op in mo_:
                k(op)
            k(f'v_cmp_eq_u32 vcc, -1, v{ck}')
            k(f's_cbranch_vccnz {stub}')
            k(f's_branch {cont}')
            k.label(giveup)
            k(f's_mov_b32 {s(sBUD)}, 0')
            k(f's_branch {cont}')
        else:
            _, slow_, back_, ok_ = st_
            k.label(slow_)
            k(f's_cmp_lg_u32 {s(sRETRY)}, 0')
            k(f's_cbranch_scc1 {ok_}')
            k(f's_mov_b32 {s(sRETRY)}, 1')
            k('s_waitcnt lgkmcnt(0)')
            T4 = SL[3]
            for kt in range(2):
                for j in range(4):
                    k(f'ds_read_b128 {v(T4,4)}, v{vL16} offset:{L_KT + kt*4096 + j*1024}')
                    k('s_waitcnt lgkmcnt(0)')
                    k(f'{MF32} {v(ST+4*kt,4)}, {v(T4,4)}, {v(QTR[j],4)}, {"0" if j == 0 else v(ST+4*kt,4)}')
                    k('s_nop 3')
            for j in range(4):
                for hh in range(2):
                    k(f'ds_read_b64_tr_b16 {v(T4+2*hh,2)}, v{vTR} offset:{L_KX + j*512 + hh*256}')
                k('s_waitcnt lgkmcnt(0)')
                k(f'{MF32} {v(SM,4)}, {v(T4,4)}, {v(QTR[j],4)}, {"0" if j == 0 else v(SM,4)}')
                k('s_nop 3')
            allS = list(range(ST, ST + 8)) + list(range(SM, SM + 4))
            M, M2 = T4, T4 + 1
            k(f'v_max3_f32 v{M}, v{allS[0]}, v{allS[1]}, v{allS[2]}')
            for i in range(3, 11, 2):
                k(f'v_max3_f32 v{M}, v{M}, v{allS[i]}, v{allS[i+1]}')
            k(f'v_max_f32 v{M}, v{M}, v{allS[11]}')
            for sw in ('v_permlane16_swap_b32', 'v_permlane32_swap_b32'):
                k(f'v_mov_b32 v{M2}, v{M}')
                k(f'{sw} v{M}, v{M2}')
                k(f'v_max_f32 v{M}, v{M}, v{M2}')
            for r in allS:
                k(f'v_sub_f32 v{r}, v{r}, v{M}')
            for r in allS:
                ex(r)
            cv(ST, ST); cv(ST + 1, ST + 2); cv(ST + 2, ST + 4); cv(ST + 3, ST + 6)
            cv(SM, SM); cv(SM + 1, SM + 2)
            k(f'{MF32} {v(OA,4)}, {v(VTK,4)}, {v(ST,4)}, 0')
            k(f'{MF32} {v(OA+4,4)}, {v(VTK+4,4)}, {v(ST,4)}, 0')
            k(f'{MF32} {v(RL,4)}, {v(ONES,4)}, {v(ST,4)}, 0')
            k('s_nop 7')
            k(f's_branch {back_}')

def emit_team(k, diag, end_label, force_glob=False):
    emit_setup(k)
    w1 = k.newlabel('reg')
    k(f's_cmp_lg_u32 {s(sW)}, 0')
    k(f's_cbranch_scc1 {w1}')
    k(f's_lshl_b32 {s(sT0)}, {s(sFOR)}, 16')
    k(f's_add_u32 {s(sT0)}, {s(sT0)}, 1')
    k(f's_lshl_b32 {s(sT1)}, {s(sPOL)}, 8')
    k(f's_cmp_eq_u32 {s(sX)}, 0')
    k(f's_cselect_b32 {s(sT1)}, {s(sT1)}, 0')
    k(f's_add_u32 {s(sT0)}, {s(sT0)}, {s(sT1)}')
    k(f'v_mov_b32 v30, {s(sT0)}')
    k(f'v_mov_b32 v31, 64')
    k('s_mov_b64 exec, 1')
    k(f'buffer_atomic_add v30, v31, {s(S_DBG,4)}, 0 offen')
    k('s_mov_b64 exec, -1')
    k.label(w1)
    emit_m0_loads(k)
    stamp(k, 'ld0', diag)
    sGO, sINI = sPZ0, sPZ1
    def hookA():
        k(f'buffer_load_dword v34, off, {s(S_DBG,4)}, 0 offset:64 sc1')
        k(f'buffer_load_dword v35, off, {s(S_DBG,4)}, 0 offset:96 sc1')
        return 2
    def hookB():
        k(f'v_readfirstlane_b32 {s(sT3)}, v34')
        k(f'v_readfirstlane_b32 {s(sGO)}, v35')
        k(f's_mov_b32 {s(sT0)}, {FL_INIT}')
        k(f'buffer_load_dword v36, off, {s(S_WS,4)}, {s(sT0)} sc1')
        return 1
    emit_loader(k, {17: hookA, 27: hookB})
    stamp(k, 'ld1', diag)
    rp, ok = k.newlabel('mode'), k.newlabel('modeok')
    k.label(rp)
    k(f's_and_b32 {s(sT1)}, {s(sT3)}, 0xff')
    k(f's_cmp_ge_u32 {s(sT1)}, 64')
    k(f's_cbranch_scc1 {ok}')
    k(f'buffer_load_dword v34, off, {s(S_DBG,4)}, 0 offset:64 sc1')
    k('s_waitcnt vmcnt(0)')
    k(f'v_readfirstlane_b32 {s(sT3)}, v34')
    k(f's_sub_u32 {s(sBUD)}, {s(sBUD)}, 1')
    k(f's_cbranch_scc0 {rp}')
    k(f's_mov_b32 {s(sBUD)}, 0')
    k.label(ok)
    if CFG['fused']:
        fast = k.newlabel('fast')
        k(f'v_readfirstlane_b32 {s(sINI)}, v36')
        k(f's_cmp_eq_u32 {s(sGO)}, 1')
        k(f's_cselect_b32 {s(sINI)}, {s(sINI)}, 0')
        k(f's_cmp_eq_u32 {s(sINI)}, 64')
        k(f's_cbranch_scc1 {fast}')
        k(f's_mov_b32 {s(sT0)}, 96')
        tok.emit_wait(k, S_DBG, sT0, 1, 0, 1, 28, 29, lane=20)
        k(f's_mov_b32 {s(sT0)}, {FL_INIT}')
        tok.emit_wait(k, S_WS, sT0, 1, 0, 64, 28, 29, lane=20)
        k.label(fast)
    k('s_barrier')
    k(f's_bfe_u32 {s(sT1)}, {s(sT3)}, 0x80008')
    k(f's_cmp_gt_u32 {s(sT1)}, 16')
    k(f's_cselect_b32 {s(sT1)}, 8192, 0')
    k(f's_add_u32 {s(cMRR)}, {s(cMRR)}, {s(sT1)}')
    k(f's_add_u32 {s(cMRW)}, {s(cMRW)}, {s(sT1)}')
    emit_prologue(k, None)
    gl = k.newlabel('globmode')
    k(f's_lshr_b32 {s(sT3)}, {s(sT3)}, 16')
    k(f's_cmp_lg_u32 {s(sT3)}, {0 if not force_glob else 12345}')
    k(f's_cbranch_scc1 {gl}')
    for glob in (False, True):
        m = 'g' if glob else 'l'
        if glob:
            k.label(gl)
        k(f's_cmp_eq_u32 {s(sW)}, 0')
        k(f's_cbranch_scc1 rec_entry_E{m}')
        k(f's_cmp_lg_u32 {s(sCI)}, -1')
        k(f's_cbranch_scc1 rec_entry_S{m}')
        emit_loop(k, glob, diag, end_label, None, True, 'P' + m)
        emit_loop(k, glob, diag, end_label, 'E', False, 'E' + m)
        emit_loop(k, glob, diag, end_label, 'S', True, 'S' + m)
```

```python
from asmlib import *
from layout import *

S_WS = 8
S_B0, S_B1 = 12, 16
S_X, S_OUT = 20, 24
sW = 36
sT0, sT1, sT2, sT3 = 54, 55, 56, 57
sA, sB, sM0, sCNT = 40, 41, 42, 43
sE0, sE1, sE2 = 44, 45, 46
MF32 = 'v_mfma_f32_16x16x32_bf16'

def load_srd(k, sreg, karg):
    k(f's_load_dwordx2 {s(sreg,2)}, s[0:1], {karg}')
def fin_srd(k, sreg, nbytes):
    k(f's_and_b32 {s(sreg+1)}, {s(sreg+1)}, 0xffff')
    k(f's_mov_b32 {s(sreg+2)}, {nbytes}')
    k(f's_mov_b32 {s(sreg+3)}, 0x20000')

def bits(k, dst, L, spec, tmp, first=True):
    for i, (pos, width, sh) in enumerate(spec):
        k(f'v_bfe_u32 v{tmp}, v{L}, {pos}, {width}')
        if i == 0 and first:
            k(f'v_lshlrev_b32 v{dst}, {sh}, v{tmp}')
        else:
            k(f'v_lshl_add_u32 v{dst}, v{tmp}, {sh}, v{dst}')

def rbf(k, r, tmp=None):
    k(f'v_cvt_pk_bf16_f32 v{r}, v{r}, v{r}')
    k(f'v_lshlrev_b32 v{r}, 16, v{r}')

def rbf2(k, r0, r1):
    k(f'v_cvt_pk_bf16_f32 v{r1}, v{r0}, v{r1}')
    k(f'v_lshlrev_b32 v{r0}, 16, v{r1}')
    k(f'v_and_b32 v{r1}, 0xffff0000, v{r1}')

def unpack(k, src, lo, hi):
    k(f'v_lshlrev_b32 v{lo}, 16, v{src}')
    k(f'v_and_b32 v{hi}, 0xffff0000, v{src}')

LOG2E = 0x3fb8aa3b

def silu(k, r, t):
    k(f'v_mul_f32 v{t}, 0xbfb8aa3b, v{r}')
    k(f'v_exp_f32 v{t}, v{t}')
    k(f'v_add_f32 v{t}, 1.0, v{t}')
    k(f'v_rcp_f32 v{t}, v{t}')
    k(f'v_mul_f32 v{r}, v{r}, v{t}')

def emit_mod(k, stask, sc=''):
    T, OFF, C0, ACC, W = 1, 2, 4, 16, 32
    k(f'v_lshrrev_b32 v3, 2, v0')
    k(f'v_mul_u32_u24 v{OFF}, {10 * 7680}, v3')
    k(f'v_and_b32 v{T}, 3, v0')
    k(f'v_lshl_add_u32 v{OFF}, v{T}, 4, v{OFF}')
    k(f's_lshl_b32 {s(sT0)}, {s(stask)}, 6')
    for i in range(10):
        k(f'buffer_load_dwordx4 {v(W+4*i,4)}, v{OFF}, {s(S_B0,4)}, {s(sT0)} offen')
        if i < 9:
            k(f's_add_u32 {s(sT0)}, {s(sT0)}, 7680')
    k(f'v_mul_u32_u24 v{T}, 20, v3')
    for i in range(5):
        k(f'buffer_load_dword v{24+i}, v{T}, {s(S_B1,4)}, 0 offen offset:{4*i}')
    k('s_waitcnt vmcnt(0)')
    for i in range(5):
        unpack(k, 24 + i, C0 + 2 * i, C0 + 2 * i + 1)
    for i in range(10):
        silu(k, C0 + i, T)
    for i in range(0, 10, 2):
        rbf2(k, C0 + i, C0 + i + 1)
    for i in range(10):
        for d in range(4):
            unpack(k, W + 4 * i + d, 24, 25)
            if i == 0:
                k(f'v_mul_f32 v{ACC+2*d}, v{C0}, v24')
                k(f'v_mul_f32 v{ACC+2*d+1}, v{C0}, v25')
            else:
                k(f'v_fmac_f32 v{ACC+2*d}, v{C0+i}, v24')
                k(f'v_fmac_f32 v{ACC+2*d+1}, v{C0+i}, v25')
    k(f'v_lshlrev_b32 v{T}, 5, v0')
    k(f'ds_write_b128 v{T}, {v(ACC,4)}')
    k(f'ds_write_b128 v{T}, {v(ACC+4,4)} offset:16')
    k('s_waitcnt lgkmcnt(0)')
    k('s_barrier')
    k(f'v_and_b32 v{T}, 31, v0')
    k(f'v_lshlrev_b32 v{T}, 2, v{T}')
    k(f'v_lshrrev_b32 v3, 5, v0')
    k(f'v_lshl_add_u32 v3, v3, 10, v{T}')
    for i in range(8):
        k(f'ds_read_b32 v{ACC+i}, v3 offset:{128*i}')
    k('s_waitcnt lgkmcnt(0)')
    for i in range(1, 8):
        k(f'v_add_f32 v{ACC}, v{ACC}, v{ACC+i}')
    k(f'v_lshlrev_b32 v3, 2, v0')
    k(f'ds_write_b32 v3, v{ACC} offset:8192')
    k('s_waitcnt lgkmcnt(0)')
    k('s_barrier')
    for i in range(8):
        k(f'ds_read_b32 v{ACC+i}, v{T} offset:{8192 + 128*i}')
    k('s_waitcnt lgkmcnt(0)')
    for i in range(1, 8):
        k(f'v_add_f32 v{ACC}, v{ACC}, v{ACC+i}')
    rbf(k, ACC)
    k(f'v_add_f32 v{ACC+1}, 1.0, v{ACC}')
    rbf(k, ACC + 1)
    k(f's_sub_u32 {s(sT0)}, {s(stask)}, 20')
    k(f's_cmp_lt_u32 {s(sT0)}, 20')
    k(f's_cselect_b32 {s(sT1)}, 1, 0')
    k(f's_sub_u32 {s(sT0)}, {s(stask)}, 80')
    k(f's_cmp_lt_u32 {s(sT0)}, 20')
    k(f's_cselect_b32 {s(sT1)}, 1, {s(sT1)}')
    k(f's_cmp_eq_u32 {s(sT1)}, 1')
    k(f's_cselect_b64 vcc, -1, 0')
    k(f'v_cndmask_b32 v{ACC}, v{ACC}, v{ACC+1}, vcc')
    k(f's_lshl_b32 {s(sT0)}, {s(stask)}, 7')
    k(f's_add_u32 {s(sT0)}, {s(sT0)}, {MOD}')
    k(f'v_cmp_gt_u32 vcc, 32, v0')
    k(f's_and_saveexec_b64 {s(sT2,2)}, vcc')
    skip = k.newlabel('modskip')
    k(f's_cbranch_execz {skip}')
    k(f'buffer_store_dword v{ACC}, v{T}, {s(S_WS,4)}, {s(sT0)} offen{sc}')
    k.label(skip)
    k('s_mov_b64 exec, -1')

def row16_sum(k, r):
    for sh in (1, 2, 4, 8):
        k(f'v_add_f32 v{r}, v{r}, v{r} row_ror:{sh}')

def emit_ln1(k, srow, pre_wait):
    RO, CO, TO, T = 1, 2, 3, 4
    XR, V, SC, SH = 8, 32, 72, 112
    k(f'v_lshrrev_b32 v{T}, 4, v0')
    k(f'v_add_u32 v{T}, {s(srow)}, v{T}')
    k(f'v_mul_u32_u24 v{RO}, 1280, v{T}')
    k(f'v_and_b32 v5, 15, v0')
    k(f'v_lshl_add_u32 v{RO}, v5, 4, v{RO}')
    k(f'v_lshlrev_b32 v{CO}, 5, v5')
    k(f'v_lshrrev_b32 v6, 4, v{T}')
    k(f'v_mul_u32_u24 v{TO}, 20480, v6')
    k(f'v_and_b32 v6, 15, v{T}')
    k(f'v_lshl_add_u32 v{TO}, v6, 4, v{TO}')
    bits(k, TO, 0, [(0, 2, 8), (2, 2, 10)], 6, first=False)
    for i in range(5):
        k(f'buffer_load_dwordx4 {v(XR+4*i,4)}, v{RO}, {s(S_X,4)}, 0 offen offset:{256*i}')
    k('s_waitcnt vmcnt(0)')
    for i in range(20):
        unpack(k, XR + i, V + 2 * i, V + 2 * i + 1)
    MU, VAR, D0 = 5, 6, 28
    k(f'v_pk_add_f32 {v(D0,2)}, {v(V,2)}, {v(V+2,2)}')
    for i in range(4, 40, 2):
        k(f'v_pk_add_f32 {v(D0,2)}, {v(D0,2)}, {v(V+i,2)}')
    k(f'v_add_f32 v{MU}, v{D0}, v{D0+1}')
    row16_sum(k, MU)
    k(f'v_mul_f32 v{MU}, 0x3acccccd, v{MU}')
    k(f'v_mov_b32 v{VAR}, 0')
    for i in range(40):
        k(f'v_sub_f32 v{D0 + (i&1)}, v{V+i}, v{MU}')
        k(f'v_fmac_f32 v{VAR}, v{D0 + (i&1)}, v{D0 + (i&1)}')
    row16_sum(k, VAR)
    k(f'v_mul_f32 v{VAR}, 0x3acccccd, v{VAR}')
    rbf2(k, MU, VAR)
    k(f'v_add_f32 v{VAR}, 0x3727c5ac, v{VAR}')
    rbf(k, VAR)
    k(f'v_sqrt_f32 v{VAR}, v{VAR}')
    rbf(k, VAR)
    k(f'v_rcp_f32 v{D0}, v{VAR}')
    k(f'v_mov_b32 v{D0+2}, v{MU}')
    for i in range(0, 40, 2):
        k(f'v_pk_add_f32 {v(V+i,2)}, {v(V+i,2)}, {v(D0+2,2)} op_sel_hi:[1,0] neg_lo:[0,1] neg_hi:[0,1]')
        rbf2(k, V + i, V + i + 1)
        k(f'v_pk_mul_f32 {v(V+i,2)}, {v(V+i,2)}, {v(D0,2)} op_sel_hi:[1,0]')
        rbf2(k, V + i, V + i + 1)
    pre_wait()
    k(f's_mov_b32 {s(sT0)}, {MOD}')
    k(f's_mov_b32 {s(sT2)}, {MOD + 2560}')
    for i in range(5):
        for h in range(2):
            k(f'buffer_load_dwordx4 {v(SC+8*i+4*h,4)}, v{CO}, {s(S_WS,4)}, {s(sT2)} offen offset:{512*i+16*h} sc1')
            k(f'buffer_load_dwordx4 {v(SH+8*i+4*h,4)}, v{CO}, {s(S_WS,4)}, {s(sT0)} offen offset:{512*i+16*h} sc1')
    OUT = 152
    k(f's_mov_b32 {s(sT1)}, {H}')
    for i in range(5):
        k(f's_waitcnt vmcnt({16 - 3*i})')
        for j in range(8 * i, 8 * i + 8, 2):
            k(f'v_pk_mul_f32 {v(V+j,2)}, {v(V+j,2)}, {v(SC+j,2)}')
            rbf2(k, V + j, V + j + 1)
            k(f'v_pk_add_f32 {v(V+j,2)}, {v(V+j,2)}, {v(SH+j,2)}')
            k(f'v_cvt_pk_bf16_f32 v{OUT+j//2}, v{V+j}, v{V+j+1}')
        k(f'buffer_store_dwordx4 {v(OUT+4*i,4)}, v{TO}, {s(S_WS,4)}, {s(sT1)} offen sc1')
        k(f's_add_u32 {s(sT1)}, {s(sT1)}, 4096')

def b_lane_setup(k, dst, rd0, ldb, perm, T, nbase):
    if perm:
        k(f'v_lshrrev_b32 v{dst}, 2, v0')
    else:
        bits(k, dst, 0, [(4, 2, 3), (2, 2, 0)], T)
    k(f's_mov_b32 {s(sT1)}, {ldb}')
    k(f'v_mul_lo_u32 v{dst}, v{dst}, {s(sT1)}')
    k(f'v_lshrrev_b32 v{T}, 3, v0')
    k(f'v_and_b32 v{T}, 2, v{T}')
    k(f'v_xor_b32 v{T}, v{T}, v0')
    k(f'v_and_b32 v{T}, 3, v{T}')
    k(f'v_lshl_add_u32 v{dst}, v{T}, 4, v{dst}')
    bits(k, rd0, 0, [(2, 4, 6), (4, 1, 5), (0, 2, 3)], T)
    k(f'v_xor_b32 v{rd0+1}, 32, v{rd0}')
    for b in range(1, nbase):
        k(f'v_add_u32 v{rd0+2*b}, {b << 16}, v{rd0}')
        k(f'v_add_u32 v{rd0+2*b+1}, {b << 16}, v{rd0+1}')

def emit_gemm(k, RT, CT, NK, NS, ldb, a_rt_stride, perm, trans, srd_of, name, ldsc='', gcol=None, pre_wait=None, overlap=None, early=False):
    assert NK % NS == 0 and CT % 4 == 0
    NPW = CT // 4
    vAO, T, vRD, vBO = 1, 2, 4, 8
    AB = 16
    BF = AB + NS * RT * 4
    NF = 8
    LA = 6
    assert (NS * CT) % NF == 0
    ACC = 128
    assert BF + 4 * NF <= ACC and ACC + RT * CT * 4 <= 256
    STG = CT * 1024
    assert NS * STG <= 131072
    hrow = 16 if perm else 4
    k(f'v_lshlrev_b32 v{vAO}, 4, v0')
    b_lane_setup(k, vBO, vRD, ldb, perm, T, 2)
    k(f's_and_b32 {s(sT0)}, {s(sW)}, 1')
    k(f's_mul_i32 {s(sT0)}, {s(sT0)}, {hrow * ldb}')
    k(f's_lshr_b32 {s(sT1)}, {s(sW)}, 1')
    k(f's_lshl_b32 {s(sT1)}, {s(sT1)}, 6')
    k(f's_add_u32 {s(sT0)}, {s(sT0)}, {s(sT1)}')
    k(f'v_add_u32 v{vBO}, {s(sT0)}, v{vBO}')
    gcol = gcol or (lambda i: 128 * i)
    for i in range(NPW - 1, -1, -1):
        k(f'v_add_u32 v{vBO+i}, {gcol(i)}, v{vBO}')
    k(f's_lshl_b32 {s(sM0)}, {s(sW)}, 10')
    def b_ops(slot):
        ops = []
        for i in range(NPW):
            ops.append(f's_add_u32 m0, {s(sM0)}, {slot*STG + i*4096}')
            ops.append(f'buffer_load_dwordx4 v{vBO+i}, {s(srd_of(i),4)}, {s(sB)} offen lds')
        ops.append(f's_add_u32 {s(sB)}, {s(sB)}, {32*ldb}')
        return ops
    def a_ops(slot):
        ops = []
        for rt in range(RT):
            if rt == 0:
                ops.append(f'buffer_load_dwordx4 {v(AB+(slot*RT)*4,4)}, v{vAO}, {s(S_WS,4)}, {s(sA)} offen{ldsc}')
            else:
                ops.append(f's_add_u32 {s(sT1)}, {s(sA)}, {rt*a_rt_stride}')
                ops.append(f'buffer_load_dwordx4 {v(AB+(slot*RT+rt)*4,4)}, v{vAO}, {s(S_WS,4)}, {s(sT1)} offen{ldsc}')
        ops.append(f's_add_u32 {s(sA)}, {s(sA)}, 1024')
        return ops
    vm = []
    def emit(ops, tag):
        for op in ops:
            k(op)
            if op.startswith('buffer_'):
                vm.append(tag)
    def vwait(tag):
        idx = [i for i, t in enumerate(vm) if t <= tag]
        n = len(vm) - 1 - max(idx) if idx else len(vm)
        k(f's_waitcnt vmcnt({n})')
        if idx:
            del vm[:max(idx) + 1]
        return n
    for sl in range(NS - 1):
        emit(b_ops(sl), sl)
    if overlap and early:
        overlap(len(vm))
    if pre_wait:
        pre_wait()
    for sl in range(NS - 1):
        emit(a_ops(sl), sl)
    if overlap and not early:
        overlap(len(vm))
    def brd(slot, c, n):
        for hh in range(2):
            o_ = slot * STG + (c >> 1) * 2048 + hh * 1024
            k(f'ds_read_b64_tr_b16 {v(BF + 4*(n%NF) + 2*hh, 2)}, v{vRD + 2*(o_ >> 16) + (c & 1)} offset:{o_ & 0xffff}')
    vwait(0)
    k('s_barrier')
    for n in range(LA):
        brd(0, n, n)
    def body(base, steady):
        n = 0
        for sl in range(NS):
            ks = base + sl
            if steady:
                k(f's_waitcnt vmcnt({(NS-3)*(NPW+RT)})')
            else:
                vwait(ks + 1)
            k('s_barrier')
            ops = b_ops((sl + NS - 1) % NS) + a_ops((sl + NS - 1) % NS)
            for c in range(CT):
                if c % 2 == 0:
                    k(f's_waitcnt lgkmcnt({2*(LA-2)})')
                for rt in range(RT):
                    acc = v(ACC + (rt * CT + c) * 4, 4)
                    A_, B_ = v(AB + (sl * RT + rt) * 4, 4), v(BF + 4 * (n % NF), 4)
                    if trans[c]:
                        A_, B_ = B_, A_
                    k(f'{MF32} {acc}, {A_}, {B_}, {"0" if ks == 0 else acc}')
                    if rt == 0:
                        c2 = c + LA
                        brd(sl if c2 < CT else (sl + 1) % NS, c2 % CT, n + LA)
                    elif ops:
                        emit(ops[:2], ks + NS - 1); del ops[:2]
                n += 1
            assert not ops
    body(0, False)
    k(f's_mov_b32 {s(sCNT)}, {NK // NS - 1}')
    loop = f'{name}_loop'
    k.raw('.p2align 3')
    k.label(loop)
    body(NS, True)
    k(f's_sub_u32 {s(sCNT)}, {s(sCNT)}, 1')
    k(f's_cmp_lg_u32 {s(sCNT)}, 0')
    k(f's_cbranch_scc1 {loop}')
    k('s_waitcnt vmcnt(0) lgkmcnt(0)')
    k('s_barrier')

def emit_burst_b(k, CT, NK, ldb, perm, srd, sBo, lds0):
    STG = CT * 1024
    NKW = (NK + 3) // 4
    assert lds0 + NKW * 4 * STG <= 163840
    hrow = 16 if perm else 4
    b_lane_setup(k, 3, 4, ldb, perm, 2, 1)
    k(f's_mul_i32 {s(sT0)}, {s(sW)}, {32*ldb}')
    k(f's_add_u32 {s(sBo)}, {s(sBo)}, {s(sT0)}')
    k(f's_mul_i32 {s(sM0)}, {s(sW)}, {STG}')
    for i in range(NKW):
        for d in range(CT):
            k(f's_add_u32 m0, {s(sM0)}, {lds0 + i*4*STG + d*1024}')
            k(f's_add_u32 {s(sT0)}, {s(sBo)}, {i*128*ldb + (d & 1)*hrow*ldb + (d >> 1)*64}')
            k(f'buffer_load_dwordx4 v3, {s(srd,4)}, {s(sT0)} offen lds')

def emit_burst(k, CT, NK, ldb, perm, srd, pre_wait, lds0=0, ldsc=' sc1', mid=None, b_done=False):
    assert CT % 2 == 0
    vAO, T, vBO, vRD = 1, 2, 3, 4
    AB = 16
    NF = 8
    BF = AB + NK * 4
    if BF + 4 * NF + 4 * CT > 256:
        NF = 4
    ACC = BF + 4 * NF
    useA = ACC + 4 * CT > 256
    accr = (lambda c: a(4 * c, 4)) if useA else (lambda c: v(ACC + 4 * c, 4))
    STG = CT * 1024
    NKW = (NK + 3) // 4
    assert lds0 + NKW * 4 * STG <= 163840
    hrow = 16 if perm else 4
    if not b_done:
        emit_burst_b(k, CT, NK, ldb, perm, srd, sB, lds0)
    k(f'v_lshlrev_b32 v{vAO}, 4, v0')
    b_lane_setup(k, vBO, vRD, ldb, perm, T, 3)
    if mid:
        mid()
    pre_wait()
    for ks in range(NK):
        if ks and ks % 4 == 0:
            k(f's_add_u32 {s(sA)}, {s(sA)}, 4096')
        k(f'buffer_load_dwordx4 {v(AB+4*ks,4)}, v{vAO}, {s(S_WS,4)}, {s(sA)} offen offset:{(ks&3)*1024}{ldsc}')
    if not b_done:
        k('s_barrier')
    LA = NF - 1
    TOT = NK * CT
    def brd(n):
        ks, c = divmod(n, CT)
        for hh in range(2):
            o_ = lds0 + ks * STG + (c >> 1) * 2048 + hh * 1024
            k(f'ds_read_b64_tr_b16 {v(BF + 4*(n%NF) + 2*hh, 2)}, v{vRD + 2*(o_ >> 16) + (c & 1)} offset:{o_ & 0xffff}')
    for n in range(LA):
        brd(n)
    for n in range(TOT):
        ks, c = divmod(n, CT)
        ahead = min(LA - 1, TOT - 1 - n)
        if c == 0:
            k(f's_waitcnt vmcnt({NK-1-ks}) lgkmcnt({2*ahead})')
        else:
            k(f's_waitcnt lgkmcnt({2*ahead})')
        k(f'{MF32} {accr(c)}, {v(BF + 4*(n%NF),4)}, {v(AB+4*ks,4)}, {"0" if ks == 0 else accr(c)}')
        if n + LA < TOT:
            brd(n + LA)
    assert not useA
    return ACC

def acc_read(k, dst, accidx, n=4):
    for i in range(n):
        k(f'v_accvgpr_read_b32 v{dst+i}, a{accidx+i}')

def emit_qkv_main(k, kind, sRB, sHD, sOUT, name, pre_wait, overlap, RT=2, NS=5):
    isq = kind == 'q'
    k(f's_lshl_b32 {s(sE1)}, {s(sRB)}, 2')
    k(f's_add_u32 {s(sE1)}, {s(sE1)}, {s(sW)}')
    k(f's_mul_i32 {s(sA)}, {s(sE1)}, {RT*20480}')
    k(f's_add_u32 {s(sA)}, {s(sA)}, {H}')
    k(f's_lshl_b32 {s(sB)}, {s(sHD)}, {9 if isq else 8}')
    if isq:
        emit_gemm(k, RT, 16, 20, NS, 8192, 20480, False, [True] * 16, lambda i: S_B0, name, ' sc1', pre_wait=pre_wait, overlap=overlap, early=True)
    elif kind == 'kv':
        emit_gemm(k, RT, 16, 20, NS, 8192, 20480, False, [True] * 8 + [False] * 8, lambda i: S_B0 if i < 2 else S_B1, name, ' sc1',
                  gcol=lambda i: 128 * (i & 1), pre_wait=pre_wait, overlap=overlap)
    else:
        emit_gemm(k, RT, 8, 20, 10, 8192, 20480, False, [kind == 'k'] * 8, lambda i: S_B0, name, ' sc1', pre_wait=pre_wait, overlap=overlap, early=True)
    k(f's_lshl_b32 {s(sOUT)}, {s(sE1)}, {18 if isq else 19}')
    k(f's_lshl_b32 {s(sT1)}, {s(sHD)}, 14')
    k(f's_add_u32 {s(sOUT)}, {s(sOUT)}, {s(sT1)}')
    k(f's_add_u32 {s(sOUT)}, {s(sOUT)}, {QT if isq else KV}')

def emit_qkv_epi(k, kind, sOUT):
    CT, ACC = (16 if kind in ('q', 'kv') else 8), 128
    n = 0; cur = 0
    def piece(t0, t1, off):
        nonlocal n, cur
        R = 88 + 4 * (n % 10); n += 1
        for i, t in enumerate((t0, t1)):
            k(f'v_cvt_pk_bf16_f32 v{R+2*i}, v{ACC+4*t}, v{ACC+4*t+1}')
            k(f'v_cvt_pk_bf16_f32 v{R+2*i+1}, v{ACC+4*t+2}, v{ACC+4*t+3}')
        if off & ~0xfff != cur:
            k(f's_add_u32 {s(sOUT)}, {s(sOUT)}, {(off & ~0xfff) - cur}'); cur = off & ~0xfff
        k(f'buffer_store_dwordx4 {v(R,4)}, v1, {s(S_WS,4)}, {s(sOUT)} offen offset:{off & 0xfff} sc1')
    def ktiles(c0, base):
        for kt in range(2):
            for j in range(4):
                piece(kt * CT + c0 + 2 * j, kt * CT + c0 + 2 * j + 1, base + kt * 4096 + j * 1024)
    def vtiles(c0):
        for et in range(8):
            piece(c0 + et, CT + c0 + et, 8192 + et * 1024)
    if kind == 'q':
        ktiles(0, 0); ktiles(8, 8192)
    if kind in ('k', 'kv'):
        ktiles(0, 0)
    if kind in ('v', 'kv'):
        vtiles(CT - 8)
    if kind in ('k', 'kv'):
        k(f's_sub_u32 {s(sT0)}, {s(sOUT)}, {KV + cur}')
        k(f's_lshr_b32 {s(sT0)}, {s(sT0)}, 2')
        k(f's_add_u32 {s(sT0)}, {s(sT0)}, {KVM}')
        k(f'v_mov_b64 {v(ACC,2)}, -1')
        k(f'v_mov_b64 {v(ACC+2,2)}, -1')
        for i in range(4):
            k(f'buffer_store_dwordx4 {v(ACC,4)}, v1, {s(S_WS,4)}, {s(sT0)} offen offset:{1024*i} sc1')

def emit_att_setup(k):
    k('v_lshlrev_b32 v1, 4, v0')
    bits(k, 2, 0, [(2, 4, 4), (0, 1, 3)], 4)
    bits(k, 3, 0, [(0, 4, 4), (4, 1, 3), (5, 1, 8)], 4)
    k(f's_lshl_b32 {s(sT0)}, {s(sW)}, 11')
    k(f'v_add_u32 v2, {s(sT0)}, v2')
    k(f'v_add_u32 v3, {s(sT0)}, v3')
    k('v_and_b32 v4, 15, v0')
    k('v_lshrrev_b32 v5, 4, v0')
    k('v_lshlrev_b32 v5, 2, v5')
    for r in range(4):
        k(f'v_add_u32 v6, {r}, v5')
        k(f'v_cmp_le_u32 {s(60+2*r,2)}, v6, v4')
    k(f's_mov_b64 {s(68,2)}, 0xffffffff')
    k(f's_not_b64 {s(58,2)}, {s(68,2)}')

def emit_att_task(k, sSEG, sHD, wait_kvm):
    Q, K_, V_, KMm, X, S, P, O = 8, 40, 72, 104, 120, 136, 160, 8
    k(f's_lshl_b32 {s(sT0)}, {s(sSEG)}, 5')
    k(f's_add_u32 {s(sT0)}, {s(sT0)}, {s(sHD)}')
    k(f's_lshl_b32 {s(sT1)}, {s(sT0)}, 13')
    k(f's_add_u32 {s(sT1)}, {s(sT1)}, {QT}')
    k(f's_lshl_b32 {s(sT2)}, {s(sT0)}, 14')
    k(f's_add_u32 {s(sT2)}, {s(sT2)}, {KV}')
    k(f's_lshl_b32 {s(sT3)}, {s(sT0)}, 12')
    k(f's_add_u32 {s(sT3)}, {s(sT3)}, {KVM}')
    def ld8(dst, so):
        for i in range(8):
            if i == 4:
                k(f's_add_u32 {s(so)}, {s(so)}, 4096')
            k(f'buffer_load_dwordx4 {v(dst+4*i,4)}, v1, {s(S_WS,4)}, {s(so)} offen offset:{(i&3)*1024} sc1')
    ld8(Q, sT1); ld8(K_, sT2)
    k(f's_add_u32 {s(sT2)}, {s(sT2)}, 4096')
    ld8(V_, sT2)
    k(f'v_mov_b32 v6, 0xce6e6b28')
    k(f's_mov_b32 {s(sE0)}, 0x3db504f3')
    k(f's_mov_b32 {s(sE1)}, {LOG2E}')
    def scores(qt, t):
        for j in range(4):
            A_ = v(KMm + 4 * j, 4) if t == 0 else v(K_ + 16 * (t - 1) + 4 * j, 4)
            D = v(S + 12 * qt + 4 * t, 4)
            k(f'{MF32} {D}, {A_}, {v(Q+16*qt+4*j,4)}, {"0" if j == 0 else D}')
    def rnd(regs):
        for i in range(0, len(regs), 2):
            rbf2(k, regs[i], regs[i + 1])
            k(f'v_mul_f32 v{regs[i]}, {s(sE0)}, v{regs[i]}')
            k(f'v_mul_f32 v{regs[i+1]}, {s(sE0)}, v{regs[i+1]}')
            rbf2(k, regs[i], regs[i + 1])
    def vmax(M, regs, first):
        rest = list(regs)
        if first:
            k(f'v_max3_f32 v{M}, v{rest[0]}, v{rest[1]}, v{rest[2]}'); rest = rest[3:]
        while rest:
            if len(rest) >= 2:
                k(f'v_max3_f32 v{M}, v{M}, v{rest[0]}, v{rest[1]}'); rest = rest[2:]
            else:
                k(f'v_max_f32 v{M}, v{M}, v{rest[0]}'); rest = rest[1:]
    k('s_waitcnt vmcnt(8)')
    scores(0, 1); scores(1, 1); scores(1, 2)
    MX = (176, 177)
    tok = [list(range(S + 4, S + 8)), list(range(S + 16, S + 24))]
    for qt in range(2):
        rnd(tok[qt])
        for r in range(4):
            k(f'v_cndmask_b32 v{tok[qt][-4+r]}, v6, v{tok[qt][-4+r]}, {s(60+2*r,2)}')
        vmax(MX[qt], tok[qt], True)
    k(f'v_mov_b64 {v(P+2,2)}, 0')
    wait_kvm(X)
    for i in range(4):
        k(f'ds_write_b64 v3, {v(X+4*i+2,2)} offset:{512*i}')
    k('s_waitcnt lgkmcnt(0)')
    for j in range(4):
        for hh in range(2):
            k(f'ds_read_b64_tr_b16 {v(KMm+4*j+2*hh,2)}, v2 offset:{j*512+hh*256}')
    k('s_waitcnt lgkmcnt(0)')
    scores(0, 0); scores(1, 0)
    for qt in range(2):
        mem = list(range(S + 12 * qt, S + 12 * qt + 4))
        regs = mem + tok[qt]
        M, M2 = MX[qt], 5
        rnd(mem)
        vmax(M, mem, False)
        for sw in ('v_permlane16_swap_b32', 'v_permlane32_swap_b32'):
            k(f'v_mov_b32 v{M2}, v{M}')
            k(f'{sw} v{M}, v{M2}')
            k(f'v_max_f32 v{M}, v{M}, v{M2}')
        for r in regs:
            k(f'v_sub_f32 v{r}, v{r}, v{M}')
        for r in regs:
            k(f'v_mul_f32 v{r}, {s(sE1)}, v{r}')
        for r in regs:
            k(f'v_exp_f32 v{r}, v{r}')
        k(f'v_add_f32 v{M}, v{mem[0]}, v{mem[1]}')
        k(f'v_add_f32 v{M2}, v{mem[2]}, v{mem[3]}')
        k(f'v_add_f32 v{M}, v{M}, v{M2}')
        k(f'v_cndmask_b32 v{M}, 0, v{M}, {s(68,2)}')
        for r in tok[qt]:
            k(f'v_add_f32 v{M}, v{M}, v{r}')
        for sw in ('v_permlane16_swap_b32', 'v_permlane32_swap_b32'):
            k(f'v_mov_b32 v{M2}, v{M}')
            k(f'{sw} v{M}, v{M2}')
            k(f'v_add_f32 v{M}, v{M}, v{M2}')
        k(f'v_rcp_f32 v{M}, v{M}')
        for r in regs:
            k(f'v_mul_f32 v{r}, v{r}, v{M}')
        for i in range(2):
            k(f'v_cvt_pk_bf16_f32 v{mem[i]}, v{mem[2*i]}, v{mem[2*i+1]}')
        for i in range(2):
            k(f'v_cndmask_b32 v{P+8*qt+4+i}, 0, v{mem[i]}, {s(68,2)}')
            k(f'v_cndmask_b32 v{P+8*qt+6+i}, 0, v{mem[i]}, {s(58,2)}')
        for i in range(len(tok[qt]) // 2):
            k(f'v_cvt_pk_bf16_f32 v{P+8*qt+i}, v{tok[qt][2*i]}, v{tok[qt][2*i+1]}')
    k(f's_lshl_b32 {s(sT0)}, {s(sSEG)}, 18')
    k(f's_lshl_b32 {s(sT1)}, {s(sHD)}, 12')
    k(f's_add_u32 {s(sT0)}, {s(sT0)}, {s(sT1)}')
    k(f's_add_u32 {s(sT0)}, {s(sT0)}, {OO}')
    for qt in range(2):
        for et in range(8):
            D = v(O + 32 * qt + 4 * et, 4)
            k(f'{MF32} {D}, {v(V_+4*et,4)}, {v(P+8*qt,4)}, 0')
        for et in range(8):
            D = v(O + 32 * qt + 4 * et, 4)
            k(f'v_mfma_f32_16x16x16_bf16 {D}, {v(X+4*(et>>1),2)}, {v(P+8*qt+4+2*(et&1),2)}, {D}')
    for qt in range(2):
        for j in range(4):
            R = S + 4 * ((4 * qt + j) % 6)
            for i in range(4):
                k(f'v_cvt_pk_bf16_f32 v{R+i}, v{O+32*qt+8*j+2*i}, v{O+32*qt+8*j+2*i+1}')
            k(f'buffer_store_dwordx4 {v(R,4)}, v1, {s(S_WS,4)}, {s(sT0)} offen offset:{j*1024} sc1')
        if qt == 0:
            k(f's_add_u32 {s(sT0)}, {s(sT0)}, {128*1024}')

def emit_wo_task(k, sG, sCB, sSP, CT, NSPLIT, pre_wait):
    NK = 128 // NSPLIT
    k(f's_lshl_b32 {s(sE1)}, {s(sG)}, 2')
    k(f's_add_u32 {s(sE1)}, {s(sE1)}, {s(sW)}')
    k(f's_lshl_b32 {s(sA)}, {s(sE1)}, 17')
    k(f's_mul_i32 {s(sT1)}, {s(sSP)}, {NK*1024}')
    k(f's_add_u32 {s(sA)}, {s(sA)}, {s(sT1)}')
    k(f's_add_u32 {s(sA)}, {s(sA)}, {OO}')
    k(f's_mul_i32 {s(sB)}, {s(sSP)}, {NK*32*1280}')
    k(f's_mul_i32 {s(sT1)}, {s(sCB)}, {CT*32}')
    k(f's_add_u32 {s(sB)}, {s(sB)}, {s(sT1)}')
    k(f's_mul_i32 {s(sE0)}, {s(sSP)}, {2048*2560}')
    k(f's_lshl_b32 {s(sT1)}, {s(sT1)}, 3')
    k(f's_add_u32 {s(sE0)}, {s(sE0)}, {s(sT1)}')
    k(f's_mul_i32 {s(sT1)}, {s(sE1)}, {16*2560}')
    k(f's_add_u32 {s(sE0)}, {s(sE0)}, {s(sT1)}')
    k(f's_add_u32 {s(sE0)}, {s(sE0)}, {PART}')
    def mid():
        k('v_bfe_u32 v12, v0, 2, 2')
        k('v_mul_u32_u24 v12, 10240, v12')
        bits(k, 12, 0, [(4, 2, 6), (0, 2, 4)], 2, first=False)
    ACC = emit_burst(k, CT, NK, 1280, True, S_B0, pre_wait, mid=mid, b_done=True)
    for c in range(CT):
        k(f'buffer_store_dwordx4 {v(ACC+4*c,4)}, v12, {s(S_WS,4)}, {s(sE0)} offen offset:{256*c} sc1')

def emit_ff1_task(k, sG, sCB, CT, pre_wait, lds0=0):
    k(f's_lshl_b32 {s(sE1)}, {s(sG)}, 2')
    k(f's_add_u32 {s(sE1)}, {s(sE1)}, {s(sW)}')
    k(f's_mul_i32 {s(sA)}, {s(sE1)}, 20480')
    k(f's_add_u32 {s(sA)}, {s(sA)}, {H2}')
    k(f's_mul_i32 {s(sB)}, {s(sCB)}, {CT*32}')
    k(f's_mul_i32 {s(sE0)}, {s(sE1)}, {54*1024}')
    k(f's_mul_i32 {s(sT1)}, {s(sCB)}, {CT//2*1024}')
    k(f's_add_u32 {s(sE0)}, {s(sE0)}, {s(sT1)}')
    k(f's_add_u32 {s(sE0)}, {s(sE0)}, {FF}')
    ACC = emit_burst(k, CT, 20, 3456, False, S_B0, pre_wait, lds0=lds0, b_done=True)
    for j in range(CT // 2):
        R = ACC + 8 * j
        for i in range(0, 8, 2):
            rbf2(k, R + i, R + i + 1)
        TT = 16
        for i in range(8):
            k(f'v_mul_f32 v{TT+i}, 0xbfb8aa3b, v{R+i}')
        for i in range(8):
            k(f'v_exp_f32 v{TT+i}, v{TT+i}')
        for i in range(8):
            k(f'v_add_f32 v{TT+i}, 1.0, v{TT+i}')
        for i in range(8):
            k(f'v_rcp_f32 v{TT+i}, v{TT+i}')
        for i in range(0, 8, 2):
            k(f'v_pk_mul_f32 {v(R+i,2)}, {v(R+i,2)}, {v(TT+i,2)}')
        for i in range(4):
            k(f'v_cvt_pk_bf16_f32 v{32+4*j+i}, v{R+2*i}, v{R+2*i+1}')
        k(f'buffer_store_dwordx4 {v(32+4*j,4)}, v1, {s(S_WS,4)}, {s(sE0)} offen offset:{j*1024} sc1')

def emit_ff2_task(k, sG, sCB, CT, pre_wait, lds0=0):
    k(f's_lshl_b32 {s(sE1)}, {s(sG)}, 2')
    k(f's_add_u32 {s(sE1)}, {s(sE1)}, {s(sW)}')
    k(f's_mul_i32 {s(sA)}, {s(sE1)}, {54*1024}')
    k(f's_add_u32 {s(sA)}, {s(sA)}, {FF}')
    k(f's_mul_i32 {s(sB)}, {s(sCB)}, {CT*32}')
    k(f's_mul_i32 {s(sE0)}, {s(sE1)}, {16*1280}')
    k(f's_add_u32 {s(sE0)}, {s(sE0)}, {s(sB)}')
    k(f's_lshl_b32 {s(sE2)}, {s(sB)}, 1')
    k(f's_add_u32 {s(sE2)}, {s(sE2)}, {MOD + 5*2560}')
    def mid():
        k('v_and_b32 v12, 15, v0')
        k('v_mul_u32_u24 v12, 1280, v12')
        bits(k, 12, 0, [(4, 2, 3)], 2, first=False)
        bits(k, 13, 0, [(4, 2, 4)], 2)
        for c in range(CT):
            k(f'buffer_load_dwordx4 {a(8+4*c,4)}, v13, {s(S_WS,4)}, {s(sE2)} offen offset:{64*c} sc1')
    def pw():
        pre_wait()
        k(f's_add_u32 {s(sT0)}, {s(sE0)}, {X1}')
        for c in range(CT):
            k(f'buffer_load_dwordx2 {a(2*c,2)}, v12, {s(S_WS,4)}, {s(sT0)} offen offset:{32*c} sc1')
    ACC = emit_burst(k, CT, 54, 1280, True, S_B0, pw, lds0=lds0, mid=mid, b_done=True)
    XB, GB = 16, 24
    acc_read(k, XB, 0, 2 * CT)
    acc_read(k, GB, 8, 4 * CT)
    for c in range(CT):
        for h in range(2):
            r = ACC + 4 * c + 2 * h
            rbf2(k, r, r + 1)
            k(f'v_pk_mul_f32 {v(r,2)}, {v(r,2)}, {v(GB+4*c+2*h,2)}')
            rbf2(k, r, r + 1)
            unpack(k, XB + 2 * c + h, 6, 7)
            k(f'v_pk_add_f32 {v(r,2)}, {v(r,2)}, v[6:7]')
            k(f'v_cvt_pk_bf16_f32 v{XB+2*c+h}, v{r}, v{r+1}')
        k(f'buffer_store_dwordx2 {v(XB+2*c,2)}, v12, {s(S_OUT,4)}, {s(sE0)} offen offset:{32*c}')

def wave_sum(k, r, t):
    row16_sum(k, r)
    for sw in ('v_permlane16_swap_b32', 'v_permlane32_swap_b32'):
        k(f'v_mov_b32 v{t}, v{r}')
        k(f'{sw} v{r}, v{t}')
        k(f'v_add_f32 v{r}, v{r}, v{t}')

def quad_sum(k, r, t):
    k(f'v_add_f32 v{r}, v{r}, v{r} row_ror:4')
    k(f'v_add_f32 v{r}, v{r}, v{r} row_ror:8')
    for sw in ('v_permlane16_swap_b32', 'v_permlane32_swap_b32'):
        k(f'v_mov_b32 v{t}, v{r}')
        k(f'{sw} v{r}, v{t}')
        k(f'v_add_f32 v{r}, v{r}, v{t}')

def emit_ln2_quad(k, sq, nsplit, pre_wait, ldsx, top_label):
    L16, CO, RO, TO, MU, VAR, T, LX = 1, 2, 3, 4, 5, 6, 7, 10
    D0 = 8
    XR, G, SC, SH, P = 12, 20, 32, 44, 56
    V = P
    NP = 3
    k(f'v_lshlrev_b32 v{L16}, 4, v0')
    k(f's_lshl_b32 {s(sT0)}, {s(sW)}, 8')
    k(f'v_and_b32 v{CO}, 0x3c0, v{L16}')
    k(f'v_lshrrev_b32 v{CO}, 2, v{CO}')
    k(f'v_add_u32 v{CO}, {s(sT0)}, v{CO}')
    k(f'v_and_b32 v{T}, 3, v0')
    k(f'v_mul_u32_u24 v{RO}, 1280, v{T}')
    k(f'v_lshrrev_b32 v{D0}, 1, v{CO}')
    k(f'v_add_u32 v{RO}, v{RO}, v{D0}')
    bits(k, TO, 0, [(5, 1, 10), (3, 2, 8), (0, 2, 4), (2, 1, 3)], D0)
    k(f's_lshl_b32 {s(sT0)}, {s(sW)}, 11')
    k(f'v_add_u32 v{TO}, {s(sT0)}, v{TO}')
    k(f's_lshl_b32 {s(sT0)}, {s(sW)}, 4')
    k(f'v_lshl_add_u32 v{LX}, v{T}, 2, {s(sT0)}')
    k(f'v_lshlrev_b32 v{LX+1}, 2, v{T}')
    last = k.newlabel('ln2n')
    def guarded(fn):
        for p in range(2):
            fn(p)
        sk = k.newlabel('ln2s')
        k(f's_cmp_ge_u32 {s(sW)}, 2'); k(f's_cbranch_scc1 {sk}')
        fn(2)
        k.label(sk)
    for r in [XR + 4, G + 8, G + 10, SC + 8, SC + 10, SH + 8, SH + 10]:
        k(f'v_mov_b64 {v(r,2)}, 0')
    def ld_mod(p):
        for dst, idx in ((G, 2), (SC, 4), (SH, 3)):
            k(f's_mov_b32 {s(sT0)}, {MOD + idx * 2560}')
            k(f'buffer_load_dwordx4 {v(dst+4*p,4)}, v{CO}, {s(S_WS,4)}, {s(sT0)} offen offset:{1024*p} sc1')
    guarded(ld_mod)
    k.label(top_label)
    k(f's_mul_i32 {s(sE0)}, {s(sq)}, 5120')
    guarded(lambda p: k(f'buffer_load_dwordx2 {v(XR+2*p,2)}, v{RO}, {s(S_X,4)}, {s(sE0)} offen offset:{512*p}'))
    pre_wait()
    k(f's_lshl_b32 {s(sT0)}, {s(sE0)}, 1')
    k(f's_lshl_b32 {s(sT1)}, {s(sW)}, 10')
    k(f's_add_u32 {s(sT0)}, {s(sT0)}, {s(sT1)}')
    k(f's_add_u32 {s(sT0)}, {s(sT0)}, {PART}')
    k(f's_cmp_lt_u32 {s(sW)}, 2')
    k(f's_cselect_b32 {s(sT2)}, 2, 1')
    k(f's_lshl_b32 {s(sT2)}, {s(sT2)}, 12')
    for sp in range(nsplit):
        k(f's_add_u32 {s(sT1)}, {s(sT0)}, 4096')
        k(f's_add_u32 {s(sT3)}, {s(sT0)}, {s(sT2)}')
        for p, so in enumerate((sT0, sT1, sT3)):
            k(f'buffer_load_dwordx4 {v(P+12*sp+4*p,4)}, v{L16}, {s(S_WS,4)}, {s(so)} offen sc1')
        k(f's_add_u32 {s(sT0)}, {s(sT0)}, {2048*2560}')
    for sp in range(1, nsplit):
        k(f's_waitcnt vmcnt({3*(nsplit-1-sp)})')
        for i in range(0, 12, 2):
            k(f'v_pk_add_f32 {v(V+i,2)}, {v(V+i,2)}, {v(P+12*sp+i,2)}')
    for i in range(0, 12, 2):
        rbf2(k, V + i, V + i + 1)
        k(f'v_pk_mul_f32 {v(V+i,2)}, {v(V+i,2)}, {v(G+i,2)}')
        rbf2(k, V + i, V + i + 1)
        unpack(k, XR + i // 2, D0, D0 + 1)
        k(f'v_pk_add_f32 {v(V+i,2)}, {v(V+i,2)}, {v(D0,2)}')
        k(f'v_cvt_pk_bf16_f32 v{XR+i//2}, v{V+i}, v{V+i+1}')
        unpack(k, XR + i // 2, V + i, V + i + 1)
    k(f'v_pk_add_f32 {v(D0,2)}, {v(V,2)}, {v(V+2,2)}')
    for i in range(4, 12, 2):
        k(f'v_pk_add_f32 {v(D0,2)}, {v(D0,2)}, {v(V+i,2)}')
    k(f'v_add_f32 v{MU}, v{D0}, v{D0+1}')
    quad_sum(k, MU, T)
    k(f'ds_write_b32 v{LX}, v{MU} offset:{ldsx}')
    k(f's_add_u32 {s(sT1)}, {s(sE0)}, {X1}')
    guarded(lambda p: k(f'buffer_store_dwordx2 {v(XR+2*p,2)}, v{RO}, {s(S_WS,4)}, {s(sT1)} offen offset:{512*p} sc1'))
    def xwave(dst, off):
        k('s_waitcnt lgkmcnt(0)')
        k('s_barrier')
        Q = P + 12
        k(f'ds_read2_b32 {v(Q,2)}, v{LX+1} offset0:{(off)//4} offset1:{(off+16)//4}' if False else f'ds_read_b32 v{Q}, v{LX+1} offset:{off}')
        for i in range(1, 4):
            k(f'ds_read_b32 v{Q+i}, v{LX+1} offset:{off+16*i}')
        k('s_waitcnt lgkmcnt(0)')
        k(f'v_pk_add_f32 {v(Q,2)}, {v(Q,2)}, {v(Q+2,2)}')
        k(f'v_add_f32 v{dst}, v{Q}, v{Q+1}')
        k(f'v_mul_f32 v{dst}, 0x3acccccd, v{dst}')
    xwave(MU, ldsx)
    k(f'v_mov_b32 v{VAR}, 0')
    def acc_var(p):
        for i in range(4 * p, 4 * p + 4):
            k(f'v_sub_f32 v{D0 + (i&1)}, v{V+i}, v{MU}')
            k(f'v_fmac_f32 v{VAR}, v{D0 + (i&1)}, v{D0 + (i&1)}')
    guarded(acc_var)
    quad_sum(k, VAR, T)
    k(f'ds_write_b32 v{LX}, v{VAR} offset:{ldsx + 64}')
    xwave(VAR, ldsx + 64)
    rbf2(k, MU, VAR)
    k(f'v_add_f32 v{VAR}, 0x3727c5ac, v{VAR}')
    rbf(k, VAR)
    k(f'v_sqrt_f32 v{VAR}, v{VAR}')
    rbf(k, VAR)
    k(f'v_rcp_f32 v{D0}, v{VAR}')
    k(f'v_mov_b32 v18, v{MU}')
    OUT = P + 16
    for i in range(0, 12, 2):
        k(f'v_pk_add_f32 {v(V+i,2)}, {v(V+i,2)}, {v(18,2)} op_sel_hi:[1,0] neg_lo:[0,1] neg_hi:[0,1]')
        rbf2(k, V + i, V + i + 1)
        k(f'v_pk_mul_f32 {v(V+i,2)}, {v(V+i,2)}, {v(D0,2)} op_sel_hi:[1,0]')
        rbf2(k, V + i, V + i + 1)
        k(f'v_pk_mul_f32 {v(V+i,2)}, {v(V+i,2)}, {v(SC+i,2)}')
        rbf2(k, V + i, V + i + 1)
        k(f'v_pk_add_f32 {v(V+i,2)}, {v(V+i,2)}, {v(SH+i,2)}')
        k(f'v_cvt_pk_bf16_f32 v{OUT+i//2}, v{V+i}, v{V+i+1}')
    k(f's_lshr_b32 {s(sT0)}, {s(sq)}, 2')
    k(f's_mul_i32 {s(sT0)}, {s(sT0)}, 20480')
    k(f's_and_b32 {s(sT1)}, {s(sq)}, 3')
    k(f's_lshl_b32 {s(sT1)}, {s(sT1)}, 6')
    k(f's_add_u32 {s(sT0)}, {s(sT0)}, {s(sT1)}')
    k(f's_add_u32 {s(sT0)}, {s(sT0)}, {H2}')
    def st_h2(p):
        k(f'buffer_store_dwordx2 {v(OUT+2*p,2)}, v{TO}, {s(S_WS,4)}, {s(sT0)} offen sc1')
        k(f's_add_u32 {s(sT0)}, {s(sT0)}, 8192')
    guarded(st_h2)

sBUD = 53
def emit_wait(k, srd, soff, n, stride, target, t0, t1, lane=0, sleep=2, wg=False):
    top, done = k.newlabel('wt'), k.newlabel('wd')
    if wg:
        k(f's_cmp_lg_u32 {s(sW)}, 0')
        k(f's_cbranch_scc1 {done}')
    k(f'v_min_u32 v{t0}, {n-1}, v{lane}')
    k(f'v_mul_u32_u24 v{t0}, {stride}, v{t0}')
    k.label(top)
    k(f'buffer_load_dword v{t1}, v{t0}, {s(srd,4)}, {s(soff)} offen sc1')
    k('s_waitcnt vmcnt(0)')
    k(f'v_cmp_gt_u32 vcc, {target}, v{t1}')
    k(f's_cbranch_vccz {done}')
    k(f's_sleep {sleep}')
    k(f's_sub_u32 {s(sBUD)}, {s(sBUD)}, 1')
    k(f's_cbranch_scc0 {top}')
    k(f's_mov_b32 {s(sBUD)}, 0')
    k.label(done)
    if wg:
        k('s_barrier')

def emit_signal(k, srd, soff, atomic, t0, t1, vm=0, val='1'):
    skip = k.newlabel('sg')
    k(f's_waitcnt vmcnt({vm}) lgkmcnt(0)')
    k('s_barrier')
    k(f's_cmp_lg_u32 {s(sW)}, 0')
    k(f's_cbranch_scc1 {skip}')
    k(f'v_mov_b32 v{t0}, 0')
    k(f'v_mov_b32 v{t1}, {val}')
    k('s_mov_b64 exec, 1')
    if atomic:
        k(f'buffer_atomic_add v{t1}, v{t0}, {s(srd,4)}, {s(soff)} offen')
    else:
        k(f'buffer_store_dword v{t1}, v{t0}, {s(srd,4)}, {s(soff)} offen sc1')
    k('s_mov_b64 exec, -1')
    k.label(skip)

def emit_signal_last(k, srd, soff, total, goff, t0, t1):
    skip = k.newlabel('sg')
    k('s_waitcnt vmcnt(0) lgkmcnt(0)')
    k('s_barrier')
    k(f's_cmp_lg_u32 {s(sW)}, 0')
    k(f's_cbranch_scc1 {skip}')
    k(f'v_mov_b32 v{t0}, 0')
    k(f'v_mov_b32 v{t1}, 1')
    k('s_mov_b64 exec, 1')
    k(f'buffer_atomic_add v{t1}, v{t0}, {s(srd,4)}, {s(soff)} offen sc0')
    k('s_waitcnt vmcnt(0)')
    k(f'v_readfirstlane_b32 {s(sT0)}, v{t1}')
    k('s_mov_b64 exec, -1')
    k(f's_cmp_lg_u32 {s(sT0)}, {total - 1}')
    k(f's_cbranch_scc1 {skip}')
    k(f'v_mov_b32 v{t0}, {goff}')
    k(f'v_mov_b32 v{t1}, 1')
    k('s_mov_b64 exec, 1')
    k(f'buffer_store_dword v{t1}, v{t0}, {s(srd,4)}, 0 offen sc1')
    k('s_mov_b64 exec, -1')
    k.label(skip)
```

```python
import sys
from asmlib import *
from layout import *
import rec, tok
from tok import *
NAME = 'adaLN_cond__memory_aug_recurrent_mem_tr__dense_activation_silu__prompt'
def desc(name, vgpr, acc):
    return f'''.p2align 6
.amdhsa_kernel {name}
  .amdhsa_next_free_vgpr {vgpr}
  .amdhsa_next_free_sgpr 102
  .amdhsa_accum_offset {acc}
  .amdhsa_group_segment_fixed_size 0
  .amdhsa_kernarg_size 120
  .amdhsa_user_sgpr_count 2
  .amdhsa_user_sgpr_kernarg_segment_ptr 1
  .amdhsa_system_sgpr_workgroup_id_x 1
.end_amdhsa_kernel
'''
XN = 2048 * 640 * 2
S_DBG = rec.S_DBG
sX, sH = rec.sX, rec.sH
sI, sR, sP0, sP1, sP2, sF, sG, sTASK = 70, 71, 72, 73, 74, 75, 76, 77
sJ, sPK, sPO, sPF = 82, 83, 84, 85

def set_srd(k, pairs):
    for sr, ka, nb in pairs:
        load_srd(k, sr, ka)
    k('s_waitcnt lgkmcnt(0)')
    for sr, ka, nb in pairs:
        fin_srd(k, sr, nb)

def div6(k, q, r_, x):
    k(f's_mul_i32 {s(q)}, {s(x)}, 171')
    k(f's_lshr_b32 {s(q)}, {s(q)}, 10')
    k(f's_mul_i32 {s(r_)}, {s(q)}, 6')
    k(f's_sub_u32 {s(r_)}, {s(x)}, {s(r_)}')

DIAG = False
sWT = 78
def wstamp(k, tag):
    if not DIAG:
        return
    skip = k.newlabel('ws')
    k(f's_cmp_lg_u32 {s(sW)}, 0'); k(f's_cbranch_scc1 {skip}')
    k('s_memrealtime s[80:81]')
    k('s_waitcnt lgkmcnt(0)')
    k('v_accvgpr_write_b32 a250, s80'); k(f'v_accvgpr_write_b32 a251, {tag}')
    k('s_mov_b64 exec, 1')
    k(f'buffer_store_dwordx2 a[250:251], off, {s(S_WS,4)}, {s(sWT)}')
    k('s_mov_b64 exec, -1')
    k(f's_add_u32 {s(sWT)}, {s(sWT)}, 8')
    k.label(skip)

def emit_worker(k, end):
    k(f's_mov_b32 {s(sBUD)}, 0x80000')
    k(f's_sub_u32 {s(sI)}, {s(sX)}, 2')
    k(f's_lshl_b32 {s(sI)}, {s(sI)}, 5')
    k(f's_add_u32 {s(sI)}, {s(sI)}, {s(sH)}')
    k(f's_lshl_b32 {s(sWT)}, {s(sI)}, 10'); k(f's_add_u32 {s(sWT)}, {s(sWT)}, {TS + 0x200000}')
    if DIAG:
        k('v_accvgpr_write_b32 a250, s86'); k('v_accvgpr_write_b32 a251, 9')
        k(f'buffer_store_dwordx2 a[250:251], off, {s(S_WS,4)}, {s(sWT)}')
        k(f's_add_u32 {s(sWT)}, {s(sWT)}, 8')
    wstamp(k, 1)
    k(f's_mul_i32 {s(sR)}, {s(sH)}, 6')
    k(f's_add_u32 {s(sR)}, {s(sR)}, {s(sX)}')
    k(f's_sub_u32 {s(sR)}, {s(sR)}, 2')
    set_srd(k, [(S_B0, A_WMOD, 640 * 3840 * 2), (S_B1, A_C, 1280), (S_X, A_X, XN), (S_OUT, A_OUT, XN), (88, A_WK, 5242880), (92, A_WV, 5242880)])
    def warm(t0, t1):
        div6(k, sP2, sG, sI)
        k(f's_mul_i32 {s(sG)}, {s(sG)}, 103')
        k(f's_lshl_b32 {s(sT0)}, {s(sW)}, 5')
        k(f's_add_u32 {s(sG)}, {s(sG)}, {s(sT0)}')
        k(f's_lshl_b32 {s(sG)}, {s(sG)}, 13')
        k(f's_lshl_b32 {s(sT0)}, {s(sP2)}, 8')
        k(f's_add_u32 {s(sG)}, {s(sG)}, {s(sT0)}')
        bits(k, t0, 0, [(1, 5, 13), (0, 1, 7)], t1)
        k(f'buffer_load_dword v{t1}, v{t0}, s[88:91], {s(sG)} offen')
        k(f'buffer_load_dword v{t1}, v{t0}, s[92:95], {s(sG)} offen')
    def tid():
        k(f's_lshl_b32 {s(sT0)}, {s(sW)}, 6'); k(f'v_add_u32 v0, {s(sT0)}, v0')
    def wait1():
        k(f's_mov_b32 {s(sF)}, 96')
        emit_wait(k, S_DBG, sF, 1, 0, 1, 8, 9, sleep=4, wg=True)
    modsub_ret = 82
    doln, fill, nz, p1d = [k.newlabel(x) for x in ('doln', 'fill', 'nz', 'p1d')]
    k(f's_cmp_ge_u32 {s(sR)}, 64'); k(f's_cbranch_scc1 {doln}')
    tid()
    k(f's_cmp_ge_u32 {s(sR)}, 40'); k(f's_cbranch_scc1 {fill}')
    k(f's_cmp_ge_u32 {s(sR)}, 8'); k(f's_cbranch_scc1 {nz}')
    k('v_mov_b64 v[4:5], 0'); k('v_mov_b64 v[6:7], 0')
    k('v_lshlrev_b32 v1, 4, v0')
    k(f's_lshl_b32 {s(sT0)}, {s(sR)}, 12')
    k(f's_add_u32 {s(sT0)}, {s(sT0)}, {FL}')
    k(f'buffer_store_dwordx4 v[4:7], v1, {s(S_WS,4)}, {s(sT0)} offen sc1')
    k.label(nz)
    emit_mod(k, sR, ' sc1')
    k(f's_mov_b32 {s(sF)}, 240')
    emit_signal_last(k, S_DBG, sF, 40, 96, 4, 5)
    k.label(fill)
    wstamp(k, 2)
    k('v_mov_b64 v[4:5], -1'); k('v_mov_b64 v[6:7], -1')
    k('v_lshlrev_b32 v1, 4, v0')
    k(f's_lshl_b32 {s(sT0)}, {s(sR)}, 13')
    k(f's_add_u32 {s(sT0)}, {s(sT0)}, {FILL0}')
    for i in range(2):
        k(f'buffer_store_dwordx4 v[4:7], v1, {s(S_WS,4)}, {s(sT0)} offen sc1')
        k(f's_add_u32 {s(sT0)}, {s(sT0)}, 4096')
    k('v_and_b32 v0, 63, v0')
    wait1()
    k(f's_mov_b32 {s(sF)}, {FL_INIT}')
    emit_signal(k, S_WS, sF, True, 4, 5)
    k(f's_branch {p1d}')
    k.label(doln)
    k(f's_sub_u32 {s(sP1)}, {s(sR)}, 64')
    k(f's_lshl_b32 {s(sP0)}, {s(sP1)}, 2'); k(f's_add_u32 {s(sP0)}, {s(sP0)}, {s(sW)}'); k(f's_lshl_b32 {s(sP0)}, {s(sP0)}, 2')
    def wait1s():
        wstamp(k, 2); wait1(); wstamp(k, 5)
    emit_ln1(k, sP0, wait1s)
    k(f's_lshr_b32 {s(sF)}, {s(sP1)}, 3'); k(f's_lshl_b32 {s(sF)}, {s(sF)}, 7'); k(f's_add_u32 {s(sF)}, {s(sF)}, {FL_H}')
    emit_signal(k, S_WS, sF, True, 4, 5)
    k.label(p1d)
    k(f's_mov_b32 {s(sJ)}, {s(sR)}')
    wstamp(k, 3)
    k(f's_mov_b32 {s(sR)}, 0')
    rtop, doq, dokv, dok, dov, rnext, r4 = [k.newlabel(x) for x in ('rtop', 'doq', 'dokv', 'dok', 'dov', 'rnext', 'r4')]
    def late_signal(n):
        e3 = k.newlabel('e')
        k(f's_cmp_eq_u32 {s(sR)}, 0'); k(f's_cbranch_scc1 {e3}')
        emit_signal(k, S_WS, sPF, True, 14, 15, vm=n, val=s(sPK))
        wstamp(k, 4)
        k.label(e3)
    k.label(rtop)
    div6(k, sP1, sP0, sI)
    half = k.newlabel('half')
    k(f's_cmp_lt_u32 {s(sR)}, 2'); k(f's_cbranch_scc1 {half}')
    k(f's_cmp_eq_u32 {s(sR)}, 4'); k(f's_cbranch_scc1 {r4}')
    k(f's_add_u32 {s(sP0)}, {s(sP0)}, 6')
    k(f's_cmp_eq_u32 {s(sR)}, 3'); k(f's_cbranch_scc1 {dokv}')
    k(f's_bitcmp0_b32 {s(sP1)}, 0')
    k(f's_cselect_b32 {s(sT0)}, 6, 0')
    k(f's_sub_u32 {s(sP0)}, {s(sP0)}, {s(sT0)}')
    k(f's_lshr_b32 {s(sP1)}, {s(sP1)}, 1')
    k(f's_branch {doq}')
    k.label(r4)
    k(f's_add_u32 {s(sP0)}, {s(sP0)}, 12')
    k(f's_cmp_lt_u32 {s(sP0)}, 16'); k(f's_cbranch_scc1 {dokv}')
    k(f's_and_b32 {s(sT0)}, {s(sP1)}, 1')
    k(f's_lshl_b32 {s(sT0)}, {s(sT0)}, 1')
    k(f's_add_u32 {s(sP0)}, {s(sP0)}, {s(sT0)}')
    k(f's_sub_u32 {s(sP0)}, {s(sP0)}, 4')
    k(f's_lshr_b32 {s(sP1)}, {s(sP1)}, 1')
    def waitH():
        k(f's_lshl_b32 {s(sF)}, {s(sP0)}, 7')
        k(f's_cmp_eq_u32 {s(sR)}, 0')
        k(f's_cselect_b32 {s(sF)}, {s(sF)}, 0')
        k(f's_cselect_b32 {s(sT2)}, 0, 15')
        k(f's_add_u32 {s(sF)}, {s(sF)}, {FL_H}')
        k(f'v_min_u32 v13, {s(sT2)}, v0')
        emit_wait(k, S_WS, sF, 16, 128, 8, 14, 15, lane=13, sleep=3, wg=True)
        wstamp(k, 6)
    def pend(base, val):
        k(f's_lshl_b32 {s(sPF)}, {s(sP1)}, 7'); k(f's_lshl_b32 {s(sT0)}, {s(sP0)}, 2')
        k(f's_add_u32 {s(sPF)}, {s(sPF)}, {s(sT0)}'); k(f's_add_u32 {s(sPF)}, {s(sPF)}, {base}')
        k(f's_mov_b32 {s(sPK)}, {val}')
        k(f's_branch {rnext}')
    def task(label, kind, srds, pw, base, val):
        k.label(label)
        set_srd(k, srds)
        emit_qkv_main(k, kind, sP0, sP1, sPO, 'g' + kind, pw, late_signal)
        wstamp(k, 7)
        emit_qkv_epi(k, kind, sPO)
        pend(base, val)
    task(doq, 'q', [(S_B0, A_WQ, 5242880)], None, FL_Q, 2)
    task(dokv, 'kv', [(S_B0, A_WK, 5242880), (S_B1, A_WV, 5242880)], None, FL_KV, 2)
    k.label(half)
    k(f's_and_b32 {s(sT0)}, {s(sP0)}, 1')
    k(f's_lshr_b32 {s(sP0)}, {s(sP0)}, 1')
    k(f's_mul_i32 {s(sT1)}, {s(sR)}, 3')
    k(f's_add_u32 {s(sP0)}, {s(sP0)}, {s(sT1)}')
    k(f's_cmp_eq_u32 {s(sT0)}, 1'); k(f's_cbranch_scc1 {dov}')
    task(dok, 'k', [(S_B0, A_WK, 5242880)], waitH, FL_KV, 1)
    task(dov, 'v', [(S_B0, A_WV, 5242880)], waitH, FL_KV, 1)
    k.label(rnext)
    k(f's_add_u32 {s(sR)}, {s(sR)}, 1')
    k(f's_cmp_lt_u32 {s(sR)}, 5'); k(f's_cbranch_scc1 {rtop}')
    late_signal(0)
    nom = k.newlabel('nom')
    k(f's_cmp_ge_u32 {s(sJ)}, 80'); k(f's_cbranch_scc1 {nom}')
    set_srd(k, [(S_B0, A_WMOD, 640 * 3840 * 2), (S_B1, A_C, 1280)])
    k(f's_add_u32 {s(sJ)}, {s(sJ)}, 40')
    tid()
    emit_mod(k, sJ, ' sc1')
    k('v_and_b32 v0, 63, v0')
    k(f's_mov_b32 {s(sF)}, {FL_INIT + 128}')
    emit_signal(k, S_WS, sF, True, 4, 5)
    k.label(nom)
    att, rff1, rff2, rln = k.newlabel('att'), k.newlabel('rff1'), k.newlabel('rff2'), k.newlabel('rln')
    k(f's_and_b32 {s(sG)}, {s(sX)}, 1')
    def gflag(base):
        k(f's_lshl_b32 {s(sF)}, {s(sG)}, 7'); k(f's_add_u32 {s(sF)}, {s(sF)}, {base}')
    def gnext(top, inc=2):
        k(f's_add_u32 {s(sG)}, {s(sG)}, {inc}')
        k(f's_cmp_lt_u32 {s(sG)}, 32'); k(f's_cbranch_scc1 {top}')
        k(f's_branch {end}')
    def b_ready(wait_mod):
        if wait_mod:
            k(f's_mov_b32 {s(sF)}, {FL_INIT + 128}')
            emit_wait(k, S_WS, sF, 1, 0, 80, 14, 15, sleep=8, wg=True)
        k('s_waitcnt vmcnt(0)'); k('s_barrier')
    k(f's_cmp_ge_u32 {s(sX)}, 6'); k(f's_cbranch_scc1 {rff2}')
    k(f's_cmp_ge_u32 {s(sX)}, 4'); k(f's_cbranch_scc1 {rff1}')
    set_srd(k, [(S_B0, A_WO, 5242880)])
    k(f's_lshr_b32 {s(sP1)}, {s(sH)}, 2'); k(f's_and_b32 {s(sP0)}, {s(sH)}, 3')
    k(f's_mul_i32 {s(sB)}, {s(sP1)}, {16*32*1280}'); k(f's_mul_i32 {s(sT1)}, {s(sP0)}, 320'); k(f's_add_u32 {s(sB)}, {s(sB)}, {s(sT1)}')
    emit_burst_b(k, 10, 16, 1280, True, S_B0, sB, 0)
    b_ready(False)
    top = k.newlabel('wotop'); k.label(top)
    def waitA():
        k(f's_lshl_b32 {s(sF)}, {s(sG)}, 6'); k(f's_lshl_b32 {s(sT0)}, {s(sP1)}, 2')
        k(f's_add_u32 {s(sF)}, {s(sF)}, {s(sT0)}'); k(f's_add_u32 {s(sF)}, {s(sF)}, {FL_ATT}')
        k(f's_lshr_b32 {s(sT0)}, {s(sW)}, 1'); k(f's_lshl_b32 {s(sT0)}, {s(sT0)}, 5'); k(f's_add_u32 {s(sF)}, {s(sF)}, {s(sT0)}')
        emit_wait(k, S_WS, sF, 1, 0, 1, 14, 15, sleep=4)
        wstamp(k, 10)
    emit_wo_task(k, sG, sP0, sP1, 10, 8, waitA)
    gflag(FL_WO); emit_signal(k, S_WS, sF, True, 4, 5)
    wstamp(k, 11)
    gnext(top)
    k.label(rff1)
    g5 = k.newlabel('g5')
    k(f's_cmp_eq_u32 {s(sX)}, 5'); k(f's_cbranch_scc1 {g5}')
    k(f's_cmp_ge_u32 {s(sH)}, 27'); k(f's_cbranch_scc1 {end}')
    set_srd(k, [(S_B0, A_W1, 640 * 1728 * 2)])
    k(f's_lshl_b32 {s(sB)}, {s(sH)}, 7')
    emit_burst_b(k, 4, 20, 3456, False, S_B0, sB, 0)
    b_ready(False)
    top = k.newlabel('f1top'); k.label(top)
    def waitL():
        gflag(FL_LN); emit_wait(k, S_WS, sF, 1, 0, 16, 14, 15, sleep=4, wg=True); wstamp(k, 14)
    emit_ff1_task(k, sG, sH, 4, waitL, lds0=0)
    gflag(FL_FF); emit_signal(k, S_WS, sF, True, 4, 5)
    wstamp(k, 15)
    gnext(top, 1)
    k.label(g5)
    k(f's_sub_u32 {s(sTASK)}, {s(sH)}, 16')
    k(f's_cmp_ge_u32 {s(sH)}, 16'); k(f's_cbranch_scc1 {att}')
    k(f's_mov_b32 {s(sTASK)}, {s(sH)}')
    k.label(rln)
    b_ready(True)
    k(f's_and_b32 {s(sG)}, {s(sTASK)}, 1')
    k(f's_lshr_b32 {s(sTASK)}, {s(sTASK)}, 1')
    k(f's_lshl_b32 {s(sP0)}, {s(sG)}, 4'); k(f's_add_u32 {s(sP0)}, {s(sP0)}, {s(sTASK)}')
    top = k.newlabel('lntop')
    def waitW():
        gflag(FL_WO); emit_wait(k, S_WS, sF, 1, 0, 32, 8, 9, sleep=4, wg=True); wstamp(k, 12)
    emit_ln2_quad(k, sP0, 8, waitW, 0, top)
    gflag(FL_LN); emit_signal(k, S_WS, sF, True, 8, 9)
    wstamp(k, 13)
    k(f's_add_u32 {s(sP0)}, {s(sP0)}, 32')
    gnext(top)
    k.label(rff2)
    k(f's_lshl_b32 {s(sT0)}, {s(sG)}, 2'); k(f's_add_u32 {s(sTASK)}, {s(sT0)}, {s(sH)}'); k(f's_sub_u32 {s(sTASK)}, {s(sTASK)}, 12')
    k(f's_cmp_ge_u32 {s(sH)}, 28'); k(f's_cbranch_scc1 {att}')
    k(f's_lshl_b32 {s(sT0)}, {s(sG)}, 3'); k(f's_add_u32 {s(sTASK)}, {s(sT0)}, {s(sH)}'); k(f's_sub_u32 {s(sTASK)}, {s(sTASK)}, 4')
    k(f's_cmp_ge_u32 {s(sH)}, 20'); k(f's_cbranch_scc1 {rln}')
    set_srd(k, [(S_B0, A_W2, 640 * 1728 * 2)])
    k(f's_lshl_b32 {s(sB)}, {s(sH)}, 6')
    emit_burst_b(k, 2, 54, 1280, True, S_B0, sB, 0)
    b_ready(True)
    top = k.newlabel('f2top'); k.label(top)
    def waitF():
        gflag(FL_FF); emit_wait(k, S_WS, sF, 1, 0, 27, 14, 15, sleep=4, wg=True); wstamp(k, 16)
    emit_ff2_task(k, sG, sH, 2, waitF)
    wstamp(k, 17)
    gnext(top)
    k.label(att)
    emit_att_setup(k)
    k(f's_lshr_b32 {s(sG)}, {s(sTASK)}, 3')
    k(f's_and_b32 {s(sTASK)}, {s(sTASK)}, 7')
    k(f's_lshl_b32 {s(sP1)}, {s(sTASK)}, 2'); k(f's_add_u32 {s(sP1)}, {s(sP1)}, {s(sW)}')
    k(f's_lshl_b32 {s(sF)}, {s(sP1)}, 7'); k(f's_add_u32 {s(sF)}, {s(sF)}, {FL_KV}')
    emit_wait(k, S_WS, sF, 16, 4, 2, 4, 5)
    k(f's_lshr_b32 {s(sF)}, {s(sP1)}, 1'); k(f's_lshl_b32 {s(sF)}, {s(sF)}, 7'); k(f's_add_u32 {s(sF)}, {s(sF)}, {FL_Q}')
    emit_wait(k, S_WS, sF, 16, 4, 2, 4, 5)
    atop = k.newlabel('atop')
    k.label(atop)
    def wait_kvm(X):
        top, done = k.newlabel('km'), k.newlabel('kmd')
        k.label(top)
        for i in range(4):
            k(f'buffer_load_dwordx4 {v(X+4*i,4)}, v1, {s(S_WS,4)}, {s(sT3)} offen offset:{i*1024} sc1')
        k('s_waitcnt vmcnt(0)')
        for op in rec.max_ops(range(X, X + 16), 4):
            k(op)
        k('v_cmp_eq_u32 vcc, -1, v4')
        k(f's_cbranch_vccz {done}')
        k('s_sleep 4')
        k(f's_sub_u32 {s(sBUD)}, {s(sBUD)}, 1')
        k(f's_cbranch_scc0 {top}')
        k(f's_mov_b32 {s(sBUD)}, 0')
        k.label(done)
        wstamp(k, 20)
    emit_att_task(k, sG, sP1, wait_kvm)
    k(f's_lshl_b32 {s(sF)}, {s(sG)}, 5'); k(f's_lshl_b32 {s(sT0)}, {s(sTASK)}, 2')
    k(f's_add_u32 {s(sF)}, {s(sF)}, {s(sT0)}'); k(f's_add_u32 {s(sF)}, {s(sF)}, {FL_ATT}')
    emit_signal(k, S_WS, sF, False, 4, 5)
    wstamp(k, 21)
    k(f's_add_u32 {s(sG)}, {s(sG)}, 3')
    k(f's_cmp_lt_u32 {s(sG)}, 64'); k(f's_cbranch_scc1 {atop}')

def build(as_list=True, diag=False):
    global DIAG
    DIAG = diag
    k = Asm()
    n = 'main_kernel' if as_list else NAME + '_kernel'
    k.raw(f'.globl {n}\n.p2align 8\n.type {n},@function'); k.label(n)
    if diag:
        k('s_memrealtime s[86:87]')
    if not rec.CFG.get('x_nocw'):
        k('s_getpc_b64 s[96:97]')
        k.label('main_pc')
        k('s_lshr_b32 s98, s2, 3'); k('s_and_b32 s98, s98, 31'); k('s_lshl_b32 s98, s98, 12')
        k('v_lshlrev_b32 v4, 7, v0'); k('v_add_u32 v4, s98, v4')
        k('v_mov_b32 v5, main_end - main_pc')
        k('v_min_u32 v4, v4, v5')
        k('v_cmp_gt_u32 vcc, 32, v0')
        k('s_and_saveexec_b64 s[98:99], vcc')
        k('s_cbranch_execz main_nocw')
        k('global_load_dword v6, v4, s[96:97]')
        k.label('main_nocw')
        k('s_mov_b64 exec, -1')
    rec.emit_role(k, 'main_end0')
    k(f's_cmp_ge_u32 {s(sX)}, 8'); k('s_cbranch_scc1 main_end0')
    k(f's_cmp_ge_u32 {s(sX)}, 2'); k('s_cbranch_scc1 main_worker')
    rec.emit_team(k, diag, 'main_end0')
    k.label('main_end0'); k('s_endpgm')
    k.label('main_worker')
    emit_worker(k, 'main_end')
    k.label('main_end'); k('s_endpgm')
    if as_list:
        head = f'; @launch kernel={n} grid=(256,1,1) block=(256,1,1) lds=163840\n'
    else:
        head = '; @launch grid=(256,1,1) block=(256,1,1) lds=163840\n'
    head += '.amdgcn_target "amdgcn-amd-amdhsa--gfx950"\n.text\n'
    return head + k.text() + '.section .rodata,"a"\n' + desc(n, 512, 256)
if __name__ == '__main__':
    rec.CFG.update(fused=True)
    for a_ in sys.argv[1:]:
        if '=' in a_:
            kk, vv = a_.split('=', 1); rec.CFG[kk] = eval(vv)
    open('v2.s', 'w').write(build(True, 'diag' in sys.argv))
    hdr = open('cdna_kernels/' + NAME + '.s.ref').read().split('\n')[:16]
    open('v2_final.s', 'w').write('\n'.join(hdr) + '\n' + build(False, False))
```

```python
from asmlib import *
from layout import *
import tok

S_WS = 8
S_WQ, S_WK, S_WV, S_WO = 12, 16, 20, 24
S_M0 = 28
S_DBG = 32
sW, sH, sX, sFOR = 36, 37, 38, 39
sSTEP = 40
sPAW, sPAR = 41, 42
sMLR, sMRR = 43, 44
sMLW, sMRW, sMLZ, sMRZ = 45, 46, 47, 48
sKV, sOW, sPUBK, sGW = 49, 50, 51, 52
sRETRY, sPZ0, sPZ1, sPOL, sKNOWN, sKVF = 101, 4, 5, 6, 7, 3
sBUD = 53
sT0, sT1, sT2, sT3 = 54, 55, 56, 57
sC = 58
sMASK_LO8 = 60
sMASK_OW = 62
sMASK_LT32 = 64
sMASK_GE32 = 66
sCI = 68
sTS = 69
sTM = 70
sB0, sB1_, sB2_ = 90, 91, 92
sROWO, sROWR = 94, 95
sKVM0, sTCH = 93, 100
sHW, sHR, sMASK_H = 88, 89, 94
cMLR, cMRR, cMLW, cMRW = 96, 97, 98, 99

vL16, vL16X, vIDX, vPERM, vPAE, vPAS, vXW, vTR, vPUB, vLW0, vLW1, vLW2 = range(12)
ONES = 12
sLIM = 92
L_SEL, L_JUNK, L_TCH = 0, 13312, 1024
ACCQ, ACCK, ACCV, AW = 16, 20, 24, 28
SL = [44 + 8 * i for i in range(4)]
MISC = 76
VW0 = 80

L_M, L_QX, L_KX, L_R, L_OX, L_KT, L_VT = 2048, 2048, 4096, 8192, 9216, 16384, 24576

def opreg(i):
    return a(8 * i, 8) if i < 32 else v(VW0 + 8 * (i - 32), 8)
def opreg_pair(i, q):
    return a(8 * i + 2 * q, 2) if i < 32 else v(VW0 + 8 * (i - 32) + 2 * q, 2)

LDS_STAGES = [('v', c, 0) for c in range(5)] + [('o', 0, 0), ('o', 1, 0), ('o', 1, 2)]
G_STAGE = ('k', 9, 0)
ALL_STAGES = [(m, c, 0) for m in 'qkv' for c in range(10)] + [('o', u, p) for u in range(2) for p in range(3)]
REG_STAGES = [st for st in ALL_STAGES if st not in LDS_STAGES and st != G_STAGE]
ORDER = [G_STAGE] + REG_STAGES + LDS_STAGES
assert len(ORDER) == 36
PLACE = {}
_n = 0
for st in REG_STAGES:
    for t in range(2):
        PLACE[st + (t,)] = ('r', _n); _n += 1
assert _n == 54
for i, st in enumerate(LDS_STAGES):
    for t in range(2):
        PLACE[st + (t,)] = ('l', 32768 + 16384 * i + 8192 * t)
for t in range(2):
    PLACE[G_STAGE + (t,)] = ('g', 2048 * t)

CFG = dict(delay_a=56, delay_as=56, extra_a=1, gap_a=28, delay_b=40, extra_b=1, gap_b=32, rem_chk=20, delay_r=0, align=1, hint=0, hint_pos=(3, 6, 9), delay_h=4, hint_n=14, hint_early=1, v_before=4, delay_k=24, lim=0x67800000, fill=True, pol=0, fused=False, stamps=['top','preB1','locdone','preB2','B4','presm','preB5','wodone','pub'])

def lds_w_addr(off):
    return (vLW0, vLW1, vLW2)[off >> 16], off & 0xffff

def srd_fin(k, sreg, nbytes):
    k(f's_and_b32 {s(sreg+1)}, {s(sreg+1)}, 0xffff')
    k(f's_mov_b32 {s(sreg+2)}, {nbytes}')
    k(f's_mov_b32 {s(sreg+3)}, 0x20000')

def emit_role(k, exit_label):
    k('s_cmp_ge_u32 s2, 256')
    k(f's_cbranch_scc1 {exit_label}')
    for sr, ka in ((S_WS, A_WS), (S_WQ, A_WQ), (S_WK, A_WK), (S_WV, A_WV), (S_WO, A_WO), (S_M0, A_MEM0), (S_DBG, A_DBG)):
        k(f's_load_dwordx2 {s(sr,2)}, s[0:1], {ka}')
    k(f'v_lshrrev_b32 v1, 6, v0')
    k(f'v_and_b32 v0, 63, v0')
    k(f'v_readfirstlane_b32 {s(sW)}, v1')
    k(f's_getreg_b32 {s(sT0)}, hwreg(HW_REG_XCC_ID, 0, 4)')
    k(f's_and_b32 {s(sT0)}, {s(sT0)}, 7')
    k('s_waitcnt lgkmcnt(0)')
    for sr, nb in ((S_WS, WS_SIZE), (S_WQ, 5242880), (S_WK, 5242880), (S_WV, 5242880), (S_WO, 5242880), (S_M0, 10240), (S_DBG, 256)):
        srd_fin(k, sr, nb)
    lw, lt, lg, lc = k.newlabel('role_wait'), k.newlabel('role_try'), k.newlabel('role_got'), k.newlabel('role_cal')
    k(f's_cmp_eq_u32 {s(sW)}, 1')
    k(f's_cbranch_scc1 {lc}')
    k(f's_cmp_lg_u32 {s(sW)}, 0')
    k(f's_cbranch_scc1 {lw}')
    k(f's_mov_b32 {s(sX)}, {s(sT0)}')
    k(f's_mov_b32 {s(sT1)}, 1')
    k('s_mov_b64 exec, 1')
    k.label(lt)
    k('v_mov_b32 v2, 1')
    k(f's_lshl_b32 {s(sT2)}, {s(sX)}, 4')
    k(f's_cmp_lt_u32 {s(sX)}, 2')
    k(f's_cselect_b32 {s(sT3)}, 0, 96')
    k(f's_add_u32 {s(sT2)}, {s(sT2)}, {s(sT3)}')
    k(f'v_mov_b32 v3, {s(sT2)}')
    k(f'buffer_atomic_add v2, v3, {s(S_DBG,4)}, 0 offen sc0')
    k('s_waitcnt vmcnt(0)')
    k(f'v_readfirstlane_b32 {s(sH)}, v2')
    k(f's_cmp_lt_u32 {s(sH)}, 32')
    k(f's_cbranch_scc1 {lg}')
    k(f's_add_u32 {s(sT1)}, {s(sT1)}, 1')
    k(f's_and_b32 {s(sX)}, {s(sT1)}, 7')
    k(f's_cmp_lt_u32 {s(sT1)}, 10')
    k(f's_cbranch_scc1 {lt}')
    k(f's_mov_b32 {s(sX)}, 8')
    k.label(lg)
    k(f's_lshl_b32 {s(sT2)}, {s(sX)}, 8')
    k(f's_or_b32 {s(sT2)}, {s(sT2)}, {s(sH)}')
    k(f'v_mov_b32 v2, {s(sT2)}')
    k('v_mov_b32 v3, 0')
    k('ds_write_b32 v3, v2')
    k('s_mov_b64 exec, -1')
    k('s_waitcnt lgkmcnt(0)')
    k(f's_branch {lw}')
    k.label(lc)
    k(f's_cmp_lg_u32 {s(sT0)}, 0')
    k(f's_cbranch_scc1 {lw}')
    k(f's_lshr_b32 {s(sT1)}, s2, 3')
    k(f's_and_b32 {s(sT1)}, {s(sT1)}, 31')
    k(f's_lshl_b32 {s(sT1)}, {s(sT1)}, 7')
    k(f's_add_u32 {s(sT1)}, {s(sT1)}, {CAL}')
    k(f's_add_u32 {s(sT2)}, {s(sT1)}, 8192')
    k('v_mov_b32 v3, 0')
    k('s_mov_b64 exec, 1')
    k(f'buffer_store_dword v3, v3, {s(S_WS,4)}, {s(sT1)} offen sc1')
    k(f'buffer_store_dword v3, v3, {s(S_WS,4)}, {s(sT2)} offen sc1')
    k('s_waitcnt vmcnt(0)')
    k('s_memtime s[70:71]')
    k(f'buffer_store_dword v3, v3, {s(S_WS,4)}, {s(sT1)} offen sc1')
    k('s_waitcnt vmcnt(0)')
    k('s_memtime s[72:73]')
    k(f'buffer_store_dword v3, v3, {s(S_WS,4)}, {s(sT2)} offen sc1')
    k('s_waitcnt vmcnt(0)')
    k('s_memtime s[74:75]')
    k('s_waitcnt lgkmcnt(0)')
    k('s_sub_u32 s70, s72, s70')
    k('s_sub_u32 s72, s74, s72')
    k('s_cmp_lt_u32 s72, s70')
    k(f's_cselect_b32 {s(sT1)}, 1, 0')
    k(f'v_mov_b32 v2, {s(sT1)}')
    k('ds_write_b32 v3, v2 offset:4')
    k('s_mov_b64 exec, -1')
    k('s_waitcnt lgkmcnt(0)')
    k.label(lw)
    k('s_barrier')
    k('v_mov_b32 v3, 0')
    k('ds_read_b64 v[4:5], v3')
    k('s_waitcnt lgkmcnt(0)')
    k(f'v_readfirstlane_b32 {s(sT2)}, v4')
    k(f'v_readfirstlane_b32 {s(sPOL)}, v5')
    k(f's_and_b32 {s(sPOL)}, {s(sPOL)}, 1')
    k(f's_lshr_b32 {s(sX)}, {s(sT2)}, 8')
    k(f's_and_b32 {s(sH)}, {s(sT2)}, 31')
    k(f's_cmp_lg_u32 {s(sX)}, {s(sT0)}')
    k(f's_cselect_b32 {s(sFOR)}, 1, 0')
    k('s_barrier')

def bits(k, dst, L, spec, tmp, first=True):
    for i, (pos, width, sh) in enumerate(spec):
        k(f'v_bfe_u32 v{tmp}, v{L}, {pos}, {width}')
        if i == 0 and first:
            k(f'v_lshlrev_b32 v{dst}, {sh}, v{tmp}')
        else:
            k(f'v_lshl_add_u32 v{dst}, v{tmp}, {sh}, v{dst}')

def emit_setup(k):
    L, T = 20, 23
    k(f'v_mov_b32 v{L}, v0')
    k(f'v_lshlrev_b32 v{vL16}, 4, v{L}')
    k(f'v_xor_b32 v{vL16X}, 128, v{vL16}')
    k(f's_mov_b32 {s(sMASK_LO8)}, 0x00ff00ff')
    k(f's_mov_b32 {s(sMASK_LO8+1)}, 0x00ff00ff')
    k(f's_mov_b64 {s(sMASK_LT32,2)}, 0xffffffff')
    k(f's_not_b64 {s(sMASK_GE32,2)}, {s(sMASK_LT32,2)}')
    k(f's_not_b64 {s(sMASK_OW,2)}, {s(sMASK_LO8,2)}')
    k(f's_bitcmp1_b32 {s(sW)}, 0')
    k(f's_cselect_b64 {s(sMASK_OW,2)}, {s(sMASK_OW,2)}, {s(sMASK_LO8,2)}')
    k(f'v_mov_b32 v21, 0xeeee')
    k(f'v_mov_b32 v22, 0x4444')
    k(f'v_cndmask_b32 v{vIDX}, v21, v22, {s(sMASK_LO8,2)}')
    bits(k, vPERM, L, [(3, 1, 9), (4, 1, 8), (2, 1, 7), (5, 1, 6), (0, 2, 4)], T)
    bits(k, vPAE, L, [(3, 1, 14), (4, 2, 12), (0, 3, 4)], T)
    k(f's_lshl_b32 {s(sT0)}, {s(sW)}, 15')
    k(f'v_add_u32 v{vPAE}, {s(sT0)}, v{vPAE}')
    bits(k, vPAS, L, [(4, 2, 12), (0, 4, 3)], T)
    k(f's_lshl_b32 {s(sT0)}, {s(sW)}, 14')
    k(f's_add_u32 {s(sT0)}, {s(sT0)}, {32 * 4096}')
    k(f'v_add_u32 v{vPAS}, {s(sT0)}, v{vPAS}')
    bits(k, vXW, L, [(0, 4, 4), (4, 1, 3), (5, 1, 8)], T)
    k(f's_lshl_b32 {s(sT0)}, {s(sW)}, 9')
    k(f'v_add_u32 v{vXW}, {s(sT0)}, v{vXW}')
    bits(k, vTR, L, [(2, 4, 4), (0, 1, 3)], T)
    bits(k, vPUB, L, [(0, 4, 4), (4, 2, 2)], T)
    k(f's_lshl_b32 {s(sT0)}, {s(sW)}, 11')
    k(f'v_add_u32 v{vLW0}, {s(sT0)}, v{vL16}')
    k(f'v_add_u32 v{vLW1}, 0x10000, v{vLW0}')
    k(f'v_add_u32 v{vLW2}, 0x20000, v{vLW0}')
    k(f's_mov_b32 {s(sC)}, 0x3e0293ee')
    k(f's_mov_b32 {s(sC+1)}, 0x3e0293ee')
    k(f's_mov_b32 {s(sBUD)}, 0x40000')
    k(f's_lshr_b32 {s(sOW)}, {s(sW)}, 1')
    k(f's_lshl_b32 {s(sOW)}, {s(sOW)}, 11')
    l1, l2 = k.newlabel('ci'), k.newlabel('ci')
    k(f's_mov_b32 {s(sCI)}, {s(sH)}')
    k(f's_cmp_eq_u32 {s(sW)}, 0')
    k(f's_cbranch_scc1 {l1}')
    k(f's_add_u32 {s(sCI)}, {s(sH)}, 32')
    k(f's_cmp_lg_u32 {s(sW)}, 2')
    k(f's_cbranch_scc1 {l2}')
    k(f's_cmp_lt_u32 {s(sH)}, 16')
    k(f's_cbranch_scc1 {l1}')
    k.label(l2)
    k(f's_mov_b32 {s(sCI)}, -1')
    k.label(l1)
    k(f's_lshl_b32 {s(sT0)}, {s(sX)}, 5')
    k(f's_add_u32 {s(sT0)}, {s(sT0)}, {s(sH)}')
    k(f's_lshl_b32 {s(sT0)}, {s(sT0)}, 2')
    k(f's_add_u32 {s(sT0)}, {s(sT0)}, {s(sW)}')
    k(f's_lshl_b32 {s(sTS)}, {s(sT0)}, 13')
    k(f's_add_u32 {s(sTS)}, {s(sTS)}, {TS}')
    k(f's_lshl_b32 {s(sT0)}, {s(sT0)}, 12')
    k(f's_add_u32 {s(sGW)}, {s(sT0)}, {GW}')
    k(f's_lshl_b32 {s(sT0)}, {s(sH)}, 8')
    k(f's_lshl_b32 {s(sROWO)}, {s(sX)}, 21')
    k(f's_xor_b32 {s(sROWR)}, {s(sROWO)}, 0x200000')
    k(f's_add_u32 {s(sROWO)}, {s(sROWO)}, {s(sT0)}')
    k(f's_add_u32 {s(sROWR)}, {s(sROWR)}, {s(sT0)}')
    k(f's_lshl_b32 {s(sT0)}, {s(sX)}, 13')
    k(f's_add_u32 {s(sT0)}, {s(sT0)}, {MB}')
    k(f's_lshl_b32 {s(sT1)}, {s(sW)}, 11')
    k(f's_add_u32 {s(cMLR)}, {s(sT0)}, {s(sT1)}')
    k(f's_sub_u32 {s(cMLR)}, {s(cMLR)}, 2048')
    k(f's_lshl_b32 {s(sT1)}, {s(sCI)}, 7')
    k(f's_add_u32 {s(cMLW)}, {s(sT0)}, {s(sT1)}')
    k(f's_lshl_b32 {s(sT0)}, {s(sX)}, 12')
    k(f's_add_u32 {s(sT0)}, {s(sT0)}, {MB + 16384 + 8192 * CFG["pol"]}')
    k(f's_add_u32 {s(cMRW)}, {s(sT0)}, {s(sT1)}')
    k(f's_xor_b32 {s(sT0)}, {s(sT0)}, 4096')
    k(f's_lshl_b32 {s(sT1)}, {s(sW)}, 10')
    k(f's_add_u32 {s(cMRR)}, {s(sT0)}, {s(sT1)}')

def emit_loader(k, early=None):
    L, T = 20, 23
    vQ, vOE, vOS = 24, 25, 26
    rE, rS, rO = 27, 28, 29
    tA, tB = 30, 31
    k(f's_lshl_b32 {s(sT0)}, {s(sW)}, 4')
    k(f'v_lshrrev_b32 v21, 4, v{L}')
    k(f'v_add_u32 v21, {s(sT0)}, v21')
    k(f'v_lshlrev_b32 v{vQ}, 13, v21')
    bits(k, vQ, L, [(0, 4, 4)], T, first=False)
    k(f'v_mul_u32_u24 v{vOS}, 1280, v21')
    k(f'v_mov_b32 v{vOE}, v{vOS}')
    bits(k, vOE, L, [(2, 2, 7), (0, 2, 4)], T, first=False)
    bits(k, vOS, L, [(0, 4, 4)], T, first=False)
    def rowexpr(dst, sh_r0, sh_r1, sh_g0, sh_g1):
        bits(k, dst, L, [(0, 2, 3), (3, 1, 5), (2, 1, 8 + sh_r0), (3, 1, 8 + sh_r1), (4, 1, 8 + sh_g0), (5, 1, 8 + sh_g1)], T)
        k(f's_lshl_b32 {s(sT0)}, {s(sW)}, 6')
        k(f'v_add_u32 v{dst}, {s(sT0)}, v{dst}')
    rowexpr(rE, 0, 3, 1, 4)
    rowexpr(rS, 1, 5, 2, 4)
    rowexpr(rO, 0, 5, 4, 2)
    sbit = {'E': 256 << 3, 'S': 256 << 5, 'O': 256 << 5}
    qrow = {'E': lambda q: 32 * (q >> 1) + 4 * (q & 1), 'S': lambda q: (q >> 1) + 8 * (q & 1), 'O': lambda q: 8 * (q >> 1) + 2 * (q & 1)}
    sWOE, sWOS, sQS, sM0W = sPAW, sPAR, sMLR, sMRR
    k(f's_mul_i32 {s(sWOS)}, {s(sH)}, 163840')
    k(f's_lshl_b32 {s(sT0)}, {s(sX)}, 9')
    k(f's_add_u32 {s(sWOE)}, {s(sWOS)}, {s(sT0)}')
    k(f's_add_u32 {s(sWOS)}, {s(sWOS)}, 1024')
    k(f's_lshl_b32 {s(sQS)}, {s(sH)}, 8')
    k(f's_add_u32 {s(sQS)}, {s(sQS)}, {512 * 8192}')
    k(f's_lshl_b32 {s(sM0W)}, {s(sW)}, 12')
    vm = []
    def issue(i):
        mat, c, p = ORDER[i]
        slot = ((i + 4) % 10) * 16384
        for j in range(4):
            if mat == 'o':
                sr = S_WO
                if p < 2:
                    base, vo, off = sWOE, vOE, c * 64 * 1280 + 64 * p + j * 4 * 1280
                else:
                    base, vo, off = sWOS, vOS, c * 64 * 1280 + j * 4 * 1280
            else:
                sr = {'q': S_WQ, 'k': S_WK, 'v': S_WV}[mat]
                vo = vQ
                if c < 4:
                    base, off = sROWO, c * 64 * 8192
                elif c < 6:
                    base, off = sQS, (c - 4) * 64 * 8192
                else:
                    base, off = sROWR, (c - 6) * 64 * 8192
                off += j * 4 * 8192
            k(f's_add_u32 {s(sT0)}, {s(base)}, {off}')
            k(f's_add_u32 m0, {s(sM0W)}, {slot + j * 1024}')
            k(f'buffer_load_dwordx4 v{vo}, {s(sr,4)}, {s(sT0)} offen{CFG.get("ldmod", "")} lds')
            vm.append(i)
    DEPTH = CFG.get('depth', 8)
    for i in range(DEPTH):
        issue(i)
    TMP = [44, 60]
    pending = None
    def writeback(pend):
        regs, offs = pend
        for r, off in zip(regs, offs):
            b, imm = lds_w_addr(off)
            k(f'ds_write_b128 v{b}, {v(r,4)} offset:{imm}')
            k(f'ds_write_b128 v{b}, {v(r+4,4)} offset:{imm + 1024}')
    for i in range(36):
        mat, c, p = ORDER[i]
        slot = ((i + 4) % 10) * 16384
        last = max(ix for ix, t in enumerate(vm) if t == i)
        k(f's_waitcnt vmcnt({len(vm) - 1 - last}) lgkmcnt(0)')
        k('s_barrier')
        if pending:
            writeback(pending); pending = None
        kind = 'O' if mat == 'o' else ('S' if c in (4, 5) else 'E')
        rb = {'E': rE, 'S': rS, 'O': rO}[kind]
        k(f'v_add_u32 v{tA}, {slot}, v{rb}')
        k(f'v_xor_b32 v{tB}, {sbit[kind]}, v{tA}')
        tmp = TMP[i & 1]
        wb_regs, wb_offs, g_regs = [], [], []
        for t in range(2):
            pl = PLACE[(mat, c, p, t)]
            for q in range(4):
                dst = opreg_pair(pl[1], q) if pl[0] == 'r' else v(tmp + 8 * t + 2 * q, 2)
                k(f'ds_read_b64_tr_b16 {dst}, v{(tA, tB)[t]} offset:{qrow[kind](q) * 256}')
            if pl[0] == 'l':
                wb_regs.append(tmp + 8 * t); wb_offs.append(pl[1])
            if pl[0] == 'g':
                g_regs.append((tmp + 8 * t, pl[1]))
        if wb_regs:
            pending = (wb_regs, wb_offs)
        if g_regs:
            k('s_waitcnt lgkmcnt(0)')
            for r, off in g_regs:
                k(f'buffer_store_dwordx4 {v(r,4)}, v{vL16}, {s(S_WS,4)}, {s(sGW)} offen offset:{off}')
                k(f'buffer_store_dwordx4 {v(r+4,4)}, v{vL16}, {s(S_WS,4)}, {s(sGW)} offen offset:{off + 1024}')
                vm += ['g', 'g']
        if i + DEPTH < 36:
            issue(i + DEPTH)
        if early and i in early:
            vm.extend(['e'] * early[i]())
    k('s_waitcnt vmcnt(0) lgkmcnt(0)')
    k('s_barrier')
    writeback(pending)
    k('s_waitcnt lgkmcnt(0)')

def stamp(k, name, diag):
    if diag and name in CFG['stamps']:
        idx = CFG['stamps'].index(name)
        op = 's_memrealtime' if CFG.get('rt') else 's_memtime'
        k(f'{op} {s(sTM + 2 * idx, 2)}')

def max_ops(regs, tmp):
    regs = list(regs)
    out = [f'v_max3_u32 v{tmp}, v{regs[0]}, v{regs[1]}, v{regs[2]}']
    rest = regs[3:]
    while rest:
        if len(rest) >= 2:
            out.append(f'v_max3_u32 v{tmp}, v{tmp}, v{rest[0]}, v{rest[1]}'); rest = rest[2:]
        else:
            out.append(f'v_max_u32 v{tmp}, v{tmp}, v{rest[0]}'); rest = rest[1:]
    return out

def retry_branch(k, tmp, retry_stub):
    k(f'v_cmp_eq_u32 vcc, {-1 if not CFG.get("x_nocomm") else 17}, v{tmp}')
    k(f's_cbranch_vccnz {retry_stub}')

def masked_retry_stub(k, stub, check, cont, loads, depth):
    k.label(stub)
    k(f's_sub_u32 {s(sBUD)}, {s(sBUD)}, 1')
    giveup = k.newlabel('giveup')
    k(f's_cbranch_scc1 {giveup}')
    k('s_mov_b64 exec, vcc')
    for op in loads:
        k(op)
    k('s_mov_b64 exec, -1')
    k(f's_branch {check}')
    k.label(giveup)
    k(f's_mov_b32 {s(sBUD)}, 0')
    k(f's_branch {cont}')

def offsets_ops():
    return [
        f's_and_b32 {s(sPZ0)}, {s(sSTEP)}, 1',
        f's_sub_u32 {s(sPZ1)}, 0, {s(sPZ0)}',
        f's_add_u32 {s(sT0)}, {s(sSTEP)}, 1',
        f's_and_b32 {s(sT0)}, {s(sT0)}, 3',
        f's_lshl_b32 {s(sT0)}, {s(sT0)}, 15',
        f's_add_u32 {s(sMLR)}, {s(sT0)}, {s(cMLR)}',
        f's_add_u32 {s(sMRR)}, {s(sT0)}, {s(cMRR)}',
        f's_add_u32 {s(sMLW)}, {s(sT0)}, {s(cMLW)}',
        f's_add_u32 {s(sMRW)}, {s(sT0)}, {s(cMRW)}',
        f's_xor_b32 {s(sMLZ)}, {s(sMLW)}, 0x10000',
        f's_xor_b32 {s(sMRZ)}, {s(sMRW)}, 0x10000',
    ]

def emit_publish(k, val, sc, remote):
    k(f's_mov_b64 exec, {s(sMASK_LO8,2)}')
    k(f'buffer_store_dword v{val}, v{vPUB}, {s(S_WS,4)}, {s(sMLW)} offen{sc}')
    if remote:
        k(f'buffer_store_dword v{val}, v{vPUB}, {s(S_WS,4)}, {s(sMRW)} offen sc1')
    k('s_mov_b64 exec, -1')

def k_dma_ops():
    return [f's_mov_b32 m0, {s(sKVM0)}'] + [f'buffer_load_dwordx4 v{vL16}, {s(S_WS,4)}, {s(sKV)} offen offset:{j * 1024} sc1 lds' for j in range(2)]
def v_dma_ops():
    return [f's_add_u32 m0, {s(sKVM0)}, 8192', f's_add_u32 {s(sT1)}, {s(sKV)}, 8192'] + [f'buffer_load_dwordx4 v{vL16}, {s(S_WS,4)}, {s(sT1)} offen offset:{j * 1024} sc1 lds' for j in range(2)]

def lds_op_read_ops(key, dst):
    b, imm = lds_w_addr(PLACE[key][1])
    return [f'ds_read_b128 {v(dst,4)}, v{b} offset:{imm}', f'ds_read_b128 {v(dst+4,4)}, v{b} offset:{imm + 1024}']

class LG:
    def __init__(self, k):
        self.k = k; self.q = []
    def op(self, text, tag):
        self.k(text); self.q.append(tag)
    def wait(self, tag):
        if tag in self.q:
            last = max(i for i, t in enumerate(self.q) if t == tag)
            self.k(f's_waitcnt lgkmcnt({min(len(self.q) - 1 - last, 15)})')
            del self.q[:last + 1]
    def drain(self):
        self.k('s_waitcnt lgkmcnt(0)'); self.q = []

def delay(k, n):
    while n > 0:
        m = min(n, 16); k(f's_nop {m-1}'); n -= m


def kv_flag_wait(k, t0, t1):
    top, done = k.newlabel('kvf'), k.newlabel('kvd')
    k(f'v_lshrrev_b32 v{t0}, 2, v{vL16}')
    k(f'v_min_u32 v{t0}, 64, v{t0}')
    k.label(top)
    k(f'buffer_load_dword v{t1}, v{t0}, {s(S_WS,4)}, {s(sKVF)} offen sc1')
    k('s_waitcnt vmcnt(0)')
    k(f'v_cmp_gt_u32 vcc, 2, v{t1}')
    k(f's_ff1_i32_b64 {s(sKNOWN)}, vcc')
    k(f's_lshl_b32 {s(sKNOWN)}, {s(sKNOWN)}, 2')
    k(f's_cmp_eq_u32 {s(sKNOWN)}, 64')
    k(f's_cselect_b32 {s(sKNOWN)}, 128, {s(sKNOWN)}')
    k(f's_add_u32 {s(sT0)}, {s(sSTEP)}, 2')
    k(f's_cmp_lt_u32 {s(sT0)}, {s(sKNOWN)}')
    k(f's_cbranch_scc1 {done}')
    k('s_sleep 2')
    k(f's_sub_u32 {s(sBUD)}, {s(sBUD)}, 1')
    k(f's_cbranch_scc0 {top}')
    k(f's_mov_b32 {s(sBUD)}, 0')
    k(f's_mov_b32 {s(sKNOWN)}, 128')
    k.label(done)

def diag_store(k):
    R_ = SL[1]
    k('s_waitcnt lgkmcnt(0)')
    for i in range(9):
        k(f'v_writelane_b32 v{R_}, {s(sTM + 2*i)}, {i}')
    k(f'v_writelane_b32 v{R_}, {s(sB0)}, 9')
    k(f'v_writelane_b32 v{R_}, {s(sB1_)}, 10')
    k(f'v_writelane_b32 v{R_}, {s(sBUD)}, 11')
    k(f'v_lshrrev_b32 v{R_+1}, 2, v{vL16}')
    k('s_mov_b64 exec, 0xffff')
    k(f'buffer_store_dword v{R_}, v{R_+1}, {s(S_WS,4)}, {s(sTS)} offen')
    k('s_mov_b64 exec, -1')
    k(f's_add_u32 {s(sTS)}, {s(sTS)}, 64')

M0V = 32

def emit_m0_loads(k):
    nocons = k.newlabel('nocons')
    k(f's_cmp_eq_u32 {s(sCI)}, -1')
    k(f's_cbranch_scc1 {nocons}')
    bits(k, 21, 20, [(4, 1, 2), (5, 1, 1)], 23)
    k(f'v_bfe_u32 v22, v20, 2, 1')
    k(f'v_and_b32 v23, 3, v20')
    k(f's_and_b32 {s(sT0)}, {s(sCI)}, 1')
    k(f's_lshl_b32 {s(sT0)}, {s(sT0)}, 2')
    k(f'v_add_u32 v23, {s(sT0)}, v23')
    k(f'v_mul_u32_u24 v23, 1280, v23')
    k(f's_and_b32 {s(sT2)}, {s(sCI)}, 2')
    k(f's_lshl_b32 {s(sT2)}, {s(sT2)}, 3')
    shr, cont = k.newlabel('shr'), k.newlabel('cont')
    k(f's_cmp_ge_u32 {s(sCI)}, 32')
    k(f's_cbranch_scc1 {shr}')
    k(f's_lshr_b32 {s(sT0)}, {s(sCI)}, 3')
    k(f's_lshl_b32 {s(sT0)}, {s(sT0)}, 6')
    k(f's_and_b32 {s(sT1)}, {s(sCI)}, 4')
    k(f's_lshl_b32 {s(sT1)}, {s(sT1)}, 1')
    k(f's_add_u32 {s(sT0)}, {s(sT0)}, {s(sT1)}')
    k(f's_lshl_b32 {s(sT1)}, {s(sX)}, 8')
    k(f's_add_u32 {s(sT0)}, {s(sT0)}, {s(sT1)}')
    k(f's_add_u32 {s(sT0)}, {s(sT0)}, {s(sT2)}')
    k(f'v_lshl_add_u32 v24, v22, 5, v21')
    k(f'v_add_u32 v24, {s(sT0)}, v24')
    k(f'v_add_u32 v25, 1, v24')
    k(f's_branch {cont}')
    k.label(shr)
    k(f's_sub_u32 {s(sT0)}, {s(sCI)}, 32')
    k(f's_lshr_b32 {s(sT0)}, {s(sT0)}, 2')
    k(f's_lshl_b32 {s(sT0)}, {s(sT0)}, 5')
    k(f's_add_u32 {s(sT0)}, {s(sT0)}, 512')
    k(f's_add_u32 {s(sT0)}, {s(sT0)}, {s(sT2)}')
    k(f'v_lshl_add_u32 v24, v21, 1, v22')
    k(f'v_add_u32 v24, {s(sT0)}, v24')
    k(f'v_add_u32 v25, 2, v24')
    k.label(cont)
    k(f'v_lshl_add_u32 v24, v24, 1, v23')
    k(f'v_lshl_add_u32 v25, v25, 1, v23')
    k(f'buffer_load_ushort v{M0V}, v24, {s(S_M0,4)}, 0 offen')
    k(f'buffer_load_ushort v{M0V+1}, v25, {s(S_M0,4)}, 0 offen')
    k.label(nocons)

def emit_prologue(k, sc_label_pairs):
    k(f's_mov_b32 {s(sSTEP)}, -1')
    k(f'v_lshrrev_b32 v20, 4, v{vL16}')
    bits(k, 21, 20, [(0, 1, 4)], 23)
    k(f'v_mov_b32 v22, 0x3f80')
    k(f'v_lshlrev_b32 v21, v21, v22')
    k(f'v_bfe_u32 v22, v20, 1, 3')
    for i in range(4):
        k(f'v_cmp_eq_u32 vcc, {i}, v22')
        k(f'v_cndmask_b32 v{24+i}, 0, v21, vcc')
    k(f'ds_write_b128 v{vL16}, v[24:27] offset:{L_SEL}')
    for i in range(4):
        k(f'v_mov_b32 v{ONES+i}, 0x3f803f80')
    k(f's_mov_b32 {s(sLIM)}, {CFG["lim"]}')
    k(f's_mul_i32 {s(sT0)}, {s(sX)}, {PA_BT}')
    k(f's_add_u32 {s(sT0)}, {s(sT0)}, {PA}')
    k(f's_lshl_b32 {s(sT1)}, {s(sH)}, 7')
    k(f's_add_u32 {s(sPAW)}, {s(sT0)}, {s(sT1)}')
    k(f's_lshl_b32 {s(sT1)}, {s(sCI)}, 12')
    k(f's_add_u32 {s(sPAR)}, {s(sT0)}, {s(sT1)}')
    for op in offsets_ops():
        k(op)
    k(f's_lshl_b32 {s(sKV)}, {s(sH)}, 14')
    k(f's_lshl_b32 {s(sT0)}, {s(sW)}, 11')
    k(f's_add_u32 {s(sKV)}, {s(sKV)}, {s(sT0)}')
    k(f's_add_u32 {s(sKV)}, {s(sKV)}, {KV}')
    k(f's_add_u32 {s(sKVM0)}, {s(sT0)}, {L_KT}')
    k(f's_lshl_b32 {s(sT0)}, {s(sH)}, 12')
    k(f's_add_u32 {s(sT0)}, {s(sT0)}, {KVM}')
    k(f's_lshl_b32 {s(sT1)}, {s(sW)}, 10')
    k(f's_add_u32 {s(sT0)}, {s(sT0)}, {s(sT1)}')
    k(f's_cmp_eq_u32 {s(sX)}, 0')
    k(f's_cselect_b32 {s(sPUBK)}, {s(sT0)}, 0x40000000')
    k(f's_mov_b32 {s(sRETRY)}, 0')
    k(f's_lshl_b32 {s(sT0)}, {s(sX)}, 10')
    k(f's_add_u32 {s(sT0)}, {s(sT0)}, {HINT}')
    k(f's_lshl_b32 {s(sT1)}, {s(sH)}, 2')
    k(f's_add_u32 {s(sHW)}, {s(sT0)}, {s(sT1)}')
    k(f's_and_b32 {s(sT1)}, {s(sH)}, 3')
    k(f's_lshl_b32 {s(sT1)}, {s(sT1)}, 8')
    k(f's_add_u32 {s(sHR)}, {s(sT0)}, {s(sT1)}')
    k(f's_mov_b32 {s(sMASK_H)}, 0x00010001')
    k(f's_mov_b32 {s(sMASK_H+1)}, 0x00010001')
    k(f'v_lshl_or_b32 v26, v{M0V+1}, 16, v{M0V}')
    if CFG['fused']:
        k(f's_lshl_b32 {s(sKVF)}, {s(sH)}, 7')
        k(f's_add_u32 {s(sKVF)}, {s(sKVF)}, {FL_KV}')
        kv_flag_wait(k, 28, 29)
    bits(k, 28, 20, [(0, 5, 6), (5, 1, 13)], 23)
    k(f'ds_write_b32 v{vL16}, v28 offset:{L_TCH}')
    k(f's_add_u32 {s(sTCH)}, {s(sKV)}, {32 * 16384}')
    for op in k_dma_ops() + v_dma_ops():
        k(op)
    k(f's_mov_b32 m0, {L_JUNK}')
    k(f'buffer_load_dword v28, {s(S_WS,4)}, {s(sTCH)} offen sc1 lds')
    k('s_waitcnt lgkmcnt(0)')

def emit_loop(k, glob, diag, end_label, cons, poller, name):
    sc = ' sc1' if glob else ''
    top = f'rec_top_{name}'
    SMF = 'v_smfmac_f32_16x16x64_bf16'
    MF32 = 'v_mfma_f32_16x16x32_bf16'
    MF16 = 'v_mfma_f32_16x16x16_bf16'
    FILL = f'v_mov_b32 v{vPUB}, v{vPUB}'
    A0, A1, A2, A3 = AW, AW + 4, AW + 8, AW + 12
    stubs = []
    MV = ACCK
    def pub_local():
        k(f's_mov_b64 exec, {s(sMASK_LO8,2)}')
        k(f'buffer_store_dword v{MV}, v{vPUB}, {s(S_WS,4)}, {s(sMLW)} offen{sc}')
        if cons == 'E' and CFG['delay_r'] == 0 and not CFG.get('x_nox'):
            k(f'buffer_store_dword v{MV}, v{vPUB}, {s(S_WS,4)}, {s(sMRW)} offen sc1')
        k('s_mov_b64 exec, -1')
    k.label(f'rec_entry_{name}')
    if cons:
        k(f'v_mov_b32 v{MV}, v26')
        pub_local()
        if diag:
            k(f's_sub_u32 {s(sTS)}, {s(sTS)}, 64')
    if CFG['fill']:
        k.filler(FILL)
    k.raw(';@align on' if CFG['align'] and not glob else '.p2align 3')
    k.label(top)
    k(f's_add_u32 {s(sSTEP)}, {s(sSTEP)}, 1')
    if not cons:
        stamp(k, 'top', diag)
    PL = SL[0]
    seq = [(m, c, 0, t) for c in range(6) for t in range(2) for m in 'qkv']
    lds_ops = [key for key in seq if PLACE[key][0] == 'l']
    slot_of = {}
    nxt = 0
    prep = []
    for sl in (SL[1], SL[2], SL[3]):
        slot_of[lds_ops[nxt]] = sl
        prep += lds_op_read_ops(lds_ops[nxt], sl)
        nxt += 1
    prep += [f'v_mov_b64 {v(MISC,2)}, -1', f'v_mov_b64 {v(MISC+2,2)}, -1']
    zero = [f'v_mov_b64 {v(r,2)}, 0' for r in range(ACCQ, ACCQ + 12, 2)]
    resets = []
    if cons:
        resets += ['s_mov_b64 exec, 0xff', f'buffer_store_dwordx4 {v(MISC,4)}, v{vL16}, {s(S_WS,4)}, {s(sMLZ)} offen{sc}', 's_mov_b64 exec, -1']
    pl_ops = [f'buffer_load_dwordx4 {v(PL+4*j,4)}, v{vPERM}, {s(S_WS,4)}, {s(sMLR)} offen offset:{1024*j} sc1' for j in range(2)]
    def kvcheck():
        if CFG['fused']:
            kvs, kvc = k.newlabel('kv_stub'), k.newlabel('kv_cont')
            k(f's_add_u32 {s(sT0)}, {s(sSTEP)}, 2')
            k(f's_cmp_ge_u32 {s(sT0)}, {s(sKNOWN)}')
            k(f's_cbranch_scc1 {kvs}')
            k.label(kvc)
            stubs.append(('kv', kvs, kvc))
    if cons:
        k('s_barrier')
        if diag:
            diag_store(k)
            stamp(k, 'top', diag)
    for op in prep:
        k(op)
    if cons != 'E':
        for op in zero:
            k(op)
    if cons != 'E':
        kvcheck()
    if not cons:
        k('s_barrier')
    if not glob and not poller:
        for op in resets:
            k(op)
    if poller:
        delay(k, CFG['delay_b'] if not cons else max(CFG['delay_b'] - 20, 0))
        check, stub, cont = k.newlabel('pl_check'), k.newlabel('pl_stub'), k.newlabel('pl_cont')
        stamp(k, 'l_issue', diag)
        for op in pl_ops:
            k(op)
        if not glob:
            for op in resets:
                k(op)
        for _ in range(CFG['extra_b']):
            delay(k, CFG['gap_b'])
            for op in pl_ops:
                k(op)
        k.label(check)
        k(f's_waitcnt vmcnt({2 * CFG["extra_b"]})')
        for op in max_ops(range(PL, PL + 8), A3):
            k(op)
        for j in range(2):
            k(f'ds_write_b128 v{vLW0}, {v(PL+4*j,4)} offset:{L_M - 2048 + 1024*j}')
        retry_branch(k, A3, stub)
        stubs.append(('m', stub, check, cont, pl_ops))
        k.label(cont)
    else:
        k(f's_waitcnt vmcnt({(1 if CFG["delay_r"] or CFG.get("x_nox") else 2) + (0 if glob else 1) + (1 if diag else 0)})')
        if CFG['delay_r']:
            delay(k, CFG['delay_r'])
            k(f's_mov_b64 exec, {s(sMASK_LO8,2)}')
            k(f'buffer_store_dword v{MV}, v{vPUB}, {s(S_WS,4)}, {s(sMRW)} offen sc1')
            k('s_mov_b64 exec, -1')
        k(f'v_mov_b32 v{SL[0]}, -1')
        for op in zero:
            k(op)
        kvcheck()
    if glob:
        for op in resets:
            k(op)
    if diag:
        k(f's_mov_b32 {s(sB0)}, {s(sBUD)}')
    rem_load = f'buffer_load_dwordx4 {v(MISC,4)}, v{vPERM}, {s(S_WS,4)}, {s(sMRR if not CFG.get("x_nox") else sGW)} offen sc1'
    k('s_waitcnt lgkmcnt(0)')
    stamp(k, 'preB1', diag)
    k('s_barrier')
    stamp(k, 'B1', diag)
    lg = LG(k)
    acc = {'q': ACCQ, 'k': ACCK, 'v': ACCV}
    def rdA(i):
        return f'ds_read_b128 {v(AW + 4*(i%4),4)}, v{(vL16, vL16X)[i&1]} offset:{L_M + 1024*(i>>1)}'
    for i in range(4):
        lg.op(rdA(i), ('A', i))
    k(rem_load)
    nlater = 0
    mrz = [f's_mov_b64 exec, {s(sMASK_LO8,2)}', f'buffer_store_dword v{SL[0]}, v{vPUB}, {s(S_WS,4)}, {s(sMRZ)} offen sc1', 's_mov_b64 exec, -1']
    if cons == 'E':
        nlater += 1
    def gl(t, h):
        return f'buffer_load_dwordx4 {v(SL[t]+4*h,4)}, v{vL16}, {s(S_WS,4)}, {s(sGW)} offen offset:{2048*t+1024*h}'
    RA = [SL[2], SL[2] + 4, SL[3], SL[3] + 4, A0, A1, A2, A3]
    def rdR(i):
        return ('lg', f'ds_read_b128 {v(RA[i],4)}, v{(vL16, vL16X)[i&1]} offset:{L_R + 2048*(i>>1)}', ('R', i))
    side = {}
    def put(i, op, front=False):
        lst = side.setdefault(i, [])
        lst.insert(0, op) if front else lst.append(op)
    RC = CFG['rem_chk']
    CKR = MISC
    rstub, rcont = k.newlabel('rem_stub'), k.newlabel('rem_cont')
    mo = max_ops(range(MISC, MISC + 4), CKR)
    vd = v_dma_ops()
    kd = k_dma_ops()
    if cons == 'E':
        for op in mrz:
            put(0, op)
    put(1, gl(0, 0)); put(4, gl(0, 1))
    nlater += 2
    put(RC, ('fn', lambda: stamp(k, 'remchk', diag)))
    put(RC, f's_waitcnt vmcnt({nlater})')
    put(RC, ('lg', f'ds_write_b128 v{vLW0}, {v(MISC,4)} offset:{L_R}', 'rw'))
    put(RC + 2, mo[0])
    put(RC + 3, mo[1])
    put(RC + 4, f'v_cmp_eq_u32 vcc, {-1 if not (CFG.get("x_nocomm") or CFG.get("x_nox")) else 17}, v{CKR}')
    put(RC + 5, f's_cbranch_vccnz {rstub}'); put(RC + 5, ('lab', rcont))
    put(RC + 6, ('lg', f'ds_read_b32 v{MISC}, v{vL16} offset:{L_TCH}', 'tch'))
    stubs.append(('r', rstub, rcont, rem_load, mo, CKR))
    put(29, ('fn', lambda: (lg.drain(), stamp(k, 'preB2', diag), k('s_barrier'))))
    put(29, rdR(0)); put(30, rdR(1)); put(31, rdR(2)); put(32, rdR(3)); put(33, rdR(4)); put(34, rdR(5)); put(35, rdR(6))
    uses_left = {sl: 0 for sl in SL}
    for i, key in enumerate(seq):
        m, c, _, t = key
        ai = 2 * c + t
        lg.wait(('A', ai))
        pl = PLACE[key]
        if pl[0] == 'r':
            B = opreg(pl[1])
        else:
            lg.wait(key); B = v(slot_of[key], 8)
        k(f'{SMF} {v(acc[m],4)}, {v(AW+4*(ai%4),4)}, {B}, v{vIDX}')
        if pl[0] != 'r':
            if nxt < len(lds_ops) and not (slot_of[key] == SL[1] and len(lds_ops) - nxt <= 1):
                nk_ = lds_ops[nxt]; slot_of[nk_] = slot_of[key]; nxt += 1
                ops = lds_op_read_ops(nk_, slot_of[key])
                lg.op(ops[0], nk_)
                put(i + 1, ('lg', ops[1], nk_), True)
            elif slot_of[key] == SL[1]:
                assert i <= RC + 1, i
                put(RC + 1, gl(1, 0)); put(RC + 1, gl(1, 1))
        if m == 'v' and ai + 4 < 12:
            put(i + 2, ('lg', rdA(ai + 4), ('A', ai + 4)), True)
        for op in side.get(i, []):
            if isinstance(op, tuple):
                if op[0] == 'lg':
                    lg.op(op[1], op[2])
                elif op[0] == 'lab':
                    k.label(op[1])
                else:
                    op[1]()
            else:
                k(op)
    assert nxt == len(lds_ops)
    if diag:
        k(f's_mov_b32 {s(sB1_)}, {s(sBUD)}')
    stamp(k, 'locdone', diag)
    salu = [f's_add_u32 {s(sTCH)}, {s(sKV)}, {64 * 16384}', f's_mov_b32 m0, {L_JUNK}'] + offsets_ops() + [f's_add_u32 {s(sKV)}, {s(sKV)}, {32 * 16384}']
    def rm(n):
        m = 'qkv'[n // 8]; i = n % 8
        lg.wait(('R', i))
        if n == 14:
            stamp(k, 'g0', diag)
            k('s_waitcnt vmcnt(1)')
            stamp(k, 'g1', diag)
        pl = PLACE[(m, 6 + (i>>1), 0, i&1)]
        B = opreg(pl[1]) if pl[0] == 'r' else v(SL[i & 1], 8)
        k(f'{SMF} {v(acc[m],4)}, {v(RA[i],4)}, {B}, v{vIDX}')
        if salu:
            k(salu.pop(0))
    F = MISC
    rm(0); lg.op(*rdR(7)[1:])
    rm(1)
    rm(2)
    k(f'buffer_load_dword v{F}, {s(S_WS,4)}, {s(sTCH)} offen sc1 lds')
    for n in range(3, 10):
        rm(n)
    for i in range(4):
        k(f'v_mul_f32 v{ACCQ+i}, {s(sC)}, v{ACCQ+i}')
        rm(10 + i)
    k(f'v_cvt_pk_bf16_f32 v{F}, v{ACCQ}, v{ACCQ+1}')
    rm(14)
    k(f'v_cvt_pk_bf16_f32 v{F+1}, v{ACCQ+2}, v{ACCQ+3}')
    rm(15)
    lg.op(f'ds_write_b64 v{vXW}, {v(F,2)} offset:{L_QX}', 'qw')
    assert not salu
    QTR = [SL[0], SL[0] + 4, SL[1], SL[1] + 4]
    KMR = RA[:4]
    def qrd(j, hh):
        lg.op(f'ds_read_b64_tr_b16 {v(QTR[j]+2*hh,2)}, v{vTR} offset:{L_QX + j*512 + hh*256}', ('qt', j))
    def ktrd(kt, j):
        lg.op(f'ds_read_b128 {v(RA[4*kt+j],4)}, v{vL16} offset:{L_KT + kt*4096 + j*1024}', ('kt', kt, j))
    def kmrd(j):
        for hh in range(2):
            lg.op(f'ds_read_b64_tr_b16 {v(KMR[j]+2*hh,2)}, v{vTR} offset:{L_KX + j*512 + hh*256}', ('km', j))
    ex = lambda r: k(f'v_exp_f32 v{r}, v{r}')
    cv = lambda d, r: k(f'v_cvt_pk_bf16_f32 v{d}, v{r}, v{r+1}')
    z = lambda r: k(f'v_mov_b64 {v(r,2)}, 0')
    rm(16)
    rm(17)
    cv(F + 2, ACCK); cv(F + 3, ACCK + 2)
    lg.op(f'ds_write_b64 v{vXW}, {v(F+2,2)} offset:{L_KX}', 'kw')
    stamp(k, 'kw', diag)
    NB = CFG['v_before']
    for n in range(18, 18 + NB):
        rm(n)
        ktrd(0, n - 18)
    assert NB == 4
    lg.wait('kw')
    stamp(k, 'preB3', diag)
    k('s_barrier')
    rest = list(range(18 + NB, 24))
    for j in range(4):
        qrd(j, 0); qrd(j, 1)
        if len(rest) > 3 - j:
            rm(rest.pop(0))
    ST, SM = ACCQ, A3
    def st(kt, j, w=True):
        if w:
            lg.wait(('kt', kt, j))
        k(f'{MF32} {v(ST+4*kt,4)}, {v(RA[4*kt+j],4)}, {v(QTR[j],4)}, {"0" if j == 0 else v(ST+4*kt,4)}')
    def sm(j, w=True):
        if w:
            lg.wait(('km', j))
        k(f'{MF32} {v(SM,4)}, {v(KMR[j],4)}, {v(QTR[j],4)}, {"0" if j == 0 else v(SM,4)}')
    VTK, VA, OP, OA, RL = A0, ACCV, A2, SL[2], SL[3]
    VP = MISC
    lg.wait(('qt', 1))
    st(0, 0, False); ktrd(1, 0); ktrd(1, 1)
    st(0, 1, False); ktrd(1, 2); ktrd(1, 3)
    lg.wait(('qt', 3))
    st(0, 2, False); kmrd(0)
    st(0, 3, False); kmrd(1)
    lg.wait(('kt', 1, 1))
    st(1, 0, False); kmrd(2)
    st(1, 1, False); kmrd(3)
    lg.wait(('kt', 1, 3))
    st(1, 2, False); cv(VP, ACCV); cv(VP + 1, ACCV + 2)
    st(1, 3, False)
    for t in range(2):
        lg.op(f'ds_read_b128 {v(VTK+4*t,4)}, v{vLW0} offset:{L_VT + 1024*t}', 'vt')
    lg.wait(('km', 1))
    sm(0, False)
    k(f'buffer_store_dwordx4 {v(VP,4)}, v{vL16}, {s(S_WS,4)}, {s(sPUBK)} offen sc1')
    ex(ST)
    sm(1, False); ex(ST + 1)
    lg.wait(('km', 3))
    sm(2, False); ex(ST + 2)
    sm(3, False); ex(ST + 3)
    stamp(k, 'presm', diag)
    ex(ST + 4); ex(ST + 5); ex(ST + 6); ex(ST + 7)
    cv(ST, ST); cv(ST + 1, ST + 2); cv(ST + 2, ST + 4); cv(ST + 3, ST + 6)
    ex(SM)
    lg.wait('vt')
    k(f'{MF32} {v(OA,4)}, {v(VTK,4)}, {v(ST,4)}, 0')
    ex(SM + 1)
    k(f'{MF32} {v(OA+4,4)}, {v(VTK+4,4)}, {v(ST,4)}, 0')
    ex(SM + 2)
    k(f'{MF32} {v(RL,4)}, {v(ONES,4)}, {v(ST,4)}, 0')
    ex(SM + 3)
    k(f'v_cndmask_b32 v{VA}, 0, v{VP}, {s(sMASK_LT32,2)}')
    cv(SM, SM); cv(SM + 1, SM + 2)
    slow, back = k.newlabel('sm_slow'), k.newlabel('sm_back')
    k.label(back)
    k(f'v_cndmask_b32 v{SM+2}, 0, v{SM}, {s(sMASK_LT32,2)}')
    k(f'v_cndmask_b32 v{SM+3}, 0, v{SM+1}, {s(sMASK_LT32,2)}')
    k(f'v_cndmask_b32 v{VA+1}, 0, v{VP+1}, {s(sMASK_LT32,2)}')
    k(f'v_cndmask_b32 v{VA+2}, 0, v{VP}, {s(sMASK_GE32,2)}')
    k(f'{MF16} {v(RL,4)}, {v(ONES,2)}, {v(SM+2,2)}, {v(RL,4)}')
    k(f'v_cndmask_b32 v{VA+3}, 0, v{VP+1}, {s(sMASK_GE32,2)}')
    k(f'{MF16} {v(OA,4)}, {v(VA,2)}, {v(SM,2)}, {v(OA,4)}')
    OWA = ACCK
    k(f'v_add_u32 v{OWA}, {s(sOW)}, v{vL16}')
    k(f'{MF16} {v(OA+4,4)}, {v(VA+2,2)}, {v(SM,2)}, {v(OA+4,4)}')
    z(ACCQ); z(ACCQ + 2); z(ACCK + 2)
    k(f'v_rcp_f32 v{RL+2}, v{RL}')
    k(f'v_max_f32 v{RL+1}, v{RL}, v{RL+2}')
    for i in range(0, 8, 2):
        k(f'v_pk_mul_f32 {v(OA+i,2)}, {v(OA+i,2)}, {v(RL+2,2)} op_sel_hi:[1,0]')
    for i in range(4):
        cv(OP + i, OA + 2 * i)
    k(f'v_cmp_nge_f32 vcc, {s(sLIM)}, v{RL+1}')
    stamp(k, 'owr', diag)
    k(f's_mov_b64 exec, {s(sMASK_OW,2)}')
    k(f'ds_write_b128 v{OWA}, {v(OP,4)} offset:{L_OX}')
    k('s_mov_b64 exec, -1')
    k(f's_cbranch_vccnz {slow}')
    ok2 = k.newlabel('sm_ok')
    k.label(ok2)
    stubs.append(('sm', slow, back, ok2))
    wo_slot = {('o', 0, 0, 0): SL[0], ('o', 0, 0, 1): SL[1], ('o', 1, 0, 0): SL[2], ('o', 1, 0, 1): SL[3],
               ('o', 1, 2, 0): SL[0], ('o', 1, 2, 1): SL[1]}
    k(f's_cmp_eq_u32 {s(sSTEP)}, 63')
    k(f's_cbranch_scc1 {end_label}')
    def hint_store():
        if CFG['hint'] and not glob and cons == 'E':
            k(f'v_mov_b32 v{MISC}, {s(sSTEP)}')
            k(f's_mov_b64 exec, {s(sMASK_H,2)}')
            k(f'buffer_store_dword v{MISC}, v{vL16}, {s(S_WS,4)}, {s(sHW)} offen')
            k('s_mov_b64 exec, -1')
    if CFG['hint_early']:
        hint_store()
    for op in vd:
        k(op)
    for op in lds_op_read_ops(('o', 0, 0, 0), SL[0]):
        k(op)
    k('s_waitcnt lgkmcnt(2)')
    stamp(k, 'preB5', diag)
    k('s_barrier')
    lg = LG(k)
    OX = [A0, A1, A2, A3]
    for i in range(4):
        lg.op(f'ds_read_b128 {v(OX[i],4)}, v{(vL16, vL16X)[i&1]} offset:{L_OX + 2048*(i>>1)}', ('o', i))
    def word(key, h):
        lg.op(lds_op_read_ops(key, wo_slot[key])[h], key)
    def wo(p, i):
        key = ('o', i >> 1, p, i & 1)
        lg.wait(('o', i)); lg.wait(key)
        B = v(wo_slot[key], 8) if key in wo_slot else opreg(PLACE[key][1])
        k(f'{SMF} {v(ACCQ+4*p,4)}, {v(OX[i],4)}, {B}, v{vIDX}')
    tag = lambda r: k(f'v_and_or_b32 v{r}, v{r}, -2, {s(sPZ0)}')
    word(('o', 0, 0, 1), 0); word(('o', 0, 0, 1), 1)
    z(ACCK)
    for op in kd:
        k(op)
    hint = CFG['hint'] and not glob
    HV, HL = MISC, MISC + 1
    h_load = f'buffer_load_dword v{HL}, v{vPUB}, {s(S_WS,4)}, {s(sHR)} offen sc1'
    def hs():
        if hint and cons:
            k(h_load)
    if not CFG['hint_early']:
        hint_store()
    k(f's_add_u32 {s(sPUBK)}, {s(sPUBK)}, {32 * 4096}')
    k(f's_mov_b32 {s(sRETRY)}, 0')
    hp = CFG['hint_pos']
    steps = [lambda: (wo(0, 0), word(('o', 1, 0, 0), 0)),
             lambda: (wo(1, 0), word(('o', 1, 0, 0), 1)),
             lambda: (wo(1, 1), word(('o', 1, 0, 1), 0)),
             lambda: (wo(0, 1), word(('o', 1, 0, 1), 1)),
             lambda: (wo(1, 2), word(('o', 1, 2, 0), 0), z(ACCV)),
             lambda: (wo(1, 3), word(('o', 1, 2, 0), 1), z(ACCV + 2)),
             lambda: (wo(0, 2), word(('o', 1, 2, 1), 0)),
             lambda: (wo(0, 3), word(('o', 1, 2, 1), 1)),
             lambda: (wo(2, 0), cv(ACCK, ACCK)),
             lambda: (wo(2, 1), cv(ACCK + 1, ACCK + 2)),
             lambda: (wo(2, 2), cv(ACCQ + 3, ACCQ + 2)),
             lambda: (wo(2, 3), cv(ACCQ + 2, ACCQ))]
    for i, f_ in enumerate(steps):
        f_()
        if i in hp:
            hs()
    tag(ACCK); tag(ACCQ + 2)
    k(f'buffer_store_dwordx4 {v(ACCQ+2,4)}, v{vPAE}, {s(S_WS,4)}, {s(sPAW)} offen{sc}')
    k.credit(2)
    hs()
    cv(ACCV, ACCV); cv(ACCV + 1, ACCV + 2); tag(ACCV)
    k(f'buffer_store_dwordx2 {v(ACCV,2)}, v{vPAS}, {s(S_WS,4)}, {s(sPAW)} offen{sc}')
    stamp(k, 'st1', diag)
    SEL = SL[2]
    if cons:
        k(f'ds_read_b128 {v(SEL,4)}, v{vL16} offset:{L_SEL}')
    if cons:
        check, stub, cont = k.newlabel('ra_check'), k.newlabel('ra_stub'), k.newlabel('ra_cont')
        X, D_, TM = AW, SL[3], MISC
        a_ops = [f'buffer_load_dwordx4 {v(X+4*j,4)}, v{vL16}, {s(S_WS,4)}, {s(sPAR)} offen offset:{1024*j} sc1' for j in range(4)]
        if hint:
            hd = k.newlabel('h_done')
            k(f's_mov_b64 exec, {s(sMASK_LO8,2)}')
            for it in range(CFG['hint_n']):
                k(h_load)
                if it == 0:
                    k(f's_waitcnt vmcnt({len(hp) + 3})')
                k(f'v_cmp_ne_u32 vcc, {s(sSTEP)}, v{HL}')
                k(f's_cbranch_vccz {hd}')
            k.label(hd)
            k('s_mov_b64 exec, -1')
            delay(k, CFG['delay_h'])
            TM = MISC + 2
        else:
            delay(k, CFG['delay_a'] if cons == 'E' else CFG['delay_as'])
        stamp(k, 'a_issue', diag)
        for op in a_ops:
            k(op)
        EA = CFG['extra_a']
        for _ in range(EA):
            delay(k, CFG['gap_a'])
            for op in a_ops:
                k(op)
        k('s_waitcnt lgkmcnt(0)')
        k.label(check)
        for j in range(4):
            k(f's_waitcnt vmcnt({4 * EA + 3 - j})')
            r = X + 4 * j
            k(f'v_bitop3_b32 v{TM + (1 if j else 0)}, v{r}, v{r+2}, {s(sPZ1)} bitop3:0x7e')
            if j:
                k(f'v_or_b32 v{TM}, v{TM}, v{TM+1}')
            k(f'{MF32} {v(D_,4)}, {v(r,4)}, {v(SEL,4)}, {"0" if j == 0 else v(D_,4)}')
        stamp(k, 'a_last', diag)
        k.filler(None)
        k(f'v_and_b32 v{TM}, 1, v{TM}')
        k(f'v_cmp_eq_u32 vcc, {1 if not CFG.get("x_nocomm") else 17}, v{TM}')
        k(f's_cbranch_vccnz {stub}')
        k.credit(4)
        stubs.append(('m', stub, check, cont, a_ops))
        k.label(cont)
        k(f'v_permlane32_swap_b32 v{D_}, v{D_+2}')
        k(f'v_permlane32_swap_b32 v{D_+1}, v{D_+3}')
        k(f'v_pk_add_f32 {v(D_,2)}, {v(D_,2)}, {v(D_+2,2)}')
        k(f'v_cvt_pk_bf16_f32 v{MV}, v{D_}, v{D_+1}')
        pub_local()
        stamp(k, 'pub', diag)
    elif diag:
        diag_store(k)
    k(f's_branch {top}')
    k.filler(None)
    for st_ in stubs:
        if st_[0] == 'm':
            masked_retry_stub(k, st_[1], st_[2], st_[3], st_[4], 1)
        elif st_[0] == 'kv':
            k.label(st_[1])
            kv_flag_wait(k, A3, A3 + 1) if cons != 'E' and cons != 'S' else kv_flag_wait(k, SL[0] + 2, SL[0] + 3)
            k(f's_branch {st_[2]}')
        elif st_[0] == 'r':
            _, stub, cont, ld, mo_, ck = st_
            again, giveup = k.newlabel('rem_again'), k.newlabel('rem_give')
            k.label(stub)
            k(f's_sub_u32 {s(sBUD)}, {s(sBUD)}, 1')
            k(f's_cbranch_scc1 {giveup}')
            k(ld)
            k('s_waitcnt vmcnt(0)')
            k(f'ds_write_b128 v{vLW0}, {v(MISC,4)} offset:{L_R}')
            k('s_waitcnt lgkmcnt(0)')
            for op in mo_:
                k(op)
            k(f'v_cmp_eq_u32 vcc, -1, v{ck}')
            k(f's_cbranch_vccnz {stub}')
            k(f's_branch {cont}')
            k.label(giveup)
            k(f's_mov_b32 {s(sBUD)}, 0')
            k(f's_branch {cont}')
        else:
            _, slow_, back_, ok_ = st_
            k.label(slow_)
            k(f's_cmp_lg_u32 {s(sRETRY)}, 0')
            k(f's_cbranch_scc1 {ok_}')
            k(f's_mov_b32 {s(sRETRY)}, 1')
            k('s_waitcnt lgkmcnt(0)')
            T4 = SL[3]
            for kt in range(2):
                for j in range(4):
                    k(f'ds_read_b128 {v(T4,4)}, v{vL16} offset:{L_KT + kt*4096 + j*1024}')
                    k('s_waitcnt lgkmcnt(0)')
                    k(f'{MF32} {v(ST+4*kt,4)}, {v(T4,4)}, {v(QTR[j],4)}, {"0" if j == 0 else v(ST+4*kt,4)}')
                    k('s_nop 3')
            for j in range(4):
                for hh in range(2):
                    k(f'ds_read_b64_tr_b16 {v(T4+2*hh,2)}, v{vTR} offset:{L_KX + j*512 + hh*256}')
                k('s_waitcnt lgkmcnt(0)')
                k(f'{MF32} {v(SM,4)}, {v(T4,4)}, {v(QTR[j],4)}, {"0" if j == 0 else v(SM,4)}')
                k('s_nop 3')
            allS = list(range(ST, ST + 8)) + list(range(SM, SM + 4))
            M, M2 = T4, T4 + 1
            k(f'v_max3_f32 v{M}, v{allS[0]}, v{allS[1]}, v{allS[2]}')
            for i in range(3, 11, 2):
                k(f'v_max3_f32 v{M}, v{M}, v{allS[i]}, v{allS[i+1]}')
            k(f'v_max_f32 v{M}, v{M}, v{allS[11]}')
            for sw in ('v_permlane16_swap_b32', 'v_permlane32_swap_b32'):
                k(f'v_mov_b32 v{M2}, v{M}')
                k(f'{sw} v{M}, v{M2}')
                k(f'v_max_f32 v{M}, v{M}, v{M2}')
            for r in allS:
                k(f'v_sub_f32 v{r}, v{r}, v{M}')
            for r in allS:
                ex(r)
            cv(ST, ST); cv(ST + 1, ST + 2); cv(ST + 2, ST + 4); cv(ST + 3, ST + 6)
            cv(SM, SM); cv(SM + 1, SM + 2)
            k(f'{MF32} {v(OA,4)}, {v(VTK,4)}, {v(ST,4)}, 0')
            k(f'{MF32} {v(OA+4,4)}, {v(VTK+4,4)}, {v(ST,4)}, 0')
            k(f'{MF32} {v(RL,4)}, {v(ONES,4)}, {v(ST,4)}, 0')
            k('s_nop 7')
            k(f's_branch {back_}')

def emit_team(k, diag, end_label, force_glob=False):
    emit_setup(k)
    w1 = k.newlabel('reg')
    k(f's_cmp_lg_u32 {s(sW)}, 0')
    k(f's_cbranch_scc1 {w1}')
    k(f's_lshl_b32 {s(sT0)}, {s(sFOR)}, 16')
    k(f's_add_u32 {s(sT0)}, {s(sT0)}, 1')
    k(f's_lshl_b32 {s(sT1)}, {s(sPOL)}, 8')
    k(f's_cmp_eq_u32 {s(sX)}, 0')
    k(f's_cselect_b32 {s(sT1)}, {s(sT1)}, 0')
    k(f's_add_u32 {s(sT0)}, {s(sT0)}, {s(sT1)}')
    k(f'v_mov_b32 v30, {s(sT0)}')
    k(f'v_mov_b32 v31, 64')
    k('s_mov_b64 exec, 1')
    k(f'buffer_atomic_add v30, v31, {s(S_DBG,4)}, 0 offen')
    k('s_mov_b64 exec, -1')
    k.label(w1)
    emit_m0_loads(k)
    stamp(k, 'ld0', diag)
    sGO, sINI = sPZ0, sPZ1
    def hookA():
        k(f'buffer_load_dword v34, off, {s(S_DBG,4)}, 0 offset:64 sc1')
        k(f'buffer_load_dword v35, off, {s(S_DBG,4)}, 0 offset:96 sc1')
        return 2
    def hookB():
        k(f'v_readfirstlane_b32 {s(sT3)}, v34')
        k(f'v_readfirstlane_b32 {s(sGO)}, v35')
        k(f's_mov_b32 {s(sT0)}, {FL_INIT}')
        k(f'buffer_load_dword v36, off, {s(S_WS,4)}, {s(sT0)} sc1')
        return 1
    emit_loader(k, {17: hookA, 27: hookB})
    stamp(k, 'ld1', diag)
    rp, ok = k.newlabel('mode'), k.newlabel('modeok')
    k.label(rp)
    k(f's_and_b32 {s(sT1)}, {s(sT3)}, 0xff')
    k(f's_cmp_ge_u32 {s(sT1)}, 64')
    k(f's_cbranch_scc1 {ok}')
    k(f'buffer_load_dword v34, off, {s(S_DBG,4)}, 0 offset:64 sc1')
    k('s_waitcnt vmcnt(0)')
    k(f'v_readfirstlane_b32 {s(sT3)}, v34')
    k(f's_sub_u32 {s(sBUD)}, {s(sBUD)}, 1')
    k(f's_cbranch_scc0 {rp}')
    k(f's_mov_b32 {s(sBUD)}, 0')
    k.label(ok)
    if CFG['fused']:
        fast = k.newlabel('fast')
        k(f'v_readfirstlane_b32 {s(sINI)}, v36')
        k(f's_cmp_eq_u32 {s(sGO)}, 1')
        k(f's_cselect_b32 {s(sINI)}, {s(sINI)}, 0')
        k(f's_cmp_eq_u32 {s(sINI)}, 64')
        k(f's_cbranch_scc1 {fast}')
        k(f's_mov_b32 {s(sT0)}, 96')
        tok.emit_wait(k, S_DBG, sT0, 1, 0, 1, 28, 29, lane=20)
        k(f's_mov_b32 {s(sT0)}, {FL_INIT}')
        tok.emit_wait(k, S_WS, sT0, 1, 0, 64, 28, 29, lane=20)
        k.label(fast)
    k('s_barrier')
    k(f's_bfe_u32 {s(sT1)}, {s(sT3)}, 0x80008')
    k(f's_cmp_gt_u32 {s(sT1)}, 16')
    k(f's_cselect_b32 {s(sT1)}, 8192, 0')
    k(f's_add_u32 {s(cMRR)}, {s(cMRR)}, {s(sT1)}')
    k(f's_add_u32 {s(cMRW)}, {s(cMRW)}, {s(sT1)}')
    emit_prologue(k, None)
    gl = k.newlabel('globmode')
    k(f's_lshr_b32 {s(sT3)}, {s(sT3)}, 16')
    k(f's_cmp_lg_u32 {s(sT3)}, {0 if not force_glob else 12345}')
    k(f's_cbranch_scc1 {gl}')
    for glob in (False, True):
        m = 'g' if glob else 'l'
        if glob:
            k.label(gl)
        k(f's_cmp_eq_u32 {s(sW)}, 0')
        k(f's_cbranch_scc1 rec_entry_E{m}')
        k(f's_cmp_lg_u32 {s(sCI)}, -1')
        k(f's_cbranch_scc1 rec_entry_S{m}')
        emit_loop(k, glob, diag, end_label, None, True, 'P' + m)
        emit_loop(k, glob, diag, end_label, 'E', False, 'E' + m)
        emit_loop(k, glob, diag, end_label, 'S', True, 'S' + m)
```

```python
from asmlib import *
from layout import *

S_WS = 8
S_B0, S_B1 = 12, 16
S_X, S_OUT = 20, 24
sW = 36
sT0, sT1, sT2, sT3 = 54, 55, 56, 57
sA, sB, sM0, sCNT = 40, 41, 42, 43
sE0, sE1, sE2 = 44, 45, 46
MF32 = 'v_mfma_f32_16x16x32_bf16'

def load_srd(k, sreg, karg):
    k(f's_load_dwordx2 {s(sreg,2)}, s[0:1], {karg}')
def fin_srd(k, sreg, nbytes):
    k(f's_and_b32 {s(sreg+1)}, {s(sreg+1)}, 0xffff')
    k(f's_mov_b32 {s(sreg+2)}, {nbytes}')
    k(f's_mov_b32 {s(sreg+3)}, 0x20000')

def bits(k, dst, L, spec, tmp, first=True):
    for i, (pos, width, sh) in enumerate(spec):
        k(f'v_bfe_u32 v{tmp}, v{L}, {pos}, {width}')
        if i == 0 and first:
            k(f'v_lshlrev_b32 v{dst}, {sh}, v{tmp}')
        else:
            k(f'v_lshl_add_u32 v{dst}, v{tmp}, {sh}, v{dst}')

def rbf(k, r, tmp=None):
    k(f'v_cvt_pk_bf16_f32 v{r}, v{r}, v{r}')
    k(f'v_lshlrev_b32 v{r}, 16, v{r}')

def rbf2(k, r0, r1):
    k(f'v_cvt_pk_bf16_f32 v{r1}, v{r0}, v{r1}')
    k(f'v_lshlrev_b32 v{r0}, 16, v{r1}')
    k(f'v_and_b32 v{r1}, 0xffff0000, v{r1}')

def unpack(k, src, lo, hi):
    k(f'v_lshlrev_b32 v{lo}, 16, v{src}')
    k(f'v_and_b32 v{hi}, 0xffff0000, v{src}')

LOG2E = 0x3fb8aa3b

def silu(k, r, t):
    k(f'v_mul_f32 v{t}, 0xbfb8aa3b, v{r}')
    k(f'v_exp_f32 v{t}, v{t}')
    k(f'v_add_f32 v{t}, 1.0, v{t}')
    k(f'v_rcp_f32 v{t}, v{t}')
    k(f'v_mul_f32 v{r}, v{r}, v{t}')

def emit_mod(k, stask, sc=''):
    T, OFF, C0, ACC, W = 1, 2, 4, 16, 32
    k(f'v_lshrrev_b32 v3, 2, v0')
    k(f'v_mul_u32_u24 v{OFF}, {10 * 7680}, v3')
    k(f'v_and_b32 v{T}, 3, v0')
    k(f'v_lshl_add_u32 v{OFF}, v{T}, 4, v{OFF}')
    k(f's_lshl_b32 {s(sT0)}, {s(stask)}, 6')
    for i in range(10):
        k(f'buffer_load_dwordx4 {v(W+4*i,4)}, v{OFF}, {s(S_B0,4)}, {s(sT0)} offen')
        if i < 9:
            k(f's_add_u32 {s(sT0)}, {s(sT0)}, 7680')
    k(f'v_mul_u32_u24 v{T}, 20, v3')
    for i in range(5):
        k(f'buffer_load_dword v{24+i}, v{T}, {s(S_B1,4)}, 0 offen offset:{4*i}')
    k('s_waitcnt vmcnt(0)')
    for i in range(5):
        unpack(k, 24 + i, C0 + 2 * i, C0 + 2 * i + 1)
    for i in range(10):
        silu(k, C0 + i, T)
    for i in range(0, 10, 2):
        rbf2(k, C0 + i, C0 + i + 1)
    for i in range(10):
        for d in range(4):
            unpack(k, W + 4 * i + d, 24, 25)
            if i == 0:
                k(f'v_mul_f32 v{ACC+2*d}, v{C0}, v24')
                k(f'v_mul_f32 v{ACC+2*d+1}, v{C0}, v25')
            else:
                k(f'v_fmac_f32 v{ACC+2*d}, v{C0+i}, v24')
                k(f'v_fmac_f32 v{ACC+2*d+1}, v{C0+i}, v25')
    k(f'v_lshlrev_b32 v{T}, 5, v0')
    k(f'ds_write_b128 v{T}, {v(ACC,4)}')
    k(f'ds_write_b128 v{T}, {v(ACC+4,4)} offset:16')
    k('s_waitcnt lgkmcnt(0)')
    k('s_barrier')
    k(f'v_and_b32 v{T}, 31, v0')
    k(f'v_lshlrev_b32 v{T}, 2, v{T}')
    k(f'v_lshrrev_b32 v3, 5, v0')
    k(f'v_lshl_add_u32 v3, v3, 10, v{T}')
    for i in range(8):
        k(f'ds_read_b32 v{ACC+i}, v3 offset:{128*i}')
    k('s_waitcnt lgkmcnt(0)')
    for i in range(1, 8):
        k(f'v_add_f32 v{ACC}, v{ACC}, v{ACC+i}')
    k(f'v_lshlrev_b32 v3, 2, v0')
    k(f'ds_write_b32 v3, v{ACC} offset:8192')
    k('s_waitcnt lgkmcnt(0)')
    k('s_barrier')
    for i in range(8):
        k(f'ds_read_b32 v{ACC+i}, v{T} offset:{8192 + 128*i}')
    k('s_waitcnt lgkmcnt(0)')
    for i in range(1, 8):
        k(f'v_add_f32 v{ACC}, v{ACC}, v{ACC+i}')
    rbf(k, ACC)
    k(f'v_add_f32 v{ACC+1}, 1.0, v{ACC}')
    rbf(k, ACC + 1)
    k(f's_sub_u32 {s(sT0)}, {s(stask)}, 20')
    k(f's_cmp_lt_u32 {s(sT0)}, 20')
    k(f's_cselect_b32 {s(sT1)}, 1, 0')
    k(f's_sub_u32 {s(sT0)}, {s(stask)}, 80')
    k(f's_cmp_lt_u32 {s(sT0)}, 20')
    k(f's_cselect_b32 {s(sT1)}, 1, {s(sT1)}')
    k(f's_cmp_eq_u32 {s(sT1)}, 1')
    k(f's_cselect_b64 vcc, -1, 0')
    k(f'v_cndmask_b32 v{ACC}, v{ACC}, v{ACC+1}, vcc')
    k(f's_lshl_b32 {s(sT0)}, {s(stask)}, 7')
    k(f's_add_u32 {s(sT0)}, {s(sT0)}, {MOD}')
    k(f'v_cmp_gt_u32 vcc, 32, v0')
    k(f's_and_saveexec_b64 {s(sT2,2)}, vcc')
    skip = k.newlabel('modskip')
    k(f's_cbranch_execz {skip}')
    k(f'buffer_store_dword v{ACC}, v{T}, {s(S_WS,4)}, {s(sT0)} offen{sc}')
    k.label(skip)
    k('s_mov_b64 exec, -1')

def row16_sum(k, r):
    for sh in (1, 2, 4, 8):
        k(f'v_add_f32 v{r}, v{r}, v{r} row_ror:{sh}')

def emit_ln1(k, srow, pre_wait):
    RO, CO, TO, T = 1, 2, 3, 4
    XR, V, SC, SH = 8, 32, 72, 112
    k(f'v_lshrrev_b32 v{T}, 4, v0')
    k(f'v_add_u32 v{T}, {s(srow)}, v{T}')
    k(f'v_mul_u32_u24 v{RO}, 1280, v{T}')
    k(f'v_and_b32 v5, 15, v0')
    k(f'v_lshl_add_u32 v{RO}, v5, 4, v{RO}')
    k(f'v_lshlrev_b32 v{CO}, 5, v5')
    k(f'v_lshrrev_b32 v6, 4, v{T}')
    k(f'v_mul_u32_u24 v{TO}, 20480, v6')
    k(f'v_and_b32 v6, 15, v{T}')
    k(f'v_lshl_add_u32 v{TO}, v6, 4, v{TO}')
    bits(k, TO, 0, [(0, 2, 8), (2, 2, 10)], 6, first=False)
    for i in range(5):
        k(f'buffer_load_dwordx4 {v(XR+4*i,4)}, v{RO}, {s(S_X,4)}, 0 offen offset:{256*i}')
    k('s_waitcnt vmcnt(0)')
    for i in range(20):
        unpack(k, XR + i, V + 2 * i, V + 2 * i + 1)
    MU, VAR, D0 = 5, 6, 28
    k(f'v_pk_add_f32 {v(D0,2)}, {v(V,2)}, {v(V+2,2)}')
    for i in range(4, 40, 2):
        k(f'v_pk_add_f32 {v(D0,2)}, {v(D0,2)}, {v(V+i,2)}')
    k(f'v_add_f32 v{MU}, v{D0}, v{D0+1}')
    row16_sum(k, MU)
    k(f'v_mul_f32 v{MU}, 0x3acccccd, v{MU}')
    k(f'v_mov_b32 v{VAR}, 0')
    for i in range(40):
        k(f'v_sub_f32 v{D0 + (i&1)}, v{V+i}, v{MU}')
        k(f'v_fmac_f32 v{VAR}, v{D0 + (i&1)}, v{D0 + (i&1)}')
    row16_sum(k, VAR)
    k(f'v_mul_f32 v{VAR}, 0x3acccccd, v{VAR}')
    rbf2(k, MU, VAR)
    k(f'v_add_f32 v{VAR}, 0x3727c5ac, v{VAR}')
    rbf(k, VAR)
    k(f'v_sqrt_f32 v{VAR}, v{VAR}')
    rbf(k, VAR)
    k(f'v_rcp_f32 v{D0}, v{VAR}')
    k(f'v_mov_b32 v{D0+2}, v{MU}')
    for i in range(0, 40, 2):
        k(f'v_pk_add_f32 {v(V+i,2)}, {v(V+i,2)}, {v(D0+2,2)} op_sel_hi:[1,0] neg_lo:[0,1] neg_hi:[0,1]')
        rbf2(k, V + i, V + i + 1)
        k(f'v_pk_mul_f32 {v(V+i,2)}, {v(V+i,2)}, {v(D0,2)} op_sel_hi:[1,0]')
        rbf2(k, V + i, V + i + 1)
    pre_wait()
    k(f's_mov_b32 {s(sT0)}, {MOD}')
    k(f's_mov_b32 {s(sT2)}, {MOD + 2560}')
    for i in range(5):
        for h in range(2):
            k(f'buffer_load_dwordx4 {v(SC+8*i+4*h,4)}, v{CO}, {s(S_WS,4)}, {s(sT2)} offen offset:{512*i+16*h} sc1')
            k(f'buffer_load_dwordx4 {v(SH+8*i+4*h,4)}, v{CO}, {s(S_WS,4)}, {s(sT0)} offen offset:{512*i+16*h} sc1')
    OUT = 152
    k(f's_mov_b32 {s(sT1)}, {H}')
    for i in range(5):
        k(f's_waitcnt vmcnt({16 - 3*i})')
        for j in range(8 * i, 8 * i + 8, 2):
            k(f'v_pk_mul_f32 {v(V+j,2)}, {v(V+j,2)}, {v(SC+j,2)}')
            rbf2(k, V + j, V + j + 1)
            k(f'v_pk_add_f32 {v(V+j,2)}, {v(V+j,2)}, {v(SH+j,2)}')
            k(f'v_cvt_pk_bf16_f32 v{OUT+j//2}, v{V+j}, v{V+j+1}')
        k(f'buffer_store_dwordx4 {v(OUT+4*i,4)}, v{TO}, {s(S_WS,4)}, {s(sT1)} offen sc1')
        k(f's_add_u32 {s(sT1)}, {s(sT1)}, 4096')

def b_lane_setup(k, dst, rd0, ldb, perm, T, nbase):
    if perm:
        k(f'v_lshrrev_b32 v{dst}, 2, v0')
    else:
        bits(k, dst, 0, [(4, 2, 3), (2, 2, 0)], T)
    k(f's_mov_b32 {s(sT1)}, {ldb}')
    k(f'v_mul_lo_u32 v{dst}, v{dst}, {s(sT1)}')
    k(f'v_lshrrev_b32 v{T}, 3, v0')
    k(f'v_and_b32 v{T}, 2, v{T}')
    k(f'v_xor_b32 v{T}, v{T}, v0')
    k(f'v_and_b32 v{T}, 3, v{T}')
    k(f'v_lshl_add_u32 v{dst}, v{T}, 4, v{dst}')
    bits(k, rd0, 0, [(2, 4, 6), (4, 1, 5), (0, 2, 3)], T)
    k(f'v_xor_b32 v{rd0+1}, 32, v{rd0}')
    for b in range(1, nbase):
        k(f'v_add_u32 v{rd0+2*b}, {b << 16}, v{rd0}')
        k(f'v_add_u32 v{rd0+2*b+1}, {b << 16}, v{rd0+1}')

def emit_gemm(k, RT, CT, NK, NS, ldb, a_rt_stride, perm, trans, srd_of, name, ldsc='', gcol=None, pre_wait=None, overlap=None, early=False):
    assert NK % NS == 0 and CT % 4 == 0
    NPW = CT // 4
    vAO, T, vRD, vBO = 1, 2, 4, 8
    AB = 16
    BF = AB + NS * RT * 4
    NF = 8
    LA = 6
    assert (NS * CT) % NF == 0
    ACC = 128
    assert BF + 4 * NF <= ACC and ACC + RT * CT * 4 <= 256
    STG = CT * 1024
    assert NS * STG <= 131072
    hrow = 16 if perm else 4
    k(f'v_lshlrev_b32 v{vAO}, 4, v0')
    b_lane_setup(k, vBO, vRD, ldb, perm, T, 2)
    k(f's_and_b32 {s(sT0)}, {s(sW)}, 1')
    k(f's_mul_i32 {s(sT0)}, {s(sT0)}, {hrow * ldb}')
    k(f's_lshr_b32 {s(sT1)}, {s(sW)}, 1')
    k(f's_lshl_b32 {s(sT1)}, {s(sT1)}, 6')
    k(f's_add_u32 {s(sT0)}, {s(sT0)}, {s(sT1)}')
    k(f'v_add_u32 v{vBO}, {s(sT0)}, v{vBO}')
    gcol = gcol or (lambda i: 128 * i)
    for i in range(NPW - 1, -1, -1):
        k(f'v_add_u32 v{vBO+i}, {gcol(i)}, v{vBO}')
    k(f's_lshl_b32 {s(sM0)}, {s(sW)}, 10')
    def b_ops(slot):
        ops = []
        for i in range(NPW):
            ops.append(f's_add_u32 m0, {s(sM0)}, {slot*STG + i*4096}')
            ops.append(f'buffer_load_dwordx4 v{vBO+i}, {s(srd_of(i),4)}, {s(sB)} offen lds')
        ops.append(f's_add_u32 {s(sB)}, {s(sB)}, {32*ldb}')
        return ops
    def a_ops(slot):
        ops = []
        for rt in range(RT):
            if rt == 0:
                ops.append(f'buffer_load_dwordx4 {v(AB+(slot*RT)*4,4)}, v{vAO}, {s(S_WS,4)}, {s(sA)} offen{ldsc}')
            else:
                ops.append(f's_add_u32 {s(sT1)}, {s(sA)}, {rt*a_rt_stride}')
                ops.append(f'buffer_load_dwordx4 {v(AB+(slot*RT+rt)*4,4)}, v{vAO}, {s(S_WS,4)}, {s(sT1)} offen{ldsc}')
        ops.append(f's_add_u32 {s(sA)}, {s(sA)}, 1024')
        return ops
    vm = []
    def emit(ops, tag):
        for op in ops:
            k(op)
            if op.startswith('buffer_'):
                vm.append(tag)
    def vwait(tag):
        idx = [i for i, t in enumerate(vm) if t <= tag]
        n = len(vm) - 1 - max(idx) if idx else len(vm)
        k(f's_waitcnt vmcnt({n})')
        if idx:
            del vm[:max(idx) + 1]
        return n
    for sl in range(NS - 1):
        emit(b_ops(sl), sl)
    if overlap and early:
        overlap(len(vm))
    if pre_wait:
        pre_wait()
    for sl in range(NS - 1):
        emit(a_ops(sl), sl)
    if overlap and not early:
        overlap(len(vm))
    def brd(slot, c, n):
        for hh in range(2):
            o_ = slot * STG + (c >> 1) * 2048 + hh * 1024
            k(f'ds_read_b64_tr_b16 {v(BF + 4*(n%NF) + 2*hh, 2)}, v{vRD + 2*(o_ >> 16) + (c & 1)} offset:{o_ & 0xffff}')
    vwait(0)
    k('s_barrier')
    for n in range(LA):
        brd(0, n, n)
    def body(base, steady):
        n = 0
        for sl in range(NS):
            ks = base + sl
            if steady:
                k(f's_waitcnt vmcnt({(NS-3)*(NPW+RT)})')
            else:
                vwait(ks + 1)
            k('s_barrier')
            ops = b_ops((sl + NS - 1) % NS) + a_ops((sl + NS - 1) % NS)
            for c in range(CT):
                if c % 2 == 0:
                    k(f's_waitcnt lgkmcnt({2*(LA-2)})')
                for rt in range(RT):
                    acc = v(ACC + (rt * CT + c) * 4, 4)
                    A_, B_ = v(AB + (sl * RT + rt) * 4, 4), v(BF + 4 * (n % NF), 4)
                    if trans[c]:
                        A_, B_ = B_, A_
                    k(f'{MF32} {acc}, {A_}, {B_}, {"0" if ks == 0 else acc}')
                    if rt == 0:
                        c2 = c + LA
                        brd(sl if c2 < CT else (sl + 1) % NS, c2 % CT, n + LA)
                    elif ops:
                        emit(ops[:2], ks + NS - 1); del ops[:2]
                n += 1
            assert not ops
    body(0, False)
    k(f's_mov_b32 {s(sCNT)}, {NK // NS - 1}')
    loop = f'{name}_loop'
    k.raw('.p2align 3')
    k.label(loop)
    body(NS, True)
    k(f's_sub_u32 {s(sCNT)}, {s(sCNT)}, 1')
    k(f's_cmp_lg_u32 {s(sCNT)}, 0')
    k(f's_cbranch_scc1 {loop}')
    k('s_waitcnt vmcnt(0) lgkmcnt(0)')
    k('s_barrier')

def emit_burst_b(k, CT, NK, ldb, perm, srd, sBo, lds0):
    STG = CT * 1024
    NKW = (NK + 3) // 4
    assert lds0 + NKW * 4 * STG <= 163840
    hrow = 16 if perm else 4
    b_lane_setup(k, 3, 4, ldb, perm, 2, 1)
    k(f's_mul_i32 {s(sT0)}, {s(sW)}, {32*ldb}')
    k(f's_add_u32 {s(sBo)}, {s(sBo)}, {s(sT0)}')
    k(f's_mul_i32 {s(sM0)}, {s(sW)}, {STG}')
    for i in range(NKW):
        for d in range(CT):
            k(f's_add_u32 m0, {s(sM0)}, {lds0 + i*4*STG + d*1024}')
            k(f's_add_u32 {s(sT0)}, {s(sBo)}, {i*128*ldb + (d & 1)*hrow*ldb + (d >> 1)*64}')
            k(f'buffer_load_dwordx4 v3, {s(srd,4)}, {s(sT0)} offen lds')

def emit_b_convert(k, CT, NK, lds0):
    STG = CT * 1024
    NKW = (NK + 3) // 4
    b_lane_setup(k, 3, 4, 16, True, 2, 1)
    k(f's_mul_i32 {s(sT0)}, {s(sW)}, {STG}')
    k(f's_add_u32 {s(sT0)}, {s(sT0)}, {lds0}')
    k(f'v_add_u32 v4, {s(sT0)}, v4')
    k(f'v_add_u32 v5, {s(sT0)}, v5')
    k('v_lshlrev_b32 v6, 4, v0')
    k(f'v_add_u32 v6, {s(sT0)}, v6')
    k(f's_mov_b32 {s(sCNT)}, {NKW}')
    top = k.newlabel('cv')
    k.label(top)
    for c in range(CT):
        for hh in range(2):
            k(f'ds_read_b64_tr_b16 {v(16+4*c+2*hh,2)}, v{4+(c&1)} offset:{(c>>1)*2048 + hh*1024}')
        if c % 4 == 3:
            k('s_waitcnt lgkmcnt(0)')
    k('s_waitcnt lgkmcnt(0)')
    for c in range(CT):
        k(f'ds_write_b128 v6, {v(16+4*c,4)} offset:{c*1024}')
    for r in (4, 5, 6):
        k(f'v_add_u32 v{r}, {4*STG}, v{r}')
    k('s_waitcnt lgkmcnt(0)')
    k(f's_sub_u32 {s(sCNT)}, {s(sCNT)}, 1'); k(f's_cmp_lg_u32 {s(sCNT)}, 0'); k(f's_cbranch_scc1 {top}')

def emit_burst(k, CT, CW, NK, pre_wait, s_ldsoff=None, lds0=0, mid=None):
    vAO, vRD = 1, 4
    AB = 16
    NF = 8
    BF = AB + NK * 4
    ACC = BF + 4 * NF
    assert ACC + 4 * CW <= 256
    STG = CT * 1024
    k(f'v_lshlrev_b32 v{vAO}, 4, v0')
    if s_ldsoff is not None:
        k(f'v_add_u32 v{vRD}, {s(s_ldsoff)}, v{vAO}')
    else:
        k(f'v_mov_b32 v{vRD}, v{vAO}')
    k(f'v_add_u32 v{vRD+1}, 0x10000, v{vRD}')
    k(f'v_add_u32 v{vRD+2}, 0x20000, v{vRD}')
    LA = 6
    TOT = NK * CW
    def brd(n):
        ks, c = divmod(n, CW)
        o_ = lds0 + ks * STG + c * 1024
        k(f'ds_read_b128 {v(BF + 4*(n%NF), 4)}, v{vRD + (o_ >> 16)} offset:{o_ & 0xffff}')
    for n in range(LA):
        brd(n)
    if mid:
        mid()
    pre_wait()
    for ks in range(NK):
        if ks and ks % 4 == 0:
            k(f's_add_u32 {s(sA)}, {s(sA)}, 4096')
        k(f'buffer_load_dwordx4 {v(AB+4*ks,4)}, v{vAO}, {s(S_WS,4)}, {s(sA)} offen offset:{(ks&3)*1024} sc1')
    assert CW % 2 == 0
    for n in range(TOT):
        ks, c = divmod(n, CW)
        if c % 2 == 0:
            ahead = max(min(LA - 2, TOT - 2 - n), 0)
            if c == 0:
                k(f's_waitcnt vmcnt({NK-1-ks}) lgkmcnt({ahead})')
            else:
                k(f's_waitcnt lgkmcnt({ahead})')
        acc = v(ACC + 4 * c, 4)
        k(f'{MF32} {acc}, {v(BF + 4*(n%NF),4)}, {v(AB+4*ks,4)}, {"0" if ks == 0 else acc}')
        if n + LA < TOT:
            brd(n + LA)
    return ACC

def acc_read(k, dst, accidx, n=4):
    for i in range(n):
        k(f'v_accvgpr_read_b32 v{dst+i}, a{accidx+i}')

def emit_qkv_main(k, kind, sRB, sHD, sOUT, name, pre_wait, overlap, RT=2, NS=5):
    isq = kind == 'q'
    k(f's_lshl_b32 {s(sE1)}, {s(sRB)}, 2')
    k(f's_add_u32 {s(sE1)}, {s(sE1)}, {s(sW)}')
    k(f's_mul_i32 {s(sA)}, {s(sE1)}, {RT*20480}')
    k(f's_add_u32 {s(sA)}, {s(sA)}, {H}')
    k(f's_lshl_b32 {s(sB)}, {s(sHD)}, {9 if isq else 8}')
    if isq:
        emit_gemm(k, RT, 16, 20, NS, 8192, 20480, False, [True] * 16, lambda i: S_B0, name, ' sc1', pre_wait=pre_wait, overlap=overlap, early=True)
    elif kind == 'kv':
        emit_gemm(k, RT, 16, 20, NS, 8192, 20480, False, [True] * 8 + [False] * 8, lambda i: S_B0 if i < 2 else S_B1, name, ' sc1',
                  gcol=lambda i: 128 * (i & 1), pre_wait=pre_wait, overlap=overlap)
    else:
        emit_gemm(k, RT, 8, 20, 10, 8192, 20480, False, [kind == 'k'] * 8, lambda i: S_B0, name, ' sc1', pre_wait=pre_wait, overlap=overlap, early=True)
    k(f's_lshl_b32 {s(sOUT)}, {s(sE1)}, {18 if isq else 19}')
    k(f's_lshl_b32 {s(sT1)}, {s(sHD)}, 14')
    k(f's_add_u32 {s(sOUT)}, {s(sOUT)}, {s(sT1)}')
    k(f's_add_u32 {s(sOUT)}, {s(sOUT)}, {QT if isq else KV}')

def emit_qkv_epi(k, kind, sOUT):
    CT, ACC = (16 if kind in ('q', 'kv') else 8), 128
    n = 0; cur = 0
    def piece(t0, t1, off):
        nonlocal n, cur
        R = 88 + 4 * (n % 10); n += 1
        for i, t in enumerate((t0, t1)):
            k(f'v_cvt_pk_bf16_f32 v{R+2*i}, v{ACC+4*t}, v{ACC+4*t+1}')
            k(f'v_cvt_pk_bf16_f32 v{R+2*i+1}, v{ACC+4*t+2}, v{ACC+4*t+3}')
        if off & ~0xfff != cur:
            k(f's_add_u32 {s(sOUT)}, {s(sOUT)}, {(off & ~0xfff) - cur}'); cur = off & ~0xfff
        k(f'buffer_store_dwordx4 {v(R,4)}, v1, {s(S_WS,4)}, {s(sOUT)} offen offset:{off & 0xfff} sc1')
    def ktiles(c0, base):
        for kt in range(2):
            for j in range(4):
                piece(kt * CT + c0 + 2 * j, kt * CT + c0 + 2 * j + 1, base + kt * 4096 + j * 1024)
    def vtiles(c0):
        for et in range(8):
            piece(c0 + et, CT + c0 + et, 8192 + et * 1024)
    if kind == 'q':
        ktiles(0, 0); ktiles(8, 8192)
    if kind in ('k', 'kv'):
        ktiles(0, 0)
    if kind in ('v', 'kv'):
        vtiles(CT - 8)
    if kind in ('k', 'kv'):
        k(f's_sub_u32 {s(sT0)}, {s(sOUT)}, {KV + cur}')
        k(f's_lshr_b32 {s(sT0)}, {s(sT0)}, 2')
        k(f's_add_u32 {s(sT0)}, {s(sT0)}, {KVM}')
        k(f'v_mov_b64 {v(ACC,2)}, -1')
        k(f'v_mov_b64 {v(ACC+2,2)}, -1')
        for i in range(4):
            k(f'buffer_store_dwordx4 {v(ACC,4)}, v1, {s(S_WS,4)}, {s(sT0)} offen offset:{1024*i} sc1')

def emit_att_setup(k):
    k('v_lshlrev_b32 v1, 4, v0')
    bits(k, 2, 0, [(2, 4, 4), (0, 1, 3)], 4)
    bits(k, 3, 0, [(0, 4, 4), (4, 1, 3), (5, 1, 8)], 4)
    k(f's_lshl_b32 {s(sT0)}, {s(sW)}, 11')
    k(f'v_add_u32 v2, {s(sT0)}, v2')
    k(f'v_add_u32 v3, {s(sT0)}, v3')
    k('v_and_b32 v4, 15, v0')
    k('v_lshrrev_b32 v5, 4, v0')
    k('v_lshlrev_b32 v5, 2, v5')
    for r in range(4):
        k(f'v_add_u32 v6, {r}, v5')
        k(f'v_cmp_le_u32 {s(60+2*r,2)}, v6, v4')
    k(f's_mov_b64 {s(68,2)}, 0xffffffff')
    k(f's_not_b64 {s(58,2)}, {s(68,2)}')

def emit_att_task(k, sSEG, sHD, wait_kvm):
    Q, K_, V_, KMm, X, S, P, O = 8, 40, 72, 104, 120, 136, 160, 8
    k(f's_lshl_b32 {s(sT0)}, {s(sSEG)}, 5')
    k(f's_add_u32 {s(sT0)}, {s(sT0)}, {s(sHD)}')
    k(f's_lshl_b32 {s(sT1)}, {s(sT0)}, 13')
    k(f's_add_u32 {s(sT1)}, {s(sT1)}, {QT}')
    k(f's_lshl_b32 {s(sT2)}, {s(sT0)}, 14')
    k(f's_add_u32 {s(sT2)}, {s(sT2)}, {KV}')
    k(f's_lshl_b32 {s(sT3)}, {s(sT0)}, 12')
    k(f's_add_u32 {s(sT3)}, {s(sT3)}, {KVM}')
    def ld8(dst, so):
        for i in range(8):
            if i == 4:
                k(f's_add_u32 {s(so)}, {s(so)}, 4096')
            k(f'buffer_load_dwordx4 {v(dst+4*i,4)}, v1, {s(S_WS,4)}, {s(so)} offen offset:{(i&3)*1024} sc1')
    ld8(Q, sT1); ld8(K_, sT2)
    k(f's_add_u32 {s(sT2)}, {s(sT2)}, 4096')
    ld8(V_, sT2)
    k(f'v_mov_b32 v6, 0xce6e6b28')
    k(f's_mov_b32 {s(sE0)}, 0x3db504f3')
    k(f's_mov_b32 {s(sE1)}, {LOG2E}')
    def scores(qt, t):
        for j in range(4):
            A_ = v(KMm + 4 * j, 4) if t == 0 else v(K_ + 16 * (t - 1) + 4 * j, 4)
            D = v(S + 12 * qt + 4 * t, 4)
            k(f'{MF32} {D}, {A_}, {v(Q+16*qt+4*j,4)}, {"0" if j == 0 else D}')
    def rnd(regs):
        for i in range(0, len(regs), 2):
            rbf2(k, regs[i], regs[i + 1])
            k(f'v_mul_f32 v{regs[i]}, {s(sE0)}, v{regs[i]}')
            k(f'v_mul_f32 v{regs[i+1]}, {s(sE0)}, v{regs[i+1]}')
            rbf2(k, regs[i], regs[i + 1])
    def vmax(M, regs, first):
        rest = list(regs)
        if first:
            k(f'v_max3_f32 v{M}, v{rest[0]}, v{rest[1]}, v{rest[2]}'); rest = rest[3:]
        while rest:
            if len(rest) >= 2:
                k(f'v_max3_f32 v{M}, v{M}, v{rest[0]}, v{rest[1]}'); rest = rest[2:]
            else:
                k(f'v_max_f32 v{M}, v{M}, v{rest[0]}'); rest = rest[1:]
    k('s_waitcnt vmcnt(8)')
    scores(0, 1); scores(1, 1); scores(1, 2)
    MX = (176, 177)
    tok = [list(range(S + 4, S + 8)), list(range(S + 16, S + 24))]
    for qt in range(2):
        rnd(tok[qt])
        for r in range(4):
            k(f'v_cndmask_b32 v{tok[qt][-4+r]}, v6, v{tok[qt][-4+r]}, {s(60+2*r,2)}')
        vmax(MX[qt], tok[qt], True)
    k(f'v_mov_b64 {v(P+2,2)}, 0')
    wait_kvm(X)
    for i in range(4):
        k(f'ds_write_b64 v3, {v(X+4*i+2,2)} offset:{512*i}')
    k('s_waitcnt lgkmcnt(0)')
    for j in range(4):
        for hh in range(2):
            k(f'ds_read_b64_tr_b16 {v(KMm+4*j+2*hh,2)}, v2 offset:{j*512+hh*256}')
    k('s_waitcnt lgkmcnt(0)')
    scores(0, 0); scores(1, 0)
    for qt in range(2):
        mem = list(range(S + 12 * qt, S + 12 * qt + 4))
        regs = mem + tok[qt]
        M, M2 = MX[qt], 5
        rnd(mem)
        vmax(M, mem, False)
        for sw in ('v_permlane16_swap_b32', 'v_permlane32_swap_b32'):
            k(f'v_mov_b32 v{M2}, v{M}')
            k(f'{sw} v{M}, v{M2}')
            k(f'v_max_f32 v{M}, v{M}, v{M2}')
        for r in regs:
            k(f'v_sub_f32 v{r}, v{r}, v{M}')
        for r in regs:
            k(f'v_mul_f32 v{r}, {s(sE1)}, v{r}')
        for r in regs:
            k(f'v_exp_f32 v{r}, v{r}')
        k(f'v_add_f32 v{M}, v{mem[0]}, v{mem[1]}')
        k(f'v_add_f32 v{M2}, v{mem[2]}, v{mem[3]}')
        k(f'v_add_f32 v{M}, v{M}, v{M2}')
        k(f'v_cndmask_b32 v{M}, 0, v{M}, {s(68,2)}')
        for r in tok[qt]:
            k(f'v_add_f32 v{M}, v{M}, v{r}')
        for sw in ('v_permlane16_swap_b32', 'v_permlane32_swap_b32'):
            k(f'v_mov_b32 v{M2}, v{M}')
            k(f'{sw} v{M}, v{M2}')
            k(f'v_add_f32 v{M}, v{M}, v{M2}')
        k(f'v_rcp_f32 v{M}, v{M}')
        for r in regs:
            k(f'v_mul_f32 v{r}, v{r}, v{M}')
        for i in range(2):
            k(f'v_cvt_pk_bf16_f32 v{mem[i]}, v{mem[2*i]}, v{mem[2*i+1]}')
        for i in range(2):
            k(f'v_cndmask_b32 v{P+8*qt+4+i}, 0, v{mem[i]}, {s(68,2)}')
            k(f'v_cndmask_b32 v{P+8*qt+6+i}, 0, v{mem[i]}, {s(58,2)}')
        for i in range(len(tok[qt]) // 2):
            k(f'v_cvt_pk_bf16_f32 v{P+8*qt+i}, v{tok[qt][2*i]}, v{tok[qt][2*i+1]}')
    k(f's_lshl_b32 {s(sT0)}, {s(sSEG)}, 18')
    k(f's_lshl_b32 {s(sT1)}, {s(sHD)}, 12')
    k(f's_add_u32 {s(sT0)}, {s(sT0)}, {s(sT1)}')
    k(f's_add_u32 {s(sT0)}, {s(sT0)}, {OO}')
    for qt in range(2):
        for et in range(8):
            D = v(O + 32 * qt + 4 * et, 4)
            k(f'{MF32} {D}, {v(V_+4*et,4)}, {v(P+8*qt,4)}, 0')
        for et in range(8):
            D = v(O + 32 * qt + 4 * et, 4)
            k(f'v_mfma_f32_16x16x16_bf16 {D}, {v(X+4*(et>>1),2)}, {v(P+8*qt+4+2*(et&1),2)}, {D}')
    for qt in range(2):
        for j in range(4):
            R = S + 4 * ((4 * qt + j) % 6)
            for i in range(4):
                k(f'v_cvt_pk_bf16_f32 v{R+i}, v{O+32*qt+8*j+2*i}, v{O+32*qt+8*j+2*i+1}')
            k(f'buffer_store_dwordx4 {v(R,4)}, v1, {s(S_WS,4)}, {s(sT0)} offen offset:{j*1024} sc1')
        if qt == 0:
            k(f's_add_u32 {s(sT0)}, {s(sT0)}, {128*1024}')

def emit_wo_task(k, sSEG, sCB, sSP, pre_wait):
    CT, CW, NK = 10, 6, 16
    k(f's_lshl_b32 {s(sE1)}, {s(sSEG)}, 1')
    k(f's_and_b32 {s(sT0)}, {s(sW)}, 1')
    k(f's_add_u32 {s(sE1)}, {s(sE1)}, {s(sT0)}')
    k(f's_lshl_b32 {s(sA)}, {s(sE1)}, 17')
    k(f's_mul_i32 {s(sT1)}, {s(sSP)}, {NK*1024}')
    k(f's_add_u32 {s(sA)}, {s(sA)}, {s(sT1)}')
    k(f's_add_u32 {s(sA)}, {s(sA)}, {OO}')
    k(f's_lshr_b32 {s(sE2)}, {s(sW)}, 1')
    k(f's_lshl_b32 {s(sE2)}, {s(sE2)}, 12')
    k(f's_mul_i32 {s(sE0)}, {s(sSP)}, {2048*2560}')
    k(f's_mul_i32 {s(sT1)}, {s(sCB)}, {CT*256}')
    k(f's_add_u32 {s(sE0)}, {s(sE0)}, {s(sT1)}')
    k(f's_lshr_b32 {s(sT1)}, {s(sE2)}, 2')
    k(f's_add_u32 {s(sE0)}, {s(sE0)}, {s(sT1)}')
    k(f's_mul_i32 {s(sT1)}, {s(sE1)}, {16*2560}')
    k(f's_add_u32 {s(sE0)}, {s(sE0)}, {s(sT1)}')
    k(f's_add_u32 {s(sE0)}, {s(sE0)}, {PART}')
    def mid():
        k('v_bfe_u32 v12, v0, 2, 2')
        k('v_mul_u32_u24 v12, 10240, v12')
        bits(k, 12, 0, [(4, 2, 6), (0, 2, 4)], 2, first=False)
    ACC = emit_burst(k, CT, CW, NK, pre_wait, s_ldsoff=sE2, mid=mid)
    for c in range(1, 5):
        k(f'buffer_store_dwordx4 {v(ACC+4*c,4)}, v12, {s(S_WS,4)}, {s(sE0)} offen offset:{256*c} sc1')
    hi, dn = k.newlabel('woh'), k.newlabel('wod')
    k(f's_cmp_lg_u32 {s(sE2)}, 0'); k(f's_cbranch_scc1 {hi}')
    k(f'buffer_store_dwordx4 {v(ACC,4)}, v12, {s(S_WS,4)}, {s(sE0)} offen sc1')
    k(f's_branch {dn}')
    k.label(hi)
    k(f'buffer_store_dwordx4 {v(ACC+20,4)}, v12, {s(S_WS,4)}, {s(sE0)} offen offset:{256*5} sc1')
    k.label(dn)

def emit_ff1_task(k, sG, sCB, CT, pre_wait):
    k(f's_lshl_b32 {s(sE1)}, {s(sG)}, 2')
    k(f's_add_u32 {s(sE1)}, {s(sE1)}, {s(sW)}')
    k(f's_mul_i32 {s(sA)}, {s(sE1)}, 20480')
    k(f's_add_u32 {s(sA)}, {s(sA)}, {H2}')
    k(f's_mul_i32 {s(sE0)}, {s(sE1)}, {54*1024}')
    k(f's_mul_i32 {s(sT1)}, {s(sCB)}, {CT//2*1024}')
    k(f's_add_u32 {s(sE0)}, {s(sE0)}, {s(sT1)}')
    k(f's_add_u32 {s(sE0)}, {s(sE0)}, {FF}')
    ACC = emit_burst(k, CT, CT, 20, pre_wait)
    for j in range(CT // 2):
        R = ACC + 8 * j
        for i in range(0, 8, 2):
            rbf2(k, R + i, R + i + 1)
        TT = 16
        for i in range(8):
            k(f'v_mul_f32 v{TT+i}, 0xbfb8aa3b, v{R+i}')
        for i in range(8):
            k(f'v_exp_f32 v{TT+i}, v{TT+i}')
        for i in range(8):
            k(f'v_add_f32 v{TT+i}, 1.0, v{TT+i}')
        for i in range(8):
            k(f'v_rcp_f32 v{TT+i}, v{TT+i}')
        for i in range(0, 8, 2):
            k(f'v_pk_mul_f32 {v(R+i,2)}, {v(R+i,2)}, {v(TT+i,2)}')
        for i in range(4):
            k(f'v_cvt_pk_bf16_f32 v{32+4*j+i}, v{R+2*i}, v{R+2*i+1}')
        k(f'buffer_store_dwordx4 {v(32+4*j,4)}, v1, {s(S_WS,4)}, {s(sE0)} offen offset:{j*1024} sc1')

def emit_ff2_task(k, sSEG, sCB, pre_wait, ldsx):
    CT, NK = 2, 27
    k(f's_lshl_b32 {s(sE1)}, {s(sSEG)}, 1')
    k(f's_and_b32 {s(sT0)}, {s(sW)}, 1')
    k(f's_add_u32 {s(sE1)}, {s(sE1)}, {s(sT0)}')
    k(f's_lshr_b32 {s(sT2)}, {s(sW)}, 1')
    k(f's_mul_i32 {s(sA)}, {s(sE1)}, {54*1024}')
    k(f's_mul_i32 {s(sT1)}, {s(sT2)}, {NK*1024}')
    k(f's_add_u32 {s(sA)}, {s(sA)}, {s(sT1)}')
    k(f's_add_u32 {s(sA)}, {s(sA)}, {FF}')
    k(f's_lshl_b32 {s(sB)}, {s(sT1)}, 1')
    k(f's_lshl_b32 {s(sT1)}, {s(sCB)}, 1')
    k(f's_add_u32 {s(sT1)}, {s(sT1)}, {s(sT2)}')
    k(f's_lshl_b32 {s(sT1)}, {s(sT1)}, 5')
    k(f's_mul_i32 {s(sE0)}, {s(sE1)}, {16*1280}')
    k(f's_add_u32 {s(sE0)}, {s(sE0)}, {s(sT1)}')
    k(f's_lshl_b32 {s(sE2)}, {s(sT1)}, 1')
    k(f's_add_u32 {s(sE2)}, {s(sE2)}, {MOD + 5*2560}')
    XB, GB = 200, 204
    def mid():
        k('v_and_b32 v12, 15, v0')
        k('v_mul_u32_u24 v12, 1280, v12')
        bits(k, 12, 0, [(4, 2, 3)], 2, first=False)
        bits(k, 13, 0, [(4, 2, 4)], 2)
        k(f'buffer_load_dwordx4 {v(GB,4)}, v13, {s(S_WS,4)}, {s(sE2)} offen sc1')
        k(f's_lshl_b32 {s(sT0)}, {s(sW)}, 10')
        k(f's_add_u32 {s(sT0)}, {s(sT0)}, {ldsx}')
        k(f'v_add_u32 v10, {s(sT0)}, v1')
        k(f'v_xor_b32 v11, 2048, v10')
    def pw():
        pre_wait()
        k(f's_add_u32 {s(sT0)}, {s(sE0)}, {X1}')
        k(f'buffer_load_dwordx2 {v(XB,2)}, v12, {s(S_WS,4)}, {s(sT0)} offen sc1')
    ACC = emit_burst(k, CT, CT, NK, pw, s_ldsoff=sB, mid=mid)
    h1, jn = k.newlabel('f2h'), k.newlabel('f2j')
    k(f's_cmp_ge_u32 {s(sW)}, 2'); k(f's_cbranch_scc1 {h1}')
    k(f'ds_write_b128 v10, {v(ACC+4,4)}')
    k(f's_branch {jn}')
    k.label(h1)
    k(f'ds_write_b128 v10, {v(ACC,4)}')
    k('s_waitcnt lgkmcnt(0)')
    k(f'v_mov_b64 {v(ACC,2)}, {v(ACC+4,2)}')
    k(f'v_mov_b64 {v(ACC+2,2)}, {v(ACC+6,2)}')
    k.label(jn)
    k('s_waitcnt lgkmcnt(0)')
    k('s_barrier')
    k(f'ds_read_b128 {v(ACC+4,4)}, v11')
    k('s_waitcnt lgkmcnt(0)')
    for h in range(2):
        r = ACC + 2 * h
        k(f'v_pk_add_f32 {v(r,2)}, {v(r,2)}, {v(r+4,2)}')
        rbf2(k, r, r + 1)
        k(f'v_pk_mul_f32 {v(r,2)}, {v(r,2)}, {v(GB+2*h,2)}')
        rbf2(k, r, r + 1)
        unpack(k, XB + h, 6, 7)
        k(f'v_pk_add_f32 {v(r,2)}, {v(r,2)}, v[6:7]')
        k(f'v_cvt_pk_bf16_f32 v{XB+h}, v{r}, v{r+1}')
    k(f'buffer_store_dwordx2 {v(XB,2)}, v12, {s(S_OUT,4)}, {s(sE0)} offen')

def wave_sum(k, r, t):
    row16_sum(k, r)
    for sw in ('v_permlane16_swap_b32', 'v_permlane32_swap_b32'):
        k(f'v_mov_b32 v{t}, v{r}')
        k(f'{sw} v{r}, v{t}')
        k(f'v_add_f32 v{r}, v{r}, v{t}')

def quad_sum(k, r, t):
    k(f'v_add_f32 v{r}, v{r}, v{r} row_ror:4')
    k(f'v_add_f32 v{r}, v{r}, v{r} row_ror:8')
    for sw in ('v_permlane16_swap_b32', 'v_permlane32_swap_b32'):
        k(f'v_mov_b32 v{t}, v{r}')
        k(f'{sw} v{r}, v{t}')
        k(f'v_add_f32 v{r}, v{r}, v{t}')

def emit_ln2_quad(k, sq, nsplit, pre_wait, ldsx, top_label):
    L16, CO, RO, TO, MU, VAR, T, LX = 1, 2, 3, 4, 5, 6, 7, 10
    D0 = 8
    XR, G, SC, SH, P = 12, 20, 32, 44, 56
    V = P
    NP = 3
    k(f'v_lshlrev_b32 v{L16}, 4, v0')
    k(f's_lshl_b32 {s(sT0)}, {s(sW)}, 8')
    k(f'v_and_b32 v{CO}, 0x3c0, v{L16}')
    k(f'v_lshrrev_b32 v{CO}, 2, v{CO}')
    k(f'v_add_u32 v{CO}, {s(sT0)}, v{CO}')
    k(f'v_and_b32 v{T}, 3, v0')
    k(f'v_mul_u32_u24 v{RO}, 1280, v{T}')
    k(f'v_lshrrev_b32 v{D0}, 1, v{CO}')
    k(f'v_add_u32 v{RO}, v{RO}, v{D0}')
    bits(k, TO, 0, [(5, 1, 10), (3, 2, 8), (0, 2, 4), (2, 1, 3)], D0)
    k(f's_lshl_b32 {s(sT0)}, {s(sW)}, 11')
    k(f'v_add_u32 v{TO}, {s(sT0)}, v{TO}')
    k(f's_lshl_b32 {s(sT0)}, {s(sW)}, 4')
    k(f'v_lshl_add_u32 v{LX}, v{T}, 2, {s(sT0)}')
    k(f'v_lshlrev_b32 v{LX+1}, 2, v{T}')
    last = k.newlabel('ln2n')
    def guarded(fn):
        for p in range(2):
            fn(p)
        sk = k.newlabel('ln2s')
        k(f's_cmp_ge_u32 {s(sW)}, 2'); k(f's_cbranch_scc1 {sk}')
        fn(2)
        k.label(sk)
    for r in [XR + 4, G + 8, G + 10, SC + 8, SC + 10, SH + 8, SH + 10]:
        k(f'v_mov_b64 {v(r,2)}, 0')
    def ld_mod(p):
        for dst, idx in ((G, 2), (SC, 4), (SH, 3)):
            k(f's_mov_b32 {s(sT0)}, {MOD + idx * 2560}')
            k(f'buffer_load_dwordx4 {v(dst+4*p,4)}, v{CO}, {s(S_WS,4)}, {s(sT0)} offen offset:{1024*p} sc1')
    guarded(ld_mod)
    k.label(top_label)
    k(f's_mul_i32 {s(sE0)}, {s(sq)}, 5120')
    guarded(lambda p: k(f'buffer_load_dwordx2 {v(XR+2*p,2)}, v{RO}, {s(S_X,4)}, {s(sE0)} offen offset:{512*p}'))
    pre_wait()
    k(f's_lshl_b32 {s(sT0)}, {s(sE0)}, 1')
    k(f's_lshl_b32 {s(sT1)}, {s(sW)}, 10')
    k(f's_add_u32 {s(sT0)}, {s(sT0)}, {s(sT1)}')
    k(f's_add_u32 {s(sT0)}, {s(sT0)}, {PART}')
    k(f's_cmp_lt_u32 {s(sW)}, 2')
    k(f's_cselect_b32 {s(sT2)}, 2, 1')
    k(f's_lshl_b32 {s(sT2)}, {s(sT2)}, 12')
    for sp in range(nsplit):
        k(f's_add_u32 {s(sT1)}, {s(sT0)}, 4096')
        k(f's_add_u32 {s(sT3)}, {s(sT0)}, {s(sT2)}')
        for p, so in enumerate((sT0, sT1, sT3)):
            k(f'buffer_load_dwordx4 {v(P+12*sp+4*p,4)}, v{L16}, {s(S_WS,4)}, {s(so)} offen sc1')
        k(f's_add_u32 {s(sT0)}, {s(sT0)}, {2048*2560}')
    for sp in range(1, nsplit):
        k(f's_waitcnt vmcnt({3*(nsplit-1-sp)})')
        for i in range(0, 12, 2):
            k(f'v_pk_add_f32 {v(V+i,2)}, {v(V+i,2)}, {v(P+12*sp+i,2)}')
    for i in range(0, 12, 2):
        rbf2(k, V + i, V + i + 1)
        k(f'v_pk_mul_f32 {v(V+i,2)}, {v(V+i,2)}, {v(G+i,2)}')
        rbf2(k, V + i, V + i + 1)
        unpack(k, XR + i // 2, D0, D0 + 1)
        k(f'v_pk_add_f32 {v(V+i,2)}, {v(V+i,2)}, {v(D0,2)}')
        k(f'v_cvt_pk_bf16_f32 v{XR+i//2}, v{V+i}, v{V+i+1}')
        unpack(k, XR + i // 2, V + i, V + i + 1)
    k(f'v_pk_add_f32 {v(D0,2)}, {v(V,2)}, {v(V+2,2)}')
    for i in range(4, 12, 2):
        k(f'v_pk_add_f32 {v(D0,2)}, {v(D0,2)}, {v(V+i,2)}')
    k(f'v_add_f32 v{MU}, v{D0}, v{D0+1}')
    quad_sum(k, MU, T)
    k(f'ds_write_b32 v{LX}, v{MU} offset:{ldsx}')
    k(f's_add_u32 {s(sT1)}, {s(sE0)}, {X1}')
    guarded(lambda p: k(f'buffer_store_dwordx2 {v(XR+2*p,2)}, v{RO}, {s(S_WS,4)}, {s(sT1)} offen offset:{512*p} sc1'))
    def xwave(dst, off):
        k('s_waitcnt lgkmcnt(0)')
        k('s_barrier')
        Q = P + 12
        k(f'ds_read2_b32 {v(Q,2)}, v{LX+1} offset0:{(off)//4} offset1:{(off+16)//4}' if False else f'ds_read_b32 v{Q}, v{LX+1} offset:{off}')
        for i in range(1, 4):
            k(f'ds_read_b32 v{Q+i}, v{LX+1} offset:{off+16*i}')
        k('s_waitcnt lgkmcnt(0)')
        k(f'v_pk_add_f32 {v(Q,2)}, {v(Q,2)}, {v(Q+2,2)}')
        k(f'v_add_f32 v{dst}, v{Q}, v{Q+1}')
        k(f'v_mul_f32 v{dst}, 0x3acccccd, v{dst}')
    xwave(MU, ldsx)
    k(f'v_mov_b32 v{VAR}, 0')
    def acc_var(p):
        for i in range(4 * p, 4 * p + 4):
            k(f'v_sub_f32 v{D0 + (i&1)}, v{V+i}, v{MU}')
            k(f'v_fmac_f32 v{VAR}, v{D0 + (i&1)}, v{D0 + (i&1)}')
    guarded(acc_var)
    quad_sum(k, VAR, T)
    k(f'ds_write_b32 v{LX}, v{VAR} offset:{ldsx + 64}')
    xwave(VAR, ldsx + 64)
    rbf2(k, MU, VAR)
    k(f'v_add_f32 v{VAR}, 0x3727c5ac, v{VAR}')
    rbf(k, VAR)
    k(f'v_sqrt_f32 v{VAR}, v{VAR}')
    rbf(k, VAR)
    k(f'v_rcp_f32 v{D0}, v{VAR}')
    k(f'v_mov_b32 v18, v{MU}')
    OUT = P + 16
    for i in range(0, 12, 2):
        k(f'v_pk_add_f32 {v(V+i,2)}, {v(V+i,2)}, {v(18,2)} op_sel_hi:[1,0] neg_lo:[0,1] neg_hi:[0,1]')
        rbf2(k, V + i, V + i + 1)
        k(f'v_pk_mul_f32 {v(V+i,2)}, {v(V+i,2)}, {v(D0,2)} op_sel_hi:[1,0]')
        rbf2(k, V + i, V + i + 1)
        k(f'v_pk_mul_f32 {v(V+i,2)}, {v(V+i,2)}, {v(SC+i,2)}')
        rbf2(k, V + i, V + i + 1)
        k(f'v_pk_add_f32 {v(V+i,2)}, {v(V+i,2)}, {v(SH+i,2)}')
        k(f'v_cvt_pk_bf16_f32 v{OUT+i//2}, v{V+i}, v{V+i+1}')
    k(f's_lshr_b32 {s(sT0)}, {s(sq)}, 2')
    k(f's_mul_i32 {s(sT0)}, {s(sT0)}, 20480')
    k(f's_and_b32 {s(sT1)}, {s(sq)}, 3')
    k(f's_lshl_b32 {s(sT1)}, {s(sT1)}, 6')
    k(f's_add_u32 {s(sT0)}, {s(sT0)}, {s(sT1)}')
    k(f's_add_u32 {s(sT0)}, {s(sT0)}, {H2}')
    def st_h2(p):
        k(f'buffer_store_dwordx2 {v(OUT+2*p,2)}, v{TO}, {s(S_WS,4)}, {s(sT0)} offen sc1')
        k(f's_add_u32 {s(sT0)}, {s(sT0)}, 8192')
    guarded(st_h2)

sBUD = 53
def emit_wait(k, srd, soff, n, stride, target, t0, t1, lane=0, sleep=2, wg=False):
    top, done = k.newlabel('wt'), k.newlabel('wd')
    if wg:
        k(f's_cmp_lg_u32 {s(sW)}, 0')
        k(f's_cbranch_scc1 {done}')
    k(f'v_min_u32 v{t0}, {n-1}, v{lane}')
    k(f'v_mul_u32_u24 v{t0}, {stride}, v{t0}')
    k.label(top)
    k(f'buffer_load_dword v{t1}, v{t0}, {s(srd,4)}, {s(soff)} offen sc1')
    k('s_waitcnt vmcnt(0)')
    k(f'v_cmp_gt_u32 vcc, {target}, v{t1}')
    k(f's_cbranch_vccz {done}')
    k(f's_sleep {sleep}')
    k(f's_sub_u32 {s(sBUD)}, {s(sBUD)}, 1')
    k(f's_cbranch_scc0 {top}')
    k(f's_mov_b32 {s(sBUD)}, 0')
    k.label(done)
    if wg:
        k('s_barrier')

def emit_signal(k, srd, soff, atomic, t0, t1, vm=0, val='1'):
    skip = k.newlabel('sg')
    k(f's_waitcnt vmcnt({vm}) lgkmcnt(0)')
    k('s_barrier')
    k(f's_cmp_lg_u32 {s(sW)}, 0')
    k(f's_cbranch_scc1 {skip}')
    k(f'v_mov_b32 v{t0}, 0')
    k(f'v_mov_b32 v{t1}, {val}')
    k('s_mov_b64 exec, 1')
    if atomic:
        k(f'buffer_atomic_add v{t1}, v{t0}, {s(srd,4)}, {s(soff)} offen')
    else:
        k(f'buffer_store_dword v{t1}, v{t0}, {s(srd,4)}, {s(soff)} offen sc1')
    k('s_mov_b64 exec, -1')
    k.label(skip)

def emit_signal_last(k, srd, soff, total, goff, t0, t1):
    skip = k.newlabel('sg')
    k('s_waitcnt vmcnt(0) lgkmcnt(0)')
    k('s_barrier')
    k(f's_cmp_lg_u32 {s(sW)}, 0')
    k(f's_cbranch_scc1 {skip}')
    k(f'v_mov_b32 v{t0}, 0')
    k(f'v_mov_b32 v{t1}, 1')
    k('s_mov_b64 exec, 1')
    k(f'buffer_atomic_add v{t1}, v{t0}, {s(srd,4)}, {s(soff)} offen sc0')
    k('s_waitcnt vmcnt(0)')
    k(f'v_readfirstlane_b32 {s(sT0)}, v{t1}')
    k('s_mov_b64 exec, -1')
    k(f's_cmp_lg_u32 {s(sT0)}, {total - 1}')
    k(f's_cbranch_scc1 {skip}')
    k(f'v_mov_b32 v{t0}, {goff}')
    k(f'v_mov_b32 v{t1}, 1')
    k('s_mov_b64 exec, 1')
    k(f'buffer_store_dword v{t1}, v{t0}, {s(srd,4)}, 0 offen sc1')
    k('s_mov_b64 exec, -1')
    k.label(skip)

def emit_signal_wave(k, srd, soff, t0, t1):
    k('s_waitcnt vmcnt(0)')
    k(f'v_mov_b32 v{t0}, 0')
    k(f'v_mov_b32 v{t1}, 1')
    k('s_mov_b64 exec, 1')
    k(f'buffer_atomic_add v{t1}, v{t0}, {s(srd,4)}, {s(soff)} offen')
    k('s_mov_b64 exec, -1')
```

```python
import sys
from asmlib import *
import align
from layout import *
import rec, tok
from tok import *
NAME = 'adaLN_cond__memory_aug_recurrent_mem_tr__dense_activation_silu__prompt'
def desc(name, vgpr, acc):
    return f'''.p2align 6
.amdhsa_kernel {name}
  .amdhsa_next_free_vgpr {vgpr}
  .amdhsa_next_free_sgpr 102
  .amdhsa_accum_offset {acc}
  .amdhsa_group_segment_fixed_size 0
  .amdhsa_kernarg_size 120
  .amdhsa_user_sgpr_count 2
  .amdhsa_user_sgpr_kernarg_segment_ptr 1
  .amdhsa_system_sgpr_workgroup_id_x 1
.end_amdhsa_kernel
'''
XN = 2048 * 640 * 2
S_DBG = rec.S_DBG
sX, sH = rec.sX, rec.sH
sI, sR, sP0, sP1, sP2, sF, sG, sTASK = 70, 71, 72, 73, 74, 75, 76, 77
sJ, sPK, sPO, sPF = 82, 83, 84, 85

def set_srd(k, pairs):
    for sr, ka, nb in pairs:
        load_srd(k, sr, ka)
    k('s_waitcnt lgkmcnt(0)')
    for sr, ka, nb in pairs:
        fin_srd(k, sr, nb)

def div6(k, q, r_, x):
    k(f's_mul_i32 {s(q)}, {s(x)}, 171')
    k(f's_lshr_b32 {s(q)}, {s(q)}, 10')
    k(f's_mul_i32 {s(r_)}, {s(q)}, 6')
    k(f's_sub_u32 {s(r_)}, {s(x)}, {s(r_)}')

DIAG = False
sWT = 78
def wstamp(k, tag):
    if not DIAG:
        return
    skip = k.newlabel('ws')
    k(f's_cmp_lg_u32 {s(sW)}, 3'); k(f's_cbranch_scc1 {skip}')
    k('s_memrealtime s[80:81]')
    k('s_waitcnt lgkmcnt(0)')
    k('v_accvgpr_write_b32 a250, s80'); k(f'v_accvgpr_write_b32 a251, {tag}')
    k('s_mov_b64 exec, 1')
    k(f'buffer_store_dwordx2 a[250:251], off, {s(S_WS,4)}, {s(sWT)}')
    k('s_mov_b64 exec, -1')
    k(f's_add_u32 {s(sWT)}, {s(sWT)}, 8')
    k.label(skip)

def emit_worker(k, end):
    k(f's_mov_b32 {s(sBUD)}, 0x80000')
    k(f's_sub_u32 {s(sI)}, {s(sX)}, 2')
    k(f's_lshl_b32 {s(sI)}, {s(sI)}, 5')
    k(f's_add_u32 {s(sI)}, {s(sI)}, {s(sH)}')
    k(f's_lshl_b32 {s(sWT)}, {s(sI)}, 10'); k(f's_add_u32 {s(sWT)}, {s(sWT)}, {TS + 0x200000}')
    if DIAG:
        k('v_accvgpr_write_b32 a250, s86'); k('v_accvgpr_write_b32 a251, 9')
        k(f'buffer_store_dwordx2 a[250:251], off, {s(S_WS,4)}, {s(sWT)}')
        k(f's_add_u32 {s(sWT)}, {s(sWT)}, 8')
    wstamp(k, 1)
    k(f's_mul_i32 {s(sR)}, {s(sH)}, 6')
    k(f's_add_u32 {s(sR)}, {s(sR)}, {s(sX)}')
    k(f's_sub_u32 {s(sR)}, {s(sR)}, 2')
    set_srd(k, [(S_B0, A_WMOD, 640 * 3840 * 2), (S_B1, A_C, 1280), (S_X, A_X, XN), (S_OUT, A_OUT, XN), (88, A_WK, 5242880), (92, A_WV, 5242880)])
    def warm(t0, t1):
        div6(k, sP2, sG, sI)
        k(f's_mul_i32 {s(sG)}, {s(sG)}, 103')
        k(f's_lshl_b32 {s(sT0)}, {s(sW)}, 5')
        k(f's_add_u32 {s(sG)}, {s(sG)}, {s(sT0)}')
        k(f's_lshl_b32 {s(sG)}, {s(sG)}, 13')
        k(f's_lshl_b32 {s(sT0)}, {s(sP2)}, 8')
        k(f's_add_u32 {s(sG)}, {s(sG)}, {s(sT0)}')
        bits(k, t0, 0, [(1, 5, 13), (0, 1, 7)], t1)
        k(f'buffer_load_dword v{t1}, v{t0}, s[88:91], {s(sG)} offen')
        k(f'buffer_load_dword v{t1}, v{t0}, s[92:95], {s(sG)} offen')
    def tid():
        k(f's_lshl_b32 {s(sT0)}, {s(sW)}, 6'); k(f'v_add_u32 v0, {s(sT0)}, v0')
    def wait1():
        k(f's_mov_b32 {s(sF)}, 96')
        emit_wait(k, S_DBG, sF, 1, 0, 1, 8, 9, sleep=4, wg=True)
    modsub_ret = 82
    doln, fill, nz, p1d = [k.newlabel(x) for x in ('doln', 'fill', 'nz', 'p1d')]
    k(f's_cmp_ge_u32 {s(sR)}, 64'); k(f's_cbranch_scc1 {doln}')
    tid()
    k(f's_cmp_ge_u32 {s(sR)}, 40'); k(f's_cbranch_scc1 {fill}')
    k(f's_cmp_ge_u32 {s(sR)}, 16'); k(f's_cbranch_scc1 {nz}')
    k('v_mov_b64 v[4:5], 0'); k('v_mov_b64 v[6:7], 0')
    k('v_lshlrev_b32 v1, 4, v0')
    k(f's_lshl_b32 {s(sT0)}, {s(sR)}, 12')
    k(f's_add_u32 {s(sT0)}, {s(sT0)}, {FL}')
    k(f'buffer_store_dwordx4 v[4:7], v1, {s(S_WS,4)}, {s(sT0)} offen sc1')
    k.label(nz)
    emit_mod(k, sR, ' sc1')
    k(f's_mov_b32 {s(sF)}, 240')
    emit_signal_last(k, S_DBG, sF, 40, 96, 4, 5)
    k.label(fill)
    wstamp(k, 2)
    k('v_mov_b64 v[4:5], -1'); k('v_mov_b64 v[6:7], -1')
    k('v_lshlrev_b32 v1, 4, v0')
    k(f's_lshl_b32 {s(sT0)}, {s(sR)}, 13')
    k(f's_add_u32 {s(sT0)}, {s(sT0)}, {FILL0}')
    for i in range(2):
        k(f'buffer_store_dwordx4 v[4:7], v1, {s(S_WS,4)}, {s(sT0)} offen sc1')
        k(f's_add_u32 {s(sT0)}, {s(sT0)}, 4096')
    k('v_and_b32 v0, 63, v0')
    wait1()
    k(f's_mov_b32 {s(sF)}, {FL_INIT}')
    emit_signal(k, S_WS, sF, True, 4, 5)
    k(f's_branch {p1d}')
    k.label(doln)
    k(f's_sub_u32 {s(sP1)}, {s(sR)}, 64')
    k(f's_lshl_b32 {s(sP0)}, {s(sP1)}, 2'); k(f's_add_u32 {s(sP0)}, {s(sP0)}, {s(sW)}'); k(f's_lshl_b32 {s(sP0)}, {s(sP0)}, 2')
    def wait1s():
        wstamp(k, 2); wait1(); wstamp(k, 5)
    emit_ln1(k, sP0, wait1s)
    k(f's_lshr_b32 {s(sF)}, {s(sP1)}, 3'); k(f's_lshl_b32 {s(sF)}, {s(sF)}, 7'); k(f's_add_u32 {s(sF)}, {s(sF)}, {FL_H}')
    emit_signal(k, S_WS, sF, True, 4, 5)
    k.label(p1d)
    k(f's_mov_b32 {s(sJ)}, {s(sR)}')
    wstamp(k, 3)
    k(f's_mov_b32 {s(sR)}, 0')
    rtop, doq, dokv, dok, dov, rnext, r4 = [k.newlabel(x) for x in ('rtop', 'doq', 'dokv', 'dok', 'dov', 'rnext', 'r4')]
    def late_signal(n):
        e3 = k.newlabel('e')
        k(f's_cmp_eq_u32 {s(sR)}, 0'); k(f's_cbranch_scc1 {e3}')
        emit_signal(k, S_WS, sPF, True, 14, 15, vm=n, val=s(sPK))
        wstamp(k, 4)
        k.label(e3)
    k.label(rtop)
    div6(k, sP1, sP0, sI)
    half = k.newlabel('half')
    k(f's_cmp_lt_u32 {s(sR)}, 2'); k(f's_cbranch_scc1 {half}')
    k(f's_cmp_eq_u32 {s(sR)}, 4'); k(f's_cbranch_scc1 {r4}')
    k(f's_add_u32 {s(sP0)}, {s(sP0)}, 6')
    k(f's_cmp_eq_u32 {s(sR)}, 3'); k(f's_cbranch_scc1 {dokv}')
    k(f's_bitcmp0_b32 {s(sP1)}, 0')
    k(f's_cselect_b32 {s(sT0)}, 6, 0')
    k(f's_sub_u32 {s(sP0)}, {s(sP0)}, {s(sT0)}')
    k(f's_lshr_b32 {s(sP1)}, {s(sP1)}, 1')
    k(f's_branch {doq}')
    k.label(r4)
    k(f's_add_u32 {s(sP0)}, {s(sP0)}, 12')
    k(f's_cmp_lt_u32 {s(sP0)}, 16'); k(f's_cbranch_scc1 {dokv}')
    k(f's_and_b32 {s(sT0)}, {s(sP1)}, 1')
    k(f's_lshl_b32 {s(sT0)}, {s(sT0)}, 1')
    k(f's_add_u32 {s(sP0)}, {s(sP0)}, {s(sT0)}')
    k(f's_sub_u32 {s(sP0)}, {s(sP0)}, 4')
    k(f's_lshr_b32 {s(sP1)}, {s(sP1)}, 1')
    def waitH():
        k(f's_lshl_b32 {s(sF)}, {s(sP0)}, 7')
        k(f's_cmp_eq_u32 {s(sR)}, 0')
        k(f's_cselect_b32 {s(sF)}, {s(sF)}, 0')
        k(f's_cselect_b32 {s(sT2)}, 0, 15')
        k(f's_add_u32 {s(sF)}, {s(sF)}, {FL_H}')
        k(f'v_min_u32 v13, {s(sT2)}, v0')
        emit_wait(k, S_WS, sF, 16, 128, 8, 14, 15, lane=13, sleep=3, wg=True)
        wstamp(k, 6)
    def pend(base, val):
        k(f's_lshl_b32 {s(sPF)}, {s(sP1)}, 7'); k(f's_lshl_b32 {s(sT0)}, {s(sP0)}, 2')
        k(f's_add_u32 {s(sPF)}, {s(sPF)}, {s(sT0)}'); k(f's_add_u32 {s(sPF)}, {s(sPF)}, {base}')
        k(f's_mov_b32 {s(sPK)}, {val}')
        k(f's_branch {rnext}')
    def task(label, kind, srds, pw, base, val):
        k.label(label)
        set_srd(k, srds)
        emit_qkv_main(k, kind, sP0, sP1, sPO, 'g' + kind, pw, late_signal)
        wstamp(k, 7)
        emit_qkv_epi(k, kind, sPO)
        pend(base, val)
    task(doq, 'q', [(S_B0, A_WQ, 5242880)], None, FL_Q, 2)
    task(dokv, 'kv', [(S_B0, A_WK, 5242880), (S_B1, A_WV, 5242880)], None, FL_KV, 2)
    k.label(half)
    k(f's_and_b32 {s(sT0)}, {s(sP0)}, 1')
    k(f's_lshr_b32 {s(sP0)}, {s(sP0)}, 1')
    k(f's_mul_i32 {s(sT1)}, {s(sR)}, 3')
    k(f's_add_u32 {s(sP0)}, {s(sP0)}, {s(sT1)}')
    k(f's_cmp_eq_u32 {s(sT0)}, 1'); k(f's_cbranch_scc1 {dov}')
    task(dok, 'k', [(S_B0, A_WK, 5242880)], waitH, FL_KV, 1)
    task(dov, 'v', [(S_B0, A_WV, 5242880)], waitH, FL_KV, 1)
    k.label(rnext)
    k(f's_add_u32 {s(sR)}, {s(sR)}, 1')
    k(f's_cmp_lt_u32 {s(sR)}, 5'); k(f's_cbranch_scc1 {rtop}')
    late_signal(0)
    nom = k.newlabel('nom')
    k(f's_cmp_ge_u32 {s(sJ)}, 80'); k(f's_cbranch_scc1 {nom}')
    set_srd(k, [(S_B0, A_WMOD, 640 * 3840 * 2), (S_B1, A_C, 1280)])
    k(f's_add_u32 {s(sJ)}, {s(sJ)}, 40')
    tid()
    emit_mod(k, sJ, ' sc1')
    k('v_and_b32 v0, 63, v0')
    k(f's_mov_b32 {s(sF)}, {FL_INIT + 128}')
    emit_signal(k, S_WS, sF, True, 4, 5)
    k.label(nom)
    att, rff1, rff2, rln = k.newlabel('att'), k.newlabel('rff1'), k.newlabel('rff2'), k.newlabel('rln')
    k(f's_and_b32 {s(sG)}, {s(sX)}, 1')
    def gflag(base):
        k(f's_lshl_b32 {s(sF)}, {s(sG)}, 7'); k(f's_add_u32 {s(sF)}, {s(sF)}, {base}')
    def gnext(top, inc=2):
        k(f's_add_u32 {s(sG)}, {s(sG)}, {inc}')
        k(f's_cmp_lt_u32 {s(sG)}, 32'); k(f's_cbranch_scc1 {top}')
        k(f's_branch {end}')
    def b_ready(wait_mod, conv=None):
        k('s_waitcnt vmcnt(0)')
        if conv:
            emit_b_convert(k, *conv)
        if wait_mod:
            k(f's_mov_b32 {s(sF)}, {FL_INIT + 128}')
            emit_wait(k, S_WS, sF, 1, 0, 80, 14, 15, sleep=8, wg=True)
        k('s_barrier')
    def snext(top):
        k(f's_add_u32 {s(sG)}, {s(sG)}, 2')
        k(f's_cmp_lt_u32 {s(sG)}, 64'); k(f's_cbranch_scc1 {top}')
        k(f's_branch {end}')
    def sflag(base):
        k(f's_lshr_b32 {s(sF)}, {s(sG)}, 1'); k(f's_lshl_b32 {s(sF)}, {s(sF)}, 7'); k(f's_add_u32 {s(sF)}, {s(sF)}, {base}')
    k(f's_cmp_ge_u32 {s(sX)}, 6'); k(f's_cbranch_scc1 {rff2}')
    k(f's_cmp_ge_u32 {s(sX)}, 4'); k(f's_cbranch_scc1 {rff1}')
    set_srd(k, [(S_B0, A_WO, 5242880)])
    k(f's_lshr_b32 {s(sP1)}, {s(sH)}, 2'); k(f's_and_b32 {s(sP0)}, {s(sH)}, 3')
    k(f's_mul_i32 {s(sB)}, {s(sP1)}, {16*32*1280}'); k(f's_mul_i32 {s(sT1)}, {s(sP0)}, 320'); k(f's_add_u32 {s(sB)}, {s(sB)}, {s(sT1)}')
    emit_burst_b(k, 10, 16, 1280, True, S_B0, sB, 0)
    b_ready(False, (10, 16, 0))
    top = k.newlabel('wotop'); k.label(top)
    def waitA():
        k(f's_lshl_b32 {s(sF)}, {s(sG)}, 5'); k(f's_lshl_b32 {s(sT0)}, {s(sP1)}, 2')
        k(f's_add_u32 {s(sF)}, {s(sF)}, {s(sT0)}'); k(f's_add_u32 {s(sF)}, {s(sF)}, {FL_ATT}')
        emit_wait(k, S_WS, sF, 1, 0, 1, 14, 15, sleep=2, wg=True)
        wstamp(k, 10)
    emit_wo_task(k, sG, sP0, sP1, waitA)
    gflag(FL_WO); emit_signal(k, S_WS, sF, True, 4, 5)
    wstamp(k, 11)
    snext(top)
    k.label(rff1)
    g5 = k.newlabel('g5')
    k(f's_cmp_eq_u32 {s(sX)}, 5'); k(f's_cbranch_scc1 {g5}')
    k(f's_cmp_ge_u32 {s(sH)}, 27'); k(f's_cbranch_scc1 {end}')
    set_srd(k, [(S_B0, A_W1, 640 * 1728 * 2)])
    k(f's_lshl_b32 {s(sB)}, {s(sH)}, 7')
    emit_burst_b(k, 4, 20, 3456, False, S_B0, sB, 0)
    b_ready(False, (4, 20, 0))
    top = k.newlabel('f1top'); k.label(top)
    def waitL():
        k(f's_lshl_b32 {s(sF)}, {s(sE1)}, 7'); k(f's_add_u32 {s(sF)}, {s(sF)}, {FL_LN}')
        emit_wait(k, S_WS, sF, 1, 0, 4, 14, 15, sleep=3); wstamp(k, 14)
    emit_ff1_task(k, sG, sH, 4, waitL)
    k(f's_lshl_b32 {s(sF)}, {s(sE1)}, 7'); k(f's_add_u32 {s(sF)}, {s(sF)}, {FL_FF}')
    emit_signal_wave(k, S_WS, sF, 4, 5)
    wstamp(k, 15)
    gnext(top, 1)
    k.label(g5)
    k(f's_sub_u32 {s(sTASK)}, {s(sH)}, 16')
    k(f's_cmp_ge_u32 {s(sH)}, 16'); k(f's_cbranch_scc1 {att}')
    k(f's_mov_b32 {s(sTASK)}, {s(sH)}')
    k.label(rln)
    b_ready(True)
    k(f's_and_b32 {s(sG)}, {s(sTASK)}, 3')
    k(f's_lshr_b32 {s(sTASK)}, {s(sTASK)}, 2')
    k(f's_lshl_b32 {s(sP0)}, {s(sG)}, 3'); k(f's_add_u32 {s(sP0)}, {s(sP0)}, {s(sTASK)}')
    top = k.newlabel('lntop')
    def waitW():
        gflag(FL_WO); emit_wait(k, S_WS, sF, 1, 0, 32, 8, 9, sleep=2, wg=True); wstamp(k, 12)
    emit_ln2_quad(k, sP0, 8, waitW, 0, top)
    k(f's_lshr_b32 {s(sF)}, {s(sP0)}, 2'); k(f's_lshl_b32 {s(sF)}, {s(sF)}, 7'); k(f's_add_u32 {s(sF)}, {s(sF)}, {FL_LN}')
    emit_signal(k, S_WS, sF, True, 8, 9)
    wstamp(k, 13)
    k(f's_add_u32 {s(sP0)}, {s(sP0)}, 32')
    k(f's_add_u32 {s(sG)}, {s(sG)}, 4')
    k(f's_cmp_lt_u32 {s(sG)}, 64'); k(f's_cbranch_scc1 {top}')
    k(f's_branch {end}')
    k.label(rff2)
    k(f's_lshl_b32 {s(sT0)}, {s(sG)}, 2'); k(f's_add_u32 {s(sTASK)}, {s(sT0)}, {s(sH)}'); k(f's_sub_u32 {s(sTASK)}, {s(sTASK)}, 12')
    k(f's_cmp_ge_u32 {s(sH)}, 28'); k(f's_cbranch_scc1 {att}')
    k(f's_lshl_b32 {s(sT0)}, {s(sG)}, 3'); k(f's_add_u32 {s(sTASK)}, {s(sT0)}, {s(sH)}'); k(f's_sub_u32 {s(sTASK)}, {s(sTASK)}, 4')
    k(f's_cmp_ge_u32 {s(sH)}, 20'); k(f's_cbranch_scc1 {rln}')
    set_srd(k, [(S_B0, A_W2, 640 * 1728 * 2)])
    k(f's_lshl_b32 {s(sB)}, {s(sH)}, 6')
    emit_burst_b(k, 2, 54, 1280, True, S_B0, sB, 0)
    b_ready(True, (2, 54, 0))
    top = k.newlabel('f2top'); k.label(top)
    def waitF():
        k(f's_lshl_b32 {s(sF)}, {s(sG)}, 8'); k(f's_add_u32 {s(sF)}, {s(sF)}, {FL_FF}')
        emit_wait(k, S_WS, sF, 2, 128, 27, 14, 15, sleep=2, wg=True); wstamp(k, 16)
    emit_ff2_task(k, sG, sH, waitF, 118784)
    wstamp(k, 17)
    snext(top)
    k.label(att)
    emit_att_setup(k)
    k(f's_lshr_b32 {s(sG)}, {s(sTASK)}, 3')
    k(f's_and_b32 {s(sTASK)}, {s(sTASK)}, 7')
    k(f's_lshl_b32 {s(sP1)}, {s(sTASK)}, 2'); k(f's_add_u32 {s(sP1)}, {s(sP1)}, {s(sW)}')
    k(f's_lshl_b32 {s(sF)}, {s(sP1)}, 7'); k(f's_add_u32 {s(sF)}, {s(sF)}, {FL_KV}')
    emit_wait(k, S_WS, sF, 16, 4, 2, 4, 5)
    k(f's_lshr_b32 {s(sF)}, {s(sP1)}, 1'); k(f's_lshl_b32 {s(sF)}, {s(sF)}, 7'); k(f's_add_u32 {s(sF)}, {s(sF)}, {FL_Q}')
    emit_wait(k, S_WS, sF, 16, 4, 2, 4, 5)
    atop = k.newlabel('atop')
    k.label(atop)
    def wait_kvm(X):
        top, done = k.newlabel('km'), k.newlabel('kmd')
        k.label(top)
        for i in range(4):
            k(f'buffer_load_dwordx4 {v(X+4*i,4)}, v1, {s(S_WS,4)}, {s(sT3)} offen offset:{i*1024} sc1')
        k('s_waitcnt vmcnt(0)')
        for op in rec.max_ops(range(X, X + 16), 4):
            k(op)
        k('v_cmp_eq_u32 vcc, -1, v4')
        k(f's_cbranch_vccz {done}')
        k('s_sleep 2')
        k(f's_sub_u32 {s(sBUD)}, {s(sBUD)}, 1')
        k(f's_cbranch_scc0 {top}')
        k(f's_mov_b32 {s(sBUD)}, 0')
        k.label(done)
        wstamp(k, 20)
    emit_att_task(k, sG, sP1, wait_kvm)
    k(f's_lshl_b32 {s(sF)}, {s(sG)}, 5'); k(f's_lshl_b32 {s(sT0)}, {s(sTASK)}, 2')
    k(f's_add_u32 {s(sF)}, {s(sF)}, {s(sT0)}'); k(f's_add_u32 {s(sF)}, {s(sF)}, {FL_ATT}')
    emit_signal(k, S_WS, sF, False, 4, 5)
    wstamp(k, 21)
    k(f's_add_u32 {s(sG)}, {s(sG)}, 3')
    k(f's_cmp_lt_u32 {s(sG)}, 64'); k(f's_cbranch_scc1 {atop}')

def build(as_list=True, diag=False):
    global DIAG
    DIAG = diag
    k = Asm()
    n = 'main_kernel' if as_list else NAME + '_kernel'
    k.raw(f'.globl {n}\n.p2align 8\n.type {n},@function'); k.label(n)
    if diag:
        k('s_memrealtime s[86:87]')
    if not rec.CFG.get('x_nocw'):
        k('s_getpc_b64 s[96:97]')
        k.label('main_pc')
        k('s_lshr_b32 s98, s2, 3'); k('s_and_b32 s98, s98, 31'); k('s_lshl_b32 s98, s98, 12')
        k('v_lshlrev_b32 v4, 7, v0'); k('v_add_u32 v4, s98, v4')
        k('v_mov_b32 v5, main_end - main_pc')
        k('v_min_u32 v4, v4, v5')
        k('v_cmp_gt_u32 vcc, 32, v0')
        k('s_and_saveexec_b64 s[98:99], vcc')
        k('s_cbranch_execz main_nocw')
        k('global_load_dword v6, v4, s[96:97]')
        k.label('main_nocw')
        k('s_mov_b64 exec, -1')
    rec.emit_role(k, 'main_end0')
    k(f's_cmp_ge_u32 {s(sX)}, 8'); k('s_cbranch_scc1 main_end0')
    k(f's_cmp_ge_u32 {s(sX)}, 2'); k('s_cbranch_scc1 main_worker')
    rec.emit_team(k, diag, 'main_end0')
    k.label('main_end0'); k('s_endpgm')
    k.label('main_worker')
    emit_worker(k, 'main_end')
    k.label('main_end'); k('s_endpgm')
    if as_list:
        head = f'; @launch kernel={n} grid=(256,1,1) block=(256,1,1) lds=163840\n'
    else:
        head = '; @launch grid=(256,1,1) block=(256,1,1) lds=163840\n'
    head += '.amdgcn_target "amdgcn-amd-amdhsa--gfx950"\n.text\n'
    return head + align.align(k.text()) + '.section .rodata,"a"\n' + desc(n, 512, 256)
if __name__ == '__main__':
    rec.CFG.update(fused=True)
    for a_ in sys.argv[1:]:
        if '=' in a_:
            kk, vv = a_.split('=', 1); rec.CFG[kk] = eval(vv)
    open('v2.s', 'w').write(build(True, 'diag' in sys.argv))
    hdr = open('cdna_kernels/' + NAME + '.s.ref').read().split('\n')[:16]
    open('v2_final.s', 'w').write('\n'.join(hdr) + '\n' + build(False, False))
```

```python
from asmlib import *
from layout import *
import tok

S_WS = 8
S_WQ, S_WK, S_WV, S_WO = 12, 16, 20, 24
S_M0 = 28
S_DBG = 32
sW, sH, sX, sFOR = 36, 37, 38, 39
sSTEP = 40
sPAW, sPAR = 41, 42
sMLR, sMRR = 43, 44
sMLW, sMRW, sMLZ, sMRZ = 45, 46, 47, 48
sKV, sOW, sPUBK, sGW = 49, 50, 51, 52
sRETRY, sPZ0, sPZ1, sPOL, sKNOWN, sKVF = 101, 4, 5, 6, 7, 3
sBUD = 53
sT0, sT1, sT2, sT3 = 54, 55, 56, 57
sC = 58
sMASK_LO8 = 60
sMASK_OW = 62
sMASK_LT32 = 64
sMASK_GE32 = 66
sCI = 68
sTS = 69
sTM = 70
sB0, sB1_, sB2_ = 90, 91, 92
sROWO, sROWR = 94, 95
sKVM0, sTCH = 93, 100
sHW, sHR, sMASK_H = 88, 89, 94
cMLR, cMRR, cMLW, cMRW = 96, 97, 98, 99

vL16, vL16X, vIDX, vPERM, vPAE, vPAS, vXW, vTR, vPUB, vLW0, vLW1, vLW2 = range(12)
ONES = 12
sLIM = 92
L_SEL, L_JUNK, L_TCH = 0, 13312, 1024
ACCQ, ACCK, ACCV, AW = 16, 20, 24, 28
SL = [44 + 8 * i for i in range(4)]
MISC = 76
VW0 = 80

L_M, L_QX, L_KX, L_R, L_OX, L_KT, L_VT = 2048, 2048, 4096, 8192, 9216, 16384, 24576

def opreg(i):
    return a(8 * i, 8) if i < 32 else v(VW0 + 8 * (i - 32), 8)
def opreg_pair(i, q):
    return a(8 * i + 2 * q, 2) if i < 32 else v(VW0 + 8 * (i - 32) + 2 * q, 2)

LDS_STAGES = [('v', c, 0) for c in range(5)] + [('o', 0, 0), ('o', 1, 0), ('o', 1, 2)]
G_STAGE = ('k', 9, 0)
ALL_STAGES = [(m, c, 0) for m in 'qkv' for c in range(10)] + [('o', u, p) for u in range(2) for p in range(3)]
REG_STAGES = [st for st in ALL_STAGES if st not in LDS_STAGES and st != G_STAGE]
import os
if os.environ.get('MIX'):
    _g = {m: [st for st in REG_STAGES if st[0] == m] for m in 'qkvo'}
    _mix = []
    while any(_g.values()):
        for m in 'qkvqko':
            if _g[m]:
                _mix.append(_g[m].pop(0))
    ORDER = [G_STAGE] + _mix + [LDS_STAGES[i] for i in range(8)]
else:
    ORDER = [G_STAGE] + REG_STAGES + LDS_STAGES
assert len(ORDER) == 36
PLACE = {}
_n = 0
for st in REG_STAGES:
    for t in range(2):
        PLACE[st + (t,)] = ('r', _n); _n += 1
assert _n == 54
for i, st in enumerate(LDS_STAGES):
    for t in range(2):
        PLACE[st + (t,)] = ('l', 32768 + 16384 * i + 8192 * t)
for t in range(2):
    PLACE[G_STAGE + (t,)] = ('g', 2048 * t)

CFG = dict(delay_a=64, delay_as=64, extra_a=1, gap_a=32, delay_b=48, extra_b=1, gap_b=32, rem_chk=20, delay_r=0, lead=0, touch_first=0, align=1, hint=0, hint_pos=(3, 6, 9), delay_h=4, hint_n=14, hint_early=1, v_before=4, delay_k=24, lim=0x53800000, fill=True, pol=0, fused=False, stamps=['top','preB1','locdone','preB2','B4','presm','preB5','wodone','pub'])

def lds_w_addr(off):
    return (vLW0, vLW1, vLW2)[off >> 16], off & 0xffff

def srd_fin(k, sreg, nbytes):
    k(f's_and_b32 {s(sreg+1)}, {s(sreg+1)}, 0xffff')
    k(f's_mov_b32 {s(sreg+2)}, {nbytes}')
    k(f's_mov_b32 {s(sreg+3)}, 0x20000')

def emit_role(k, exit_label):
    k('s_cmp_ge_u32 s2, 256')
    k(f's_cbranch_scc1 {exit_label}')
    for sr, ka in ((S_WS, A_WS), (S_WQ, A_WQ), (S_WK, A_WK), (S_WV, A_WV), (S_WO, A_WO), (S_M0, A_MEM0), (S_DBG, A_DBG)):
        k(f's_load_dwordx2 {s(sr,2)}, s[0:1], {ka}')
    k(f'v_lshrrev_b32 v1, 6, v0')
    k(f'v_and_b32 v0, 63, v0')
    k(f'v_readfirstlane_b32 {s(sW)}, v1')
    k(f's_getreg_b32 {s(sT0)}, hwreg(HW_REG_XCC_ID, 0, 4)')
    k(f's_and_b32 {s(sT0)}, {s(sT0)}, 7')
    k('s_waitcnt lgkmcnt(0)')
    for sr, nb in ((S_WS, WS_SIZE), (S_WQ, 5242880), (S_WK, 5242880), (S_WV, 5242880), (S_WO, 5242880), (S_M0, 10240), (S_DBG, 256)):
        srd_fin(k, sr, nb)
    lw, lt, lg, nc = k.newlabel('role_wait'), k.newlabel('role_try'), k.newlabel('role_got'), k.newlabel('role_nocal')
    k(f's_cmp_lg_u32 {s(sW)}, 0')
    k(f's_cbranch_scc1 {lw}')
    k(f's_mov_b32 {s(sX)}, {s(sT0)}')
    k('s_mov_b64 exec, 1')
    k('v_mov_b32 v5, 0')
    k(f's_cmp_lg_u32 {s(sT0)}, 0')
    k(f's_cbranch_scc1 {nc}')
    k(f's_lshr_b32 {s(sT1)}, s2, 3')
    k(f's_and_b32 {s(sT1)}, {s(sT1)}, 31')
    k(f's_lshl_b32 {s(sT1)}, {s(sT1)}, 7')
    k(f's_add_u32 {s(sT1)}, {s(sT1)}, {CAL}')
    k(f's_add_u32 {s(sT2)}, {s(sT1)}, 8192')
    k(f'buffer_store_dword v5, v5, {s(S_WS,4)}, {s(sT1)} offen sc1')
    k(f'buffer_store_dword v5, v5, {s(S_WS,4)}, {s(sT2)} offen sc1')
    k.label(nc)
    k(f's_mov_b32 {s(sT1)}, 1')
    k.label(lt)
    k('v_mov_b32 v2, 1')
    k(f's_lshl_b32 {s(sT2)}, {s(sX)}, 4')
    k(f's_cmp_lt_u32 {s(sX)}, 2')
    k(f's_cselect_b32 {s(sT3)}, 0, 96')
    k(f's_add_u32 {s(sT2)}, {s(sT2)}, {s(sT3)}')
    k(f'v_mov_b32 v3, {s(sT2)}')
    k(f'buffer_atomic_add v2, v3, {s(S_DBG,4)}, 0 offen sc0')
    k('s_waitcnt vmcnt(2)')
    k('s_memtime s[70:71]')
    k('s_waitcnt vmcnt(1)')
    k('s_memtime s[72:73]')
    k('s_waitcnt vmcnt(0)')
    k(f'v_readfirstlane_b32 {s(sH)}, v2')
    k(f's_cmp_lt_u32 {s(sH)}, 32')
    k(f's_cbranch_scc1 {lg}')
    k(f's_add_u32 {s(sT1)}, {s(sT1)}, 1')
    k(f's_and_b32 {s(sX)}, {s(sT1)}, 7')
    k(f's_cmp_lt_u32 {s(sT1)}, 10')
    k(f's_cbranch_scc1 {lt}')
    k(f's_mov_b32 {s(sX)}, 8')
    k.label(lg)
    k('s_waitcnt lgkmcnt(0)')
    k('s_sub_u32 s70, s72, s70')
    k('s_cmp_lt_u32 s70, 120')
    k(f's_cselect_b32 {s(sT1)}, 1, 0')
    k(f's_lshl_b32 {s(sT2)}, {s(sX)}, 8')
    k(f's_or_b32 {s(sT2)}, {s(sT2)}, {s(sH)}')
    k(f'v_mov_b32 v2, {s(sT2)}')
    k(f'v_mov_b32 v3, {s(sT1)}')
    k('ds_write_b64 v5, v[2:3]')
    k('s_mov_b64 exec, -1')
    k('s_waitcnt lgkmcnt(0)')
    k.label(lw)
    k('s_barrier')
    k('v_mov_b32 v3, 0')
    k('ds_read_b64 v[4:5], v3')
    k('s_waitcnt lgkmcnt(0)')
    k(f'v_readfirstlane_b32 {s(sT2)}, v4')
    k(f'v_readfirstlane_b32 {s(sPOL)}, v5')
    k(f's_and_b32 {s(sPOL)}, {s(sPOL)}, 1')
    k(f's_lshr_b32 {s(sX)}, {s(sT2)}, 8')
    k(f's_and_b32 {s(sH)}, {s(sT2)}, 31')
    k(f's_cmp_lg_u32 {s(sX)}, {s(sT0)}')
    k(f's_cselect_b32 {s(sFOR)}, 1, 0')
    k('s_barrier')

def bits(k, dst, L, spec, tmp, first=True):
    for i, (pos, width, sh) in enumerate(spec):
        k(f'v_bfe_u32 v{tmp}, v{L}, {pos}, {width}')
        if i == 0 and first:
            k(f'v_lshlrev_b32 v{dst}, {sh}, v{tmp}')
        else:
            k(f'v_lshl_add_u32 v{dst}, v{tmp}, {sh}, v{dst}')

def emit_setup(k):
    L, T = 20, 23
    k(f'v_mov_b32 v{L}, v0')
    k(f'v_lshlrev_b32 v{vL16}, 4, v{L}')
    k(f'v_xor_b32 v{vL16X}, 128, v{vL16}')
    k(f's_mov_b32 {s(sMASK_LO8)}, 0x00ff00ff')
    k(f's_mov_b32 {s(sMASK_LO8+1)}, 0x00ff00ff')
    k(f's_mov_b64 {s(sMASK_LT32,2)}, 0xffffffff')
    k(f's_not_b64 {s(sMASK_GE32,2)}, {s(sMASK_LT32,2)}')
    k(f's_not_b64 {s(sMASK_OW,2)}, {s(sMASK_LO8,2)}')
    k(f's_bitcmp1_b32 {s(sW)}, 0')
    k(f's_cselect_b64 {s(sMASK_OW,2)}, {s(sMASK_OW,2)}, {s(sMASK_LO8,2)}')
    k(f'v_mov_b32 v21, 0xeeee')
    k(f'v_mov_b32 v22, 0x4444')
    k(f'v_cndmask_b32 v{vIDX}, v21, v22, {s(sMASK_LO8,2)}')
    bits(k, vPERM, L, [(3, 1, 9), (4, 1, 8), (2, 1, 7), (5, 1, 6), (0, 2, 4)], T)
    bits(k, vPAE, L, [(3, 1, 14), (4, 2, 12), (0, 3, 4)], T)
    k(f's_lshl_b32 {s(sT0)}, {s(sW)}, 15')
    k(f'v_add_u32 v{vPAE}, {s(sT0)}, v{vPAE}')
    bits(k, vPAS, L, [(4, 2, 12), (0, 4, 3)], T)
    k(f's_lshl_b32 {s(sT0)}, {s(sW)}, 14')
    k(f's_add_u32 {s(sT0)}, {s(sT0)}, {32 * 4096}')
    k(f'v_add_u32 v{vPAS}, {s(sT0)}, v{vPAS}')
    bits(k, vXW, L, [(0, 4, 4), (4, 1, 3), (5, 1, 8)], T)
    k(f's_lshl_b32 {s(sT0)}, {s(sW)}, 9')
    k(f'v_add_u32 v{vXW}, {s(sT0)}, v{vXW}')
    bits(k, vTR, L, [(2, 4, 4), (0, 1, 3)], T)
    bits(k, vPUB, L, [(0, 4, 4), (4, 2, 2)], T)
    k(f's_lshl_b32 {s(sT0)}, {s(sW)}, 11')
    k(f'v_add_u32 v{vLW0}, {s(sT0)}, v{vL16}')
    k(f'v_add_u32 v{vLW1}, 0x10000, v{vLW0}')
    k(f'v_add_u32 v{vLW2}, 0x20000, v{vLW0}')
    k(f's_mov_b32 {s(sC)}, 0x3e0293ee')
    k(f's_mov_b32 {s(sC+1)}, 0x3e0293ee')
    k(f's_mov_b32 {s(sBUD)}, 0x40000')
    k(f's_lshr_b32 {s(sOW)}, {s(sW)}, 1')
    k(f's_lshl_b32 {s(sOW)}, {s(sOW)}, 11')
    l1, l2 = k.newlabel('ci'), k.newlabel('ci')
    k(f's_mov_b32 {s(sCI)}, {s(sH)}')
    k(f's_cmp_eq_u32 {s(sW)}, 0')
    k(f's_cbranch_scc1 {l1}')
    k(f's_add_u32 {s(sCI)}, {s(sH)}, 32')
    k(f's_cmp_lg_u32 {s(sW)}, 2')
    k(f's_cbranch_scc1 {l2}')
    k(f's_cmp_lt_u32 {s(sH)}, 16')
    k(f's_cbranch_scc1 {l1}')
    k.label(l2)
    k(f's_mov_b32 {s(sCI)}, -1')
    k.label(l1)
    k(f's_lshl_b32 {s(sT0)}, {s(sX)}, 5')
    k(f's_add_u32 {s(sT0)}, {s(sT0)}, {s(sH)}')
    k(f's_lshl_b32 {s(sT0)}, {s(sT0)}, 2')
    k(f's_add_u32 {s(sT0)}, {s(sT0)}, {s(sW)}')
    k(f's_lshl_b32 {s(sTS)}, {s(sT0)}, 13')
    k(f's_add_u32 {s(sTS)}, {s(sTS)}, {TS}')
    k(f's_lshl_b32 {s(sT0)}, {s(sT0)}, 12')
    k(f's_add_u32 {s(sGW)}, {s(sT0)}, {GW}')
    k(f's_lshl_b32 {s(sT0)}, {s(sH)}, 8')
    k(f's_lshl_b32 {s(sROWO)}, {s(sX)}, 21')
    k(f's_xor_b32 {s(sROWR)}, {s(sROWO)}, 0x200000')
    k(f's_add_u32 {s(sROWO)}, {s(sROWO)}, {s(sT0)}')
    k(f's_add_u32 {s(sROWR)}, {s(sROWR)}, {s(sT0)}')
    k(f's_lshl_b32 {s(sT0)}, {s(sX)}, 13')
    k(f's_add_u32 {s(sT0)}, {s(sT0)}, {MB}')
    k(f's_lshl_b32 {s(sT1)}, {s(sW)}, 11')
    k(f's_add_u32 {s(cMLR)}, {s(sT0)}, {s(sT1)}')
    k(f's_sub_u32 {s(cMLR)}, {s(cMLR)}, 2048')
    k(f's_lshl_b32 {s(sT1)}, {s(sCI)}, 7')
    k(f's_add_u32 {s(cMLW)}, {s(sT0)}, {s(sT1)}')
    k(f's_lshl_b32 {s(sT0)}, {s(sX)}, 12')
    k(f's_add_u32 {s(sT0)}, {s(sT0)}, {MB + 16384 + 8192 * CFG["pol"]}')
    k(f's_add_u32 {s(cMRW)}, {s(sT0)}, {s(sT1)}')
    k(f's_xor_b32 {s(sT0)}, {s(sT0)}, 4096')
    k(f's_lshl_b32 {s(sT1)}, {s(sW)}, 10')
    k(f's_add_u32 {s(cMRR)}, {s(sT0)}, {s(sT1)}')

def emit_loader(k, early=None):
    L, T = 20, 23
    vQ, vOE, vOS = 24, 25, 26
    rE, rS, rO = 27, 28, 29
    tA, tB = 30, 31
    k(f's_lshl_b32 {s(sT0)}, {s(sW)}, 4')
    k(f'v_lshrrev_b32 v21, 4, v{L}')
    k(f'v_add_u32 v21, {s(sT0)}, v21')
    k(f'v_lshlrev_b32 v{vQ}, 13, v21')
    bits(k, vQ, L, [(0, 4, 4)], T, first=False)
    k(f'v_mul_u32_u24 v{vOS}, 1280, v21')
    k(f'v_mov_b32 v{vOE}, v{vOS}')
    bits(k, vOE, L, [(2, 2, 7), (0, 2, 4)], T, first=False)
    bits(k, vOS, L, [(0, 4, 4)], T, first=False)
    def rowexpr(dst, sh_r0, sh_r1, sh_g0, sh_g1):
        bits(k, dst, L, [(0, 2, 3), (3, 1, 5), (2, 1, 8 + sh_r0), (3, 1, 8 + sh_r1), (4, 1, 8 + sh_g0), (5, 1, 8 + sh_g1)], T)
        k(f's_lshl_b32 {s(sT0)}, {s(sW)}, 6')
        k(f'v_add_u32 v{dst}, {s(sT0)}, v{dst}')
    rowexpr(rE, 0, 3, 1, 4)
    rowexpr(rS, 1, 5, 2, 4)
    rowexpr(rO, 0, 5, 4, 2)
    sbit = {'E': 256 << 3, 'S': 256 << 5, 'O': 256 << 5}
    qrow = {'E': lambda q: 32 * (q >> 1) + 4 * (q & 1), 'S': lambda q: (q >> 1) + 8 * (q & 1), 'O': lambda q: 8 * (q >> 1) + 2 * (q & 1)}
    sWOE, sWOS, sQS, sM0W = sPAW, sPAR, sMLR, sMRR
    k(f's_mul_i32 {s(sWOS)}, {s(sH)}, 163840')
    k(f's_lshl_b32 {s(sT0)}, {s(sX)}, 9')
    k(f's_add_u32 {s(sWOE)}, {s(sWOS)}, {s(sT0)}')
    k(f's_add_u32 {s(sWOS)}, {s(sWOS)}, 1024')
    k(f's_lshl_b32 {s(sQS)}, {s(sH)}, 8')
    k(f's_add_u32 {s(sQS)}, {s(sQS)}, {512 * 8192}')
    k(f's_lshl_b32 {s(sM0W)}, {s(sW)}, 12')
    vm = []
    def issue(i):
        mat, c, p = ORDER[i]
        slot = ((i + 4) % 10) * 16384
        for j in range(4):
            if mat == 'o':
                sr = S_WO
                if p < 2:
                    base, vo, off = sWOE, vOE, c * 64 * 1280 + 64 * p + j * 4 * 1280
                else:
                    base, vo, off = sWOS, vOS, c * 64 * 1280 + j * 4 * 1280
            else:
                sr = {'q': S_WQ, 'k': S_WK, 'v': S_WV}[mat]
                vo = vQ
                if c < 4:
                    base, off = sROWO, c * 64 * 8192
                elif c < 6:
                    base, off = sQS, (c - 4) * 64 * 8192
                else:
                    base, off = sROWR, (c - 6) * 64 * 8192
                off += j * 4 * 8192
            k(f's_add_u32 {s(sT0)}, {s(base)}, {off}')
            k(f's_add_u32 m0, {s(sM0W)}, {slot + j * 1024}')
            k(f'buffer_load_dwordx4 v{vo}, {s(sr,4)}, {s(sT0)} offen{CFG.get("ldmod", "")} lds')
            vm.append(i)
    DEPTH = CFG.get('depth', 8)
    LEAD = CFG['lead']
    k(f's_lshl_b32 {s(sT0)}, {s(sH)}, 14')
    k(f's_lshl_b32 {s(sT1)}, {s(sW)}, 12')
    k(f's_add_u32 {s(sT0)}, {s(sT0)}, {s(sT1)}')
    k(f's_lshl_b32 {s(sT1)}, {s(sH)}, 8')
    k(f's_sub_u32 {s(sT0)}, {s(sT0)}, {s(sT1)}')
    k(f'v_lshlrev_b32 v38, 6, v{L}')
    k(f'v_add_u32 v38, {s(sT0)}, v38')
    def touch(i):
        if not LEAD or i >= 36:
            return
        mat, c, p = ORDER[i]
        if mat == 'o':
            return
        sr = {'q': S_WQ, 'k': S_WK, 'v': S_WV}[mat]
        if c < 4:
            base, off = sROWO, c * 64 * 8192
        elif c < 6:
            base, off = sQS, (c - 4) * 64 * 8192
        else:
            base, off = sROWR, (c - 6) * 64 * 8192
        k(f's_add_u32 {s(sT0)}, {s(base)}, {off}')
        k(f'buffer_load_dword v37, v38, {s(sr,4)}, {s(sT0)} offen')
        vm.append('t')
    if CFG['touch_first']:
        for i in range(DEPTH + LEAD):
            touch(i)
    for i in range(DEPTH):
        issue(i)
    if not CFG['touch_first']:
        for i in range(DEPTH, DEPTH + LEAD):
            touch(i)
    TMP = [44, 60]
    pending = None
    def writeback(pend):
        regs, offs = pend
        for r, off in zip(regs, offs):
            b, imm = lds_w_addr(off)
            k(f'ds_write_b128 v{b}, {v(r,4)} offset:{imm}')
            k(f'ds_write_b128 v{b}, {v(r+4,4)} offset:{imm + 1024}')
    for i in range(36):
        mat, c, p = ORDER[i]
        slot = ((i + 4) % 10) * 16384
        last = max(ix for ix, t in enumerate(vm) if t == i)
        k(f's_waitcnt vmcnt({len(vm) - 1 - last}) lgkmcnt(0)')
        k('s_barrier')
        if pending:
            writeback(pending); pending = None
        kind = 'O' if mat == 'o' else ('S' if c in (4, 5) else 'E')
        rb = {'E': rE, 'S': rS, 'O': rO}[kind]
        k(f'v_add_u32 v{tA}, {slot}, v{rb}')
        k(f'v_xor_b32 v{tB}, {sbit[kind]}, v{tA}')
        tmp = TMP[i & 1]
        wb_regs, wb_offs, g_regs = [], [], []
        for t in range(2):
            pl = PLACE[(mat, c, p, t)]
            for q in range(4):
                dst = opreg_pair(pl[1], q) if pl[0] == 'r' else v(tmp + 8 * t + 2 * q, 2)
                k(f'ds_read_b64_tr_b16 {dst}, v{(tA, tB)[t]} offset:{qrow[kind](q) * 256}')
            if pl[0] == 'l':
                wb_regs.append(tmp + 8 * t); wb_offs.append(pl[1])
            if pl[0] == 'g':
                g_regs.append((tmp + 8 * t, pl[1]))
        if wb_regs:
            pending = (wb_regs, wb_offs)
        if g_regs:
            k('s_waitcnt lgkmcnt(0)')
            for r, off in g_regs:
                k(f'buffer_store_dwordx4 {v(r,4)}, v{vL16}, {s(S_WS,4)}, {s(sGW)} offen offset:{off}')
                k(f'buffer_store_dwordx4 {v(r+4,4)}, v{vL16}, {s(S_WS,4)}, {s(sGW)} offen offset:{off + 1024}')
                vm += ['g', 'g']
        touch(i + DEPTH + LEAD)
        if i + DEPTH < 36:
            issue(i + DEPTH)
        if early and i in early:
            vm.extend(['e'] * early[i]())
    k('s_waitcnt vmcnt(0) lgkmcnt(0)')
    k('s_barrier')
    writeback(pending)
    k('s_waitcnt lgkmcnt(0)')

def stamp(k, name, diag):
    if diag and name in CFG['stamps']:
        idx = CFG['stamps'].index(name)
        op = 's_memrealtime' if CFG.get('rt') else 's_memtime'
        k(f'{op} {s(sTM + 2 * idx, 2)}')

def max_ops(regs, tmp):
    regs = list(regs)
    out = [f'v_max3_u32 v{tmp}, v{regs[0]}, v{regs[1]}, v{regs[2]}']
    rest = regs[3:]
    while rest:
        if len(rest) >= 2:
            out.append(f'v_max3_u32 v{tmp}, v{tmp}, v{rest[0]}, v{rest[1]}'); rest = rest[2:]
        else:
            out.append(f'v_max_u32 v{tmp}, v{tmp}, v{rest[0]}'); rest = rest[1:]
    return out

def retry_branch(k, tmp, retry_stub):
    k(f'v_cmp_eq_u32 vcc, {-1 if not CFG.get("x_nocomm") else 17}, v{tmp}')
    k(f's_cbranch_vccnz {retry_stub}')

def masked_retry_stub(k, stub, check, cont, loads, depth):
    k.label(stub)
    k(f's_sub_u32 {s(sBUD)}, {s(sBUD)}, 1')
    giveup = k.newlabel('giveup')
    k(f's_cbranch_scc1 {giveup}')
    k('s_mov_b64 exec, vcc')
    for op in loads:
        k(op)
    k('s_mov_b64 exec, -1')
    k(f's_branch {check}')
    k.label(giveup)
    k(f's_mov_b32 {s(sBUD)}, 0')
    k(f's_branch {cont}')

def offsets_ops():
    return [
        f's_and_b32 {s(sPZ0)}, {s(sSTEP)}, 1',
        f's_sub_u32 {s(sPZ1)}, 0, {s(sPZ0)}',
        f's_add_u32 {s(sT0)}, {s(sSTEP)}, 1',
        f's_and_b32 {s(sT0)}, {s(sT0)}, 3',
        f's_lshl_b32 {s(sT0)}, {s(sT0)}, 15',
        f's_add_u32 {s(sMLR)}, {s(sT0)}, {s(cMLR)}',
        f's_add_u32 {s(sMRR)}, {s(sT0)}, {s(cMRR)}',
        f's_add_u32 {s(sMLW)}, {s(sT0)}, {s(cMLW)}',
        f's_add_u32 {s(sMRW)}, {s(sT0)}, {s(cMRW)}',
        f's_xor_b32 {s(sMLZ)}, {s(sMLW)}, 0x10000',
        f's_xor_b32 {s(sMRZ)}, {s(sMRW)}, 0x10000',
    ]

def emit_publish(k, val, sc, remote):
    k(f's_mov_b64 exec, {s(sMASK_LO8,2)}')
    k(f'buffer_store_dword v{val}, v{vPUB}, {s(S_WS,4)}, {s(sMLW)} offen{sc}')
    if remote:
        k(f'buffer_store_dword v{val}, v{vPUB}, {s(S_WS,4)}, {s(sMRW)} offen sc1')
    k('s_mov_b64 exec, -1')

def k_dma_ops():
    return [f's_mov_b32 m0, {s(sKVM0)}'] + [f'buffer_load_dwordx4 v{vL16}, {s(S_WS,4)}, {s(sKV)} offen offset:{j * 1024} sc1 lds' for j in range(2)]
def v_dma_ops():
    return [f's_add_u32 m0, {s(sKVM0)}, 8192', f's_add_u32 {s(sT1)}, {s(sKV)}, 8192'] + [f'buffer_load_dwordx4 v{vL16}, {s(S_WS,4)}, {s(sT1)} offen offset:{j * 1024} sc1 lds' for j in range(2)]

def lds_op_read_ops(key, dst):
    b, imm = lds_w_addr(PLACE[key][1])
    return [f'ds_read_b128 {v(dst,4)}, v{b} offset:{imm}', f'ds_read_b128 {v(dst+4,4)}, v{b} offset:{imm + 1024}']

class LG:
    def __init__(self, k):
        self.k = k; self.q = []
    def op(self, text, tag):
        self.k(text); self.q.append(tag)
    def wait(self, tag):
        if tag in self.q:
            last = max(i for i, t in enumerate(self.q) if t == tag)
            self.k(f's_waitcnt lgkmcnt({min(len(self.q) - 1 - last, 15)})')
            del self.q[:last + 1]
    def drain(self):
        self.k('s_waitcnt lgkmcnt(0)'); self.q = []

def delay(k, n):
    if CFG.get('use_sleep', 1):
        if n >= 12:
            k(f's_sleep {(n + 4) // 16}')
        return
    while n > 0:
        m = min(n, 16); k(f's_nop {m-1}'); n -= m


def kv_flag_wait(k, t0, t1):
    top, done = k.newlabel('kvf'), k.newlabel('kvd')
    k(f'v_lshrrev_b32 v{t0}, 2, v{vL16}')
    k(f'v_min_u32 v{t0}, 64, v{t0}')
    k.label(top)
    k(f'buffer_load_dword v{t1}, v{t0}, {s(S_WS,4)}, {s(sKVF)} offen sc1')
    k('s_waitcnt vmcnt(0)')
    k(f'v_cmp_gt_u32 vcc, 2, v{t1}')
    k(f's_ff1_i32_b64 {s(sKNOWN)}, vcc')
    k(f's_lshl_b32 {s(sKNOWN)}, {s(sKNOWN)}, 2')
    k(f's_cmp_eq_u32 {s(sKNOWN)}, 64')
    k(f's_cselect_b32 {s(sKNOWN)}, 128, {s(sKNOWN)}')
    k(f's_add_u32 {s(sT0)}, {s(sSTEP)}, 2')
    k(f's_cmp_lt_u32 {s(sT0)}, {s(sKNOWN)}')
    k(f's_cbranch_scc1 {done}')
    k('s_sleep 2')
    k(f's_sub_u32 {s(sBUD)}, {s(sBUD)}, 1')
    k(f's_cbranch_scc0 {top}')
    k(f's_mov_b32 {s(sBUD)}, 0')
    k(f's_mov_b32 {s(sKNOWN)}, 128')
    k.label(done)

def diag_store(k):
    R_ = SL[1]
    k('s_waitcnt lgkmcnt(0)')
    for i in range(9):
        k(f'v_writelane_b32 v{R_}, {s(sTM + 2*i)}, {i}')
    k(f'v_writelane_b32 v{R_}, {s(sB0)}, 9')
    k(f'v_writelane_b32 v{R_}, {s(sB1_)}, 10')
    k(f'v_writelane_b32 v{R_}, {s(sBUD)}, 11')
    k(f'v_lshrrev_b32 v{R_+1}, 2, v{vL16}')
    k('s_mov_b64 exec, 0xffff')
    k(f'buffer_store_dword v{R_}, v{R_+1}, {s(S_WS,4)}, {s(sTS)} offen')
    k('s_mov_b64 exec, -1')
    k(f's_add_u32 {s(sTS)}, {s(sTS)}, 64')

M0V = 32

def emit_m0_loads(k):
    nocons = k.newlabel('nocons')
    k(f's_cmp_eq_u32 {s(sCI)}, -1')
    k(f's_cbranch_scc1 {nocons}')
    bits(k, 21, 20, [(4, 1, 2), (5, 1, 1)], 23)
    k(f'v_bfe_u32 v22, v20, 2, 1')
    k(f'v_and_b32 v23, 3, v20')
    k(f's_and_b32 {s(sT0)}, {s(sCI)}, 1')
    k(f's_lshl_b32 {s(sT0)}, {s(sT0)}, 2')
    k(f'v_add_u32 v23, {s(sT0)}, v23')
    k(f'v_mul_u32_u24 v23, 1280, v23')
    k(f's_and_b32 {s(sT2)}, {s(sCI)}, 2')
    k(f's_lshl_b32 {s(sT2)}, {s(sT2)}, 3')
    shr, cont = k.newlabel('shr'), k.newlabel('cont')
    k(f's_cmp_ge_u32 {s(sCI)}, 32')
    k(f's_cbranch_scc1 {shr}')
    k(f's_lshr_b32 {s(sT0)}, {s(sCI)}, 3')
    k(f's_lshl_b32 {s(sT0)}, {s(sT0)}, 6')
    k(f's_and_b32 {s(sT1)}, {s(sCI)}, 4')
    k(f's_lshl_b32 {s(sT1)}, {s(sT1)}, 1')
    k(f's_add_u32 {s(sT0)}, {s(sT0)}, {s(sT1)}')
    k(f's_lshl_b32 {s(sT1)}, {s(sX)}, 8')
    k(f's_add_u32 {s(sT0)}, {s(sT0)}, {s(sT1)}')
    k(f's_add_u32 {s(sT0)}, {s(sT0)}, {s(sT2)}')
    k(f'v_lshl_add_u32 v24, v22, 5, v21')
    k(f'v_add_u32 v24, {s(sT0)}, v24')
    k(f'v_add_u32 v25, 1, v24')
    k(f's_branch {cont}')
    k.label(shr)
    k(f's_sub_u32 {s(sT0)}, {s(sCI)}, 32')
    k(f's_lshr_b32 {s(sT0)}, {s(sT0)}, 2')
    k(f's_lshl_b32 {s(sT0)}, {s(sT0)}, 5')
    k(f's_add_u32 {s(sT0)}, {s(sT0)}, 512')
    k(f's_add_u32 {s(sT0)}, {s(sT0)}, {s(sT2)}')
    k(f'v_lshl_add_u32 v24, v21, 1, v22')
    k(f'v_add_u32 v24, {s(sT0)}, v24')
    k(f'v_add_u32 v25, 2, v24')
    k.label(cont)
    k(f'v_lshl_add_u32 v24, v24, 1, v23')
    k(f'v_lshl_add_u32 v25, v25, 1, v23')
    k(f'buffer_load_ushort v{M0V}, v24, {s(S_M0,4)}, 0 offen')
    k(f'buffer_load_ushort v{M0V+1}, v25, {s(S_M0,4)}, 0 offen')
    k.label(nocons)

def emit_prologue(k, sc_label_pairs):
    k(f's_mov_b32 {s(sSTEP)}, -1')
    k(f'v_lshrrev_b32 v20, 4, v{vL16}')
    bits(k, 21, 20, [(0, 1, 4)], 23)
    k(f'v_mov_b32 v22, 0x3f80')
    k(f'v_lshlrev_b32 v21, v21, v22')
    k(f'v_bfe_u32 v22, v20, 1, 3')
    for i in range(4):
        k(f'v_cmp_eq_u32 vcc, {i}, v22')
        k(f'v_cndmask_b32 v{24+i}, 0, v21, vcc')
    k(f'ds_write_b128 v{vL16}, v[24:27] offset:{L_SEL}')
    for i in range(4):
        k(f'v_mov_b32 v{ONES+i}, 0x3f803f80')
    k(f's_mov_b32 {s(sLIM)}, {CFG["lim"]}')
    k(f's_mul_i32 {s(sT0)}, {s(sX)}, {PA_BT}')
    k(f's_add_u32 {s(sT0)}, {s(sT0)}, {PA}')
    k(f's_lshl_b32 {s(sT1)}, {s(sH)}, 7')
    k(f's_add_u32 {s(sPAW)}, {s(sT0)}, {s(sT1)}')
    k(f's_lshl_b32 {s(sT1)}, {s(sCI)}, 12')
    k(f's_add_u32 {s(sPAR)}, {s(sT0)}, {s(sT1)}')
    for op in offsets_ops():
        k(op)
    k(f's_lshl_b32 {s(sKV)}, {s(sH)}, 14')
    k(f's_lshl_b32 {s(sT0)}, {s(sW)}, 11')
    k(f's_add_u32 {s(sKV)}, {s(sKV)}, {s(sT0)}')
    k(f's_add_u32 {s(sKV)}, {s(sKV)}, {KV}')
    k(f's_add_u32 {s(sKVM0)}, {s(sT0)}, {L_KT}')
    k(f's_lshl_b32 {s(sT0)}, {s(sH)}, 12')
    k(f's_add_u32 {s(sT0)}, {s(sT0)}, {KVM}')
    k(f's_lshl_b32 {s(sT1)}, {s(sW)}, 10')
    k(f's_add_u32 {s(sT0)}, {s(sT0)}, {s(sT1)}')
    k(f's_cmp_eq_u32 {s(sX)}, 0')
    k(f's_cselect_b32 {s(sPUBK)}, {s(sT0)}, 0x40000000')
    k(f's_mov_b32 {s(sRETRY)}, 0')
    k(f's_lshl_b32 {s(sT0)}, {s(sX)}, 10')
    k(f's_add_u32 {s(sT0)}, {s(sT0)}, {HINT}')
    k(f's_lshl_b32 {s(sT1)}, {s(sH)}, 2')
    k(f's_add_u32 {s(sHW)}, {s(sT0)}, {s(sT1)}')
    k(f's_and_b32 {s(sT1)}, {s(sH)}, 3')
    k(f's_lshl_b32 {s(sT1)}, {s(sT1)}, 8')
    k(f's_add_u32 {s(sHR)}, {s(sT0)}, {s(sT1)}')
    k(f's_mov_b32 {s(sMASK_H)}, 0x00010001')
    k(f's_mov_b32 {s(sMASK_H+1)}, 0x00010001')
    k(f'v_lshl_or_b32 v26, v{M0V+1}, 16, v{M0V}')
    if CFG['fused']:
        k(f's_lshl_b32 {s(sKVF)}, {s(sH)}, 7')
        k(f's_add_u32 {s(sKVF)}, {s(sKVF)}, {FL_KV}')
        kv_flag_wait(k, 28, 29)
    bits(k, 28, 20, [(0, 5, 6), (5, 1, 13)], 23)
    k(f'ds_write_b32 v{vL16}, v28 offset:{L_TCH}')
    k(f's_add_u32 {s(sTCH)}, {s(sKV)}, {32 * 16384}')
    for op in k_dma_ops() + v_dma_ops():
        k(op)
    k(f's_mov_b32 m0, {L_JUNK}')
    k(f'buffer_load_dword v28, {s(S_WS,4)}, {s(sTCH)} offen sc1 lds')
    k('s_waitcnt lgkmcnt(0)')

def emit_loop(k, glob, diag, end_label, cons, poller, name):
    sc = ' sc1' if glob else ''
    top = f'rec_top_{name}'
    SMF = 'v_smfmac_f32_16x16x64_bf16'
    MF32 = 'v_mfma_f32_16x16x32_bf16'
    MF16 = 'v_mfma_f32_16x16x16_bf16'
    FILL = f'v_mov_b32 v{vPUB}, v{vPUB}'
    A0, A1, A2, A3 = AW, AW + 4, AW + 8, AW + 12
    stubs = []
    MV = ACCK
    def pub_local():
        k(f's_mov_b64 exec, {s(sMASK_LO8,2)}')
        k(f'buffer_store_dword v{MV}, v{vPUB}, {s(S_WS,4)}, {s(sMLW)} offen{sc}')
        if cons == 'E' and CFG['delay_r'] == 0 and not CFG.get('x_nox'):
            k(f'buffer_store_dword v{MV}, v{vPUB}, {s(S_WS,4)}, {s(sMRW)} offen sc1')
        k('s_mov_b64 exec, -1')
    k.label(f'rec_entry_{name}')
    if cons:
        k(f'v_mov_b32 v{MV}, v26')
        pub_local()
        if diag:
            k(f's_sub_u32 {s(sTS)}, {s(sTS)}, 64')
    if CFG['fill']:
        k.filler(FILL)
    k.raw(';@align on' if CFG['align'] and not glob else '.p2align 3')
    k.label(top)
    k(f's_add_u32 {s(sSTEP)}, {s(sSTEP)}, 1')
    if not cons:
        stamp(k, 'top', diag)
    PL = SL[0]
    seq = [(m, c, 0, t) for c in range(6) for t in range(2) for m in 'qkv']
    lds_ops = [key for key in seq if PLACE[key][0] == 'l']
    slot_of = {}
    nxt = 0
    prep = []
    for sl in (SL[1], SL[2], SL[3]):
        slot_of[lds_ops[nxt]] = sl
        prep += lds_op_read_ops(lds_ops[nxt], sl)
        nxt += 1
    prep += [f'v_mov_b64 {v(MISC,2)}, -1', f'v_mov_b64 {v(MISC+2,2)}, -1']
    zero = [f'v_mov_b64 {v(r,2)}, 0' for r in range(ACCQ, ACCQ + 12, 2)]
    resets = []
    if cons:
        resets += ['s_mov_b64 exec, 0xff', f'buffer_store_dwordx4 {v(MISC,4)}, v{vL16}, {s(S_WS,4)}, {s(sMLZ)} offen{sc}', 's_mov_b64 exec, -1']
    pl_ops = [f'buffer_load_dwordx4 {v(PL+4*j,4)}, v{vPERM}, {s(S_WS,4)}, {s(sMLR)} offen offset:{1024*j} sc1' for j in range(2)]
    def kvcheck():
        if CFG['fused']:
            kvs, kvc = k.newlabel('kv_stub'), k.newlabel('kv_cont')
            k(f's_add_u32 {s(sT0)}, {s(sSTEP)}, 2')
            k(f's_cmp_ge_u32 {s(sT0)}, {s(sKNOWN)}')
            k(f's_cbranch_scc1 {kvs}')
            k.label(kvc)
            stubs.append(('kv', kvs, kvc))
    if cons:
        k('s_barrier')
        if diag:
            diag_store(k)
            stamp(k, 'top', diag)
    for op in prep:
        k(op)
    if cons != 'E':
        for op in zero:
            k(op)
    if cons != 'E':
        kvcheck()
    if not cons:
        k('s_barrier')
    if not glob and not poller:
        for op in resets:
            k(op)
    if poller:
        delay(k, CFG['delay_b'] if not cons else max(CFG['delay_b'] - 20, 0))
        check, stub, cont = k.newlabel('pl_check'), k.newlabel('pl_stub'), k.newlabel('pl_cont')
        stamp(k, 'l_issue', diag)
        for op in pl_ops:
            k(op)
        if not glob:
            for op in resets:
                k(op)
        for _ in range(CFG['extra_b']):
            delay(k, CFG['gap_b'])
            for op in pl_ops:
                k(op)
        k.label(check)
        k(f's_waitcnt vmcnt({2 * CFG["extra_b"]})')
        for op in max_ops(range(PL, PL + 8), A3):
            k(op)
        for j in range(2):
            k(f'ds_write_b128 v{vLW0}, {v(PL+4*j,4)} offset:{L_M - 2048 + 1024*j}')
        retry_branch(k, A3, stub)
        stubs.append(('m', stub, check, cont, pl_ops))
        k.label(cont)
    else:
        k(f's_waitcnt vmcnt({(1 if CFG["delay_r"] or CFG.get("x_nox") else 2) + (0 if glob else 1) + (1 if diag else 0)})')
        if CFG['delay_r']:
            delay(k, CFG['delay_r'])
            k(f's_mov_b64 exec, {s(sMASK_LO8,2)}')
            k(f'buffer_store_dword v{MV}, v{vPUB}, {s(S_WS,4)}, {s(sMRW)} offen sc1')
            k('s_mov_b64 exec, -1')
        k(f'v_mov_b32 v{SL[0]}, -1')
        for op in zero:
            k(op)
        kvcheck()
    if glob:
        for op in resets:
            k(op)
    if diag:
        k(f's_mov_b32 {s(sB0)}, {s(sBUD)}')
    rem_load = f'buffer_load_dwordx4 {v(MISC,4)}, v{vPERM}, {s(S_WS,4)}, {s(sMRR if not CFG.get("x_nox") else sGW)} offen sc1'
    k('s_waitcnt lgkmcnt(0)')
    stamp(k, 'preB1', diag)
    k('s_barrier')
    stamp(k, 'B1', diag)
    lg = LG(k)
    acc = {'q': ACCQ, 'k': ACCK, 'v': ACCV}
    def rdA(i):
        return f'ds_read_b128 {v(AW + 4*(i%4),4)}, v{(vL16, vL16X)[i&1]} offset:{L_M + 1024*(i>>1)}'
    for i in range(4):
        lg.op(rdA(i), ('A', i))
    k(rem_load)
    nlater = 0
    mrz = [f's_mov_b64 exec, {s(sMASK_LO8,2)}', f'buffer_store_dword v{SL[0]}, v{vPUB}, {s(S_WS,4)}, {s(sMRZ)} offen sc1', 's_mov_b64 exec, -1']
    if cons == 'E':
        nlater += 1
    def gl(t, h):
        return f'buffer_load_dwordx4 {v(SL[t]+4*h,4)}, v{vL16}, {s(S_WS,4)}, {s(sGW)} offen offset:{2048*t+1024*h}'
    RA = [SL[2], SL[2] + 4, SL[3], SL[3] + 4, A0, A1, A2, A3]
    def rdR(i):
        return ('lg', f'ds_read_b128 {v(RA[i],4)}, v{(vL16, vL16X)[i&1]} offset:{L_R + 2048*(i>>1)}', ('R', i))
    side = {}
    def put(i, op, front=False):
        lst = side.setdefault(i, [])
        lst.insert(0, op) if front else lst.append(op)
    RC = CFG['rem_chk']
    CKR = MISC
    rstub, rcont = k.newlabel('rem_stub'), k.newlabel('rem_cont')
    mo = max_ops(range(MISC, MISC + 4), CKR)
    vd = v_dma_ops()
    kd = k_dma_ops()
    if cons == 'E':
        for op in mrz:
            put(0, op)
    put(1, gl(0, 0)); put(4, gl(0, 1))
    nlater += 2
    put(RC, ('fn', lambda: stamp(k, 'remchk', diag)))
    put(RC, f's_waitcnt vmcnt({nlater})')
    put(RC, ('lg', f'ds_write_b128 v{vLW0}, {v(MISC,4)} offset:{L_R}', 'rw'))
    put(RC + 2, mo[0])
    put(RC + 3, mo[1])
    put(RC + 4, f'v_cmp_eq_u32 vcc, {-1 if not (CFG.get("x_nocomm") or CFG.get("x_nox")) else 17}, v{CKR}')
    put(RC + 5, f's_cbranch_vccnz {rstub}'); put(RC + 5, ('lab', rcont))
    put(RC + 6, ('lg', f'ds_read_b32 v{MISC}, v{vL16} offset:{L_TCH}', 'tch'))
    stubs.append(('r', rstub, rcont, rem_load, mo, CKR))
    put(29, ('fn', lambda: (lg.drain(), stamp(k, 'preB2', diag), k('s_barrier'))))
    put(29, rdR(0)); put(30, rdR(1)); put(31, rdR(2)); put(32, rdR(3)); put(33, rdR(4)); put(34, rdR(5)); put(35, rdR(6))
    uses_left = {sl: 0 for sl in SL}
    for i, key in enumerate(seq):
        m, c, _, t = key
        ai = 2 * c + t
        lg.wait(('A', ai))
        pl = PLACE[key]
        if pl[0] == 'r':
            B = opreg(pl[1])
        else:
            lg.wait(key); B = v(slot_of[key], 8)
        k(f'{SMF} {v(acc[m],4)}, {v(AW+4*(ai%4),4)}, {B}, v{vIDX}')
        if pl[0] != 'r':
            if nxt < len(lds_ops) and not (slot_of[key] == SL[1] and len(lds_ops) - nxt <= 1):
                nk_ = lds_ops[nxt]; slot_of[nk_] = slot_of[key]; nxt += 1
                ops = lds_op_read_ops(nk_, slot_of[key])
                lg.op(ops[0], nk_)
                put(i + 1, ('lg', ops[1], nk_), True)
            elif slot_of[key] == SL[1]:
                assert i <= RC + 1, i
                put(RC + 1, gl(1, 0)); put(RC + 1, gl(1, 1))
        if m == 'v' and ai + 4 < 12:
            put(i + 2, ('lg', rdA(ai + 4), ('A', ai + 4)), True)
        for op in side.get(i, []):
            if isinstance(op, tuple):
                if op[0] == 'lg':
                    lg.op(op[1], op[2])
                elif op[0] == 'lab':
                    k.label(op[1])
                else:
                    op[1]()
            else:
                k(op)
    assert nxt == len(lds_ops)
    if diag:
        k(f's_mov_b32 {s(sB1_)}, {s(sBUD)}')
    stamp(k, 'locdone', diag)
    salu = [f's_add_u32 {s(sTCH)}, {s(sKV)}, {64 * 16384}', f's_mov_b32 m0, {L_JUNK}'] + offsets_ops() + [f's_add_u32 {s(sKV)}, {s(sKV)}, {32 * 16384}']
    def rm(n):
        m = 'qkv'[n // 8]; i = n % 8
        lg.wait(('R', i))
        if n == 14:
            stamp(k, 'g0', diag)
            k('s_waitcnt vmcnt(1)')
            stamp(k, 'g1', diag)
        pl = PLACE[(m, 6 + (i>>1), 0, i&1)]
        B = opreg(pl[1]) if pl[0] == 'r' else v(SL[i & 1], 8)
        k(f'{SMF} {v(acc[m],4)}, {v(RA[i],4)}, {B}, v{vIDX}')
        if salu:
            k(salu.pop(0))
    F = MISC
    rm(0); lg.op(*rdR(7)[1:])
    rm(1)
    rm(2)
    k(f'buffer_load_dword v{F}, {s(S_WS,4)}, {s(sTCH)} offen sc1 lds')
    for n in range(3, 10):
        rm(n)
    for i in range(4):
        k(f'v_mul_f32 v{ACCQ+i}, {s(sC)}, v{ACCQ+i}')
        rm(10 + i)
    k(f'v_cvt_pk_bf16_f32 v{F}, v{ACCQ}, v{ACCQ+1}')
    rm(14)
    k(f'v_cvt_pk_bf16_f32 v{F+1}, v{ACCQ+2}, v{ACCQ+3}')
    rm(15)
    lg.op(f'ds_write_b64 v{vXW}, {v(F,2)} offset:{L_QX}', 'qw')
    assert not salu
    QTR = [SL[0], SL[0] + 4, SL[1], SL[1] + 4]
    KMR = RA[:4]
    def qrd(j, hh):
        lg.op(f'ds_read_b64_tr_b16 {v(QTR[j]+2*hh,2)}, v{vTR} offset:{L_QX + j*512 + hh*256}', ('qt', j))
    def ktrd(kt, j):
        lg.op(f'ds_read_b128 {v(RA[4*kt+j],4)}, v{vL16} offset:{L_KT + kt*4096 + j*1024}', ('kt', kt, j))
    def kmrd(j):
        for hh in range(2):
            lg.op(f'ds_read_b64_tr_b16 {v(KMR[j]+2*hh,2)}, v{vTR} offset:{L_KX + j*512 + hh*256}', ('km', j))
    ex = lambda r: k(f'v_exp_f32 v{r}, v{r}')
    cv = lambda d, r: k(f'v_cvt_pk_bf16_f32 v{d}, v{r}, v{r+1}')
    z = lambda r: k(f'v_mov_b64 {v(r,2)}, 0')
    rm(16)
    rm(17)
    cv(F + 2, ACCK); cv(F + 3, ACCK + 2)
    lg.op(f'ds_write_b64 v{vXW}, {v(F+2,2)} offset:{L_KX}', 'kw')
    stamp(k, 'kw', diag)
    NB = CFG['v_before']
    for n in range(18, 18 + NB):
        rm(n)
        ktrd(0, n - 18)
    assert NB == 4
    lg.wait('kw')
    stamp(k, 'preB3', diag)
    k('s_barrier')
    rest = list(range(18 + NB, 24))
    for j in range(4):
        qrd(j, 0); qrd(j, 1)
        if len(rest) > 3 - j:
            rm(rest.pop(0))
    ST, SM = ACCQ, A3
    def st(kt, j, w=True):
        if w:
            lg.wait(('kt', kt, j))
        k(f'{MF32} {v(ST+4*kt,4)}, {v(RA[4*kt+j],4)}, {v(QTR[j],4)}, {"0" if j == 0 else v(ST+4*kt,4)}')
    def sm(j, w=True):
        if w:
            lg.wait(('km', j))
        k(f'{MF32} {v(SM,4)}, {v(KMR[j],4)}, {v(QTR[j],4)}, {"0" if j == 0 else v(SM,4)}')
    VTK, VA, OP, OA, RL = A0, ACCV, A2, SL[2], SL[3]
    VP = MISC
    lg.wait(('qt', 1))
    st(0, 0, False); ktrd(1, 0); ktrd(1, 1)
    st(0, 1, False); ktrd(1, 2); ktrd(1, 3)
    lg.wait(('qt', 3))
    st(0, 2, False); kmrd(0)
    st(0, 3, False); kmrd(1)
    lg.wait(('kt', 1, 1))
    st(1, 0, False); kmrd(2)
    st(1, 1, False); kmrd(3)
    lg.wait(('kt', 1, 3))
    st(1, 2, False); cv(VP, ACCV); cv(VP + 1, ACCV + 2)
    st(1, 3, False)
    for t in range(2):
        lg.op(f'ds_read_b128 {v(VTK+4*t,4)}, v{vLW0} offset:{L_VT + 1024*t}', 'vt')
    lg.wait(('km', 1))
    sm(0, False)
    k(f'buffer_store_dwordx4 {v(VP,4)}, v{vL16}, {s(S_WS,4)}, {s(sPUBK)} offen sc1')
    ex(ST)
    sm(1, False); ex(ST + 1)
    lg.wait(('km', 3))
    sm(2, False); ex(ST + 2)
    sm(3, False); ex(ST + 3)
    stamp(k, 'presm', diag)
    ex(ST + 4); ex(ST + 5); ex(ST + 6); ex(ST + 7)
    cv(ST, ST); cv(ST + 1, ST + 2); cv(ST + 2, ST + 4); cv(ST + 3, ST + 6)
    ex(SM)
    lg.wait('vt')
    k(f'{MF32} {v(OA,4)}, {v(VTK,4)}, {v(ST,4)}, 0')
    ex(SM + 1)
    k(f'{MF32} {v(OA+4,4)}, {v(VTK+4,4)}, {v(ST,4)}, 0')
    ex(SM + 2)
    k(f'{MF32} {v(RL,4)}, {v(ONES,4)}, {v(ST,4)}, 0')
    ex(SM + 3)
    k(f'v_cndmask_b32 v{VA}, 0, v{VP}, {s(sMASK_LT32,2)}')
    cv(SM, SM); cv(SM + 1, SM + 2)
    slow, back = k.newlabel('sm_slow'), k.newlabel('sm_back')
    k.label(back)
    k(f'v_cndmask_b32 v{SM+2}, 0, v{SM}, {s(sMASK_LT32,2)}')
    k(f'v_cndmask_b32 v{SM+3}, 0, v{SM+1}, {s(sMASK_LT32,2)}')
    k(f'v_cndmask_b32 v{VA+1}, 0, v{VP+1}, {s(sMASK_LT32,2)}')
    k(f'v_cndmask_b32 v{VA+2}, 0, v{VP}, {s(sMASK_GE32,2)}')
    k(f'{MF16} {v(RL,4)}, {v(ONES,2)}, {v(SM+2,2)}, {v(RL,4)}')
    k(f'v_cndmask_b32 v{VA+3}, 0, v{VP+1}, {s(sMASK_GE32,2)}')
    k(f'{MF16} {v(OA,4)}, {v(VA,2)}, {v(SM,2)}, {v(OA,4)}')
    OWA = ACCK
    k(f'v_add_u32 v{OWA}, {s(sOW)}, v{vL16}')
    k(f'{MF16} {v(OA+4,4)}, {v(VA+2,2)}, {v(SM,2)}, {v(OA+4,4)}')
    z(ACCQ); z(ACCQ + 2); z(ACCK + 2)
    k(f'v_rcp_f32 v{RL+2}, v{RL}')
    k(f'v_max_f32 v{RL+1}, v{RL}, v{RL+2}')
    for i in range(0, 8, 2):
        k(f'v_pk_mul_f32 {v(OA+i,2)}, {v(OA+i,2)}, {v(RL+2,2)} op_sel_hi:[1,0]')
    for i in range(4):
        cv(OP + i, OA + 2 * i)
    k(f'v_cmp_nge_f32 vcc, {s(sLIM)}, v{RL+1}')
    stamp(k, 'owr', diag)
    k(f's_mov_b64 exec, {s(sMASK_OW,2)}')
    k(f'ds_write_b128 v{OWA}, {v(OP,4)} offset:{L_OX}')
    k('s_mov_b64 exec, -1')
    k(f's_cbranch_vccnz {slow}')
    ok2 = k.newlabel('sm_ok')
    k.label(ok2)
    stubs.append(('sm', slow, back, ok2))
    wo_slot = {('o', 0, 0, 0): SL[0], ('o', 0, 0, 1): SL[1], ('o', 1, 0, 0): SL[2], ('o', 1, 0, 1): SL[3],
               ('o', 1, 2, 0): SL[0], ('o', 1, 2, 1): SL[1]}
    k(f's_cmp_eq_u32 {s(sSTEP)}, 63')
    k(f's_cbranch_scc1 {end_label}')
    def hint_store():
        if CFG['hint'] and not glob and cons == 'E':
            k(f'v_mov_b32 v{MISC}, {s(sSTEP)}')
            k(f's_mov_b64 exec, {s(sMASK_H,2)}')
            k(f'buffer_store_dword v{MISC}, v{vL16}, {s(S_WS,4)}, {s(sHW)} offen')
            k('s_mov_b64 exec, -1')
    if CFG['hint_early']:
        hint_store()
    for op in vd:
        k(op)
    for op in lds_op_read_ops(('o', 0, 0, 0), SL[0]):
        k(op)
    k('s_waitcnt lgkmcnt(2)')
    stamp(k, 'preB5', diag)
    k('s_barrier')
    lg = LG(k)
    OX = [A0, A1, A2, A3]
    for i in range(4):
        lg.op(f'ds_read_b128 {v(OX[i],4)}, v{(vL16, vL16X)[i&1]} offset:{L_OX + 2048*(i>>1)}', ('o', i))
    def word(key, h):
        lg.op(lds_op_read_ops(key, wo_slot[key])[h], key)
    def wo(p, i):
        key = ('o', i >> 1, p, i & 1)
        lg.wait(('o', i)); lg.wait(key)
        B = v(wo_slot[key], 8) if key in wo_slot else opreg(PLACE[key][1])
        k(f'{SMF} {v(ACCQ+4*p,4)}, {v(OX[i],4)}, {B}, v{vIDX}')
    tag = lambda r: k(f'v_and_or_b32 v{r}, v{r}, -2, {s(sPZ0)}')
    word(('o', 0, 0, 1), 0); word(('o', 0, 0, 1), 1)
    z(ACCK)
    for op in kd:
        k(op)
    hint = CFG['hint'] and not glob
    HV, HL = MISC, MISC + 1
    h_load = f'buffer_load_dword v{HL}, v{vPUB}, {s(S_WS,4)}, {s(sHR)} offen sc1'
    def hs():
        if hint and cons:
            k(h_load)
    if not CFG['hint_early']:
        hint_store()
    k(f's_add_u32 {s(sPUBK)}, {s(sPUBK)}, {32 * 4096}')
    k(f's_mov_b32 {s(sRETRY)}, 0')
    hp = CFG['hint_pos']
    steps = [lambda: (wo(0, 0), word(('o', 1, 0, 0), 0)),
             lambda: (wo(1, 0), word(('o', 1, 0, 0), 1)),
             lambda: (wo(1, 1), word(('o', 1, 0, 1), 0)),
             lambda: (wo(0, 1), word(('o', 1, 0, 1), 1)),
             lambda: (wo(1, 2), word(('o', 1, 2, 0), 0), z(ACCV)),
             lambda: (wo(1, 3), word(('o', 1, 2, 0), 1), z(ACCV + 2)),
             lambda: (wo(0, 2), word(('o', 1, 2, 1), 0)),
             lambda: (wo(0, 3), word(('o', 1, 2, 1), 1)),
             lambda: (wo(2, 0), cv(ACCK, ACCK)),
             lambda: (wo(2, 1), cv(ACCK + 1, ACCK + 2)),
             lambda: (wo(2, 2), cv(ACCQ + 3, ACCQ + 2)),
             lambda: (wo(2, 3), cv(ACCQ + 2, ACCQ))]
    for i, f_ in enumerate(steps):
        f_()
        if i in hp:
            hs()
    tag(ACCK); tag(ACCQ + 2)
    k(f'buffer_store_dwordx4 {v(ACCQ+2,4)}, v{vPAE}, {s(S_WS,4)}, {s(sPAW)} offen{sc}')
    k.credit(2)
    hs()
    cv(ACCV, ACCV); cv(ACCV + 1, ACCV + 2); tag(ACCV)
    k(f'buffer_store_dwordx2 {v(ACCV,2)}, v{vPAS}, {s(S_WS,4)}, {s(sPAW)} offen{sc}')
    stamp(k, 'st1', diag)
    SEL = SL[2]
    if cons:
        k(f'ds_read_b128 {v(SEL,4)}, v{vL16} offset:{L_SEL}')
    if cons:
        check, stub, cont = k.newlabel('ra_check'), k.newlabel('ra_stub'), k.newlabel('ra_cont')
        X, D_, TM = AW, SL[3], MISC
        a_ops = [f'buffer_load_dwordx4 {v(X+4*j,4)}, v{vL16}, {s(S_WS,4)}, {s(sPAR)} offen offset:{1024*j} sc1' for j in range(4)]
        if hint:
            hd = k.newlabel('h_done')
            k(f's_mov_b64 exec, {s(sMASK_LO8,2)}')
            for it in range(CFG['hint_n']):
                k(h_load)
                if it == 0:
                    k(f's_waitcnt vmcnt({len(hp) + 3})')
                k(f'v_cmp_ne_u32 vcc, {s(sSTEP)}, v{HL}')
                k(f's_cbranch_vccz {hd}')
            k.label(hd)
            k('s_mov_b64 exec, -1')
            delay(k, CFG['delay_h'])
            TM = MISC + 2
        else:
            delay(k, CFG['delay_a'] if cons == 'E' else CFG['delay_as'])
        stamp(k, 'a_issue', diag)
        for op in a_ops:
            k(op)
        EA = CFG['extra_a']
        for _ in range(EA):
            delay(k, CFG['gap_a'])
            for op in a_ops:
                k(op)
        k('s_waitcnt lgkmcnt(0)')
        k.label(check)
        for j in range(4):
            k(f's_waitcnt vmcnt({4 * EA + 3 - j})')
            r = X + 4 * j
            k(f'v_bitop3_b32 v{TM + (1 if j else 0)}, v{r}, v{r+2}, {s(sPZ1)} bitop3:0x7e')
            if j:
                k(f'v_or_b32 v{TM}, v{TM}, v{TM+1}')
            k(f'{MF32} {v(D_,4)}, {v(r,4)}, {v(SEL,4)}, {"0" if j == 0 else v(D_,4)}')
        stamp(k, 'a_last', diag)
        k.filler(None)
        k(f'v_and_b32 v{TM}, 1, v{TM}')
        k(f'v_cmp_eq_u32 vcc, {1 if not CFG.get("x_nocomm") else 17}, v{TM}')
        k(f's_cbranch_vccnz {stub}')
        k.credit(4)
        stubs.append(('m', stub, check, cont, a_ops))
        k.label(cont)
        k(f'v_permlane32_swap_b32 v{D_}, v{D_+2}')
        k(f'v_permlane32_swap_b32 v{D_+1}, v{D_+3}')
        k(f'v_pk_add_f32 {v(D_,2)}, {v(D_,2)}, {v(D_+2,2)}')
        k(f'v_cvt_pk_bf16_f32 v{MV}, v{D_}, v{D_+1}')
        pub_local()
        stamp(k, 'pub', diag)
    elif diag:
        diag_store(k)
    k(f's_branch {top}')
    k.filler(None)
    for st_ in stubs:
        if st_[0] == 'm':
            masked_retry_stub(k, st_[1], st_[2], st_[3], st_[4], 1)
        elif st_[0] == 'kv':
            k.label(st_[1])
            kv_flag_wait(k, A3, A3 + 1) if cons != 'E' and cons != 'S' else kv_flag_wait(k, SL[0] + 2, SL[0] + 3)
            k(f's_branch {st_[2]}')
        elif st_[0] == 'r':
            _, stub, cont, ld, mo_, ck = st_
            again, giveup = k.newlabel('rem_again'), k.newlabel('rem_give')
            k.label(stub)
            k(f's_sub_u32 {s(sBUD)}, {s(sBUD)}, 1')
            k(f's_cbranch_scc1 {giveup}')
            k(ld)
            k('s_waitcnt vmcnt(0)')
            k(f'ds_write_b128 v{vLW0}, {v(MISC,4)} offset:{L_R}')
            k('s_waitcnt lgkmcnt(0)')
            for op in mo_:
                k(op)
            k(f'v_cmp_eq_u32 vcc, -1, v{ck}')
            k(f's_cbranch_vccnz {stub}')
            k(f's_branch {cont}')
            k.label(giveup)
            k(f's_mov_b32 {s(sBUD)}, 0')
            k(f's_branch {cont}')
        else:
            _, slow_, back_, ok_ = st_
            k.label(slow_)
            k(f's_cmp_lg_u32 {s(sRETRY)}, 0')
            k(f's_cbranch_scc1 {ok_}')
            k(f's_mov_b32 {s(sRETRY)}, 1')
            k('s_waitcnt lgkmcnt(0)')
            T4 = SL[3]
            for kt in range(2):
                for j in range(4):
                    k(f'ds_read_b128 {v(T4,4)}, v{vL16} offset:{L_KT + kt*4096 + j*1024}')
                    k('s_waitcnt lgkmcnt(0)')
                    k(f'{MF32} {v(ST+4*kt,4)}, {v(T4,4)}, {v(QTR[j],4)}, {"0" if j == 0 else v(ST+4*kt,4)}')
                    k('s_nop 3')
            for j in range(4):
                for hh in range(2):
                    k(f'ds_read_b64_tr_b16 {v(T4+2*hh,2)}, v{vTR} offset:{L_KX + j*512 + hh*256}')
                k('s_waitcnt lgkmcnt(0)')
                k(f'{MF32} {v(SM,4)}, {v(T4,4)}, {v(QTR[j],4)}, {"0" if j == 0 else v(SM,4)}')
                k('s_nop 3')
            allS = list(range(ST, ST + 8)) + list(range(SM, SM + 4))
            M, M2 = T4, T4 + 1
            k(f'v_max3_f32 v{M}, v{allS[0]}, v{allS[1]}, v{allS[2]}')
            for i in range(3, 11, 2):
                k(f'v_max3_f32 v{M}, v{M}, v{allS[i]}, v{allS[i+1]}')
            k(f'v_max_f32 v{M}, v{M}, v{allS[11]}')
            for sw in ('v_permlane16_swap_b32', 'v_permlane32_swap_b32'):
                k(f'v_mov_b32 v{M2}, v{M}')
                k(f'{sw} v{M}, v{M2}')
                k(f'v_max_f32 v{M}, v{M}, v{M2}')
            for r in allS:
                k(f'v_sub_f32 v{r}, v{r}, v{M}')
            for r in allS:
                ex(r)
            cv(ST, ST); cv(ST + 1, ST + 2); cv(ST + 2, ST + 4); cv(ST + 3, ST + 6)
            cv(SM, SM); cv(SM + 1, SM + 2)
            k(f'{MF32} {v(OA,4)}, {v(VTK,4)}, {v(ST,4)}, 0')
            k(f'{MF32} {v(OA+4,4)}, {v(VTK+4,4)}, {v(ST,4)}, 0')
            k(f'{MF32} {v(RL,4)}, {v(ONES,4)}, {v(ST,4)}, 0')
            k('s_nop 7')
            k(f's_branch {back_}')

def emit_team(k, diag, end_label, force_glob=False):
    emit_setup(k)
    w1 = k.newlabel('reg')
    k(f's_cmp_lg_u32 {s(sW)}, 0')
    k(f's_cbranch_scc1 {w1}')
    k(f's_lshl_b32 {s(sT0)}, {s(sFOR)}, 16')
    k(f's_add_u32 {s(sT0)}, {s(sT0)}, 1')
    k(f's_lshl_b32 {s(sT1)}, {s(sPOL)}, 8')
    k(f's_cmp_eq_u32 {s(sX)}, 0')
    k(f's_cselect_b32 {s(sT1)}, {s(sT1)}, 0')
    k(f's_add_u32 {s(sT0)}, {s(sT0)}, {s(sT1)}')
    k(f'v_mov_b32 v30, {s(sT0)}')
    k(f'v_mov_b32 v31, 64')
    k('s_mov_b64 exec, 1')
    k(f'buffer_atomic_add v30, v31, {s(S_DBG,4)}, 0 offen')
    k('s_mov_b64 exec, -1')
    k.label(w1)
    emit_m0_loads(k)
    stamp(k, 'ld0', diag)
    sGO, sINI = sPZ0, sPZ1
    def hookA():
        k(f'buffer_load_dword v34, off, {s(S_DBG,4)}, 0 offset:64 sc1')
        k(f'buffer_load_dword v35, off, {s(S_DBG,4)}, 0 offset:96 sc1')
        return 2
    def hookB():
        k(f'v_readfirstlane_b32 {s(sT3)}, v34')
        k(f'v_readfirstlane_b32 {s(sGO)}, v35')
        k(f's_mov_b32 {s(sT0)}, {FL_INIT}')
        k(f'buffer_load_dword v36, off, {s(S_WS,4)}, {s(sT0)} sc1')
        return 1
    emit_loader(k, {17: hookA, 27: hookB})
    stamp(k, 'ld1', diag)
    rp, ok = k.newlabel('mode'), k.newlabel('modeok')
    k.label(rp)
    k(f's_and_b32 {s(sT1)}, {s(sT3)}, 0xff')
    k(f's_cmp_ge_u32 {s(sT1)}, 64')
    k(f's_cbranch_scc1 {ok}')
    k(f'buffer_load_dword v34, off, {s(S_DBG,4)}, 0 offset:64 sc1')
    k('s_waitcnt vmcnt(0)')
    k(f'v_readfirstlane_b32 {s(sT3)}, v34')
    k(f's_sub_u32 {s(sBUD)}, {s(sBUD)}, 1')
    k(f's_cbranch_scc0 {rp}')
    k(f's_mov_b32 {s(sBUD)}, 0')
    k.label(ok)
    if CFG['fused']:
        fast = k.newlabel('fast')
        k(f'v_readfirstlane_b32 {s(sINI)}, v36')
        k(f's_cmp_eq_u32 {s(sGO)}, 1')
        k(f's_cselect_b32 {s(sINI)}, {s(sINI)}, 0')
        k(f's_cmp_eq_u32 {s(sINI)}, 64')
        k(f's_cbranch_scc1 {fast}')
        k(f's_mov_b32 {s(sT0)}, 96')
        tok.emit_wait(k, S_DBG, sT0, 1, 0, 1, 28, 29, lane=20)
        k(f's_mov_b32 {s(sT0)}, {FL_INIT}')
        tok.emit_wait(k, S_WS, sT0, 1, 0, 64, 28, 29, lane=20)
        k.label(fast)
    k('s_barrier')
    k(f's_bfe_u32 {s(sT1)}, {s(sT3)}, 0x80008')
    k(f's_cmp_gt_u32 {s(sT1)}, 20')
    k(f's_cselect_b32 {s(sT1)}, 8192, 0')
    k(f's_add_u32 {s(cMRR)}, {s(cMRR)}, {s(sT1)}')
    k(f's_add_u32 {s(cMRW)}, {s(cMRW)}, {s(sT1)}')
    emit_prologue(k, None)
    gl = k.newlabel('globmode')
    k(f's_lshr_b32 {s(sT3)}, {s(sT3)}, 16')
    k(f's_cmp_lg_u32 {s(sT3)}, {0 if not force_glob else 12345}')
    k(f's_cbranch_scc1 {gl}')
    for glob in (False, True):
        m = 'g' if glob else 'l'
        if glob:
            k.label(gl)
        k(f's_cmp_eq_u32 {s(sW)}, 0')
        k(f's_cbranch_scc1 rec_entry_E{m}')
        k(f's_cmp_lg_u32 {s(sCI)}, -1')
        k(f's_cbranch_scc1 rec_entry_S{m}')
        emit_loop(k, glob, diag, end_label, None, True, 'P' + m)
        emit_loop(k, glob, diag, end_label, 'E', False, 'E' + m)
        emit_loop(k, glob, diag, end_label, 'S', True, 'S' + m)
```

```python
from asmlib import *
from layout import *

S_WS = 8
S_B0, S_B1 = 12, 16
S_X, S_OUT = 20, 24
sW = 36
sT0, sT1, sT2, sT3 = 54, 55, 56, 57
sA, sB, sM0, sCNT = 40, 41, 42, 43
sE0, sE1, sE2 = 44, 45, 46
MF32 = 'v_mfma_f32_16x16x32_bf16'

def load_srd(k, sreg, karg):
    k(f's_load_dwordx2 {s(sreg,2)}, s[0:1], {karg}')
def fin_srd(k, sreg, nbytes):
    k(f's_and_b32 {s(sreg+1)}, {s(sreg+1)}, 0xffff')
    k(f's_mov_b32 {s(sreg+2)}, {nbytes}')
    k(f's_mov_b32 {s(sreg+3)}, 0x20000')

def bits(k, dst, L, spec, tmp, first=True):
    for i, (pos, width, sh) in enumerate(spec):
        k(f'v_bfe_u32 v{tmp}, v{L}, {pos}, {width}')
        if i == 0 and first:
            k(f'v_lshlrev_b32 v{dst}, {sh}, v{tmp}')
        else:
            k(f'v_lshl_add_u32 v{dst}, v{tmp}, {sh}, v{dst}')

def rbf(k, r, tmp=None):
    k(f'v_cvt_pk_bf16_f32 v{r}, v{r}, v{r}')
    k(f'v_lshlrev_b32 v{r}, 16, v{r}')

def rbf2(k, r0, r1):
    k(f'v_cvt_pk_bf16_f32 v{r1}, v{r0}, v{r1}')
    k(f'v_lshlrev_b32 v{r0}, 16, v{r1}')
    k(f'v_and_b32 v{r1}, 0xffff0000, v{r1}')

def unpack(k, src, lo, hi):
    k(f'v_lshlrev_b32 v{lo}, 16, v{src}')
    k(f'v_and_b32 v{hi}, 0xffff0000, v{src}')

LOG2E = 0x3fb8aa3b

def silu(k, r, t):
    k(f'v_mul_f32 v{t}, 0xbfb8aa3b, v{r}')
    k(f'v_exp_f32 v{t}, v{t}')
    k(f'v_add_f32 v{t}, 1.0, v{t}')
    k(f'v_rcp_f32 v{t}, v{t}')
    k(f'v_mul_f32 v{r}, v{r}, v{t}')

def emit_mod(k, stask, sc=''):
    T, OFF, C0, ACC, W = 1, 2, 4, 16, 32
    k(f'v_lshrrev_b32 v3, 2, v0')
    k(f'v_mul_u32_u24 v{OFF}, {10 * 7680}, v3')
    k(f'v_and_b32 v{T}, 3, v0')
    k(f'v_lshl_add_u32 v{OFF}, v{T}, 4, v{OFF}')
    k(f's_lshl_b32 {s(sT0)}, {s(stask)}, 6')
    for i in range(10):
        k(f'buffer_load_dwordx4 {v(W+4*i,4)}, v{OFF}, {s(S_B0,4)}, {s(sT0)} offen')
        if i < 9:
            k(f's_add_u32 {s(sT0)}, {s(sT0)}, 7680')
    k(f'v_mul_u32_u24 v{T}, 20, v3')
    for i in range(5):
        k(f'buffer_load_dword v{24+i}, v{T}, {s(S_B1,4)}, 0 offen offset:{4*i}')
    k('s_waitcnt vmcnt(0)')
    for i in range(5):
        unpack(k, 24 + i, C0 + 2 * i, C0 + 2 * i + 1)
    for i in range(10):
        silu(k, C0 + i, T)
    for i in range(0, 10, 2):
        rbf2(k, C0 + i, C0 + i + 1)
    for i in range(10):
        for d in range(4):
            unpack(k, W + 4 * i + d, 24, 25)
            if i == 0:
                k(f'v_mul_f32 v{ACC+2*d}, v{C0}, v24')
                k(f'v_mul_f32 v{ACC+2*d+1}, v{C0}, v25')
            else:
                k(f'v_fmac_f32 v{ACC+2*d}, v{C0+i}, v24')
                k(f'v_fmac_f32 v{ACC+2*d+1}, v{C0+i}, v25')
    k(f'v_lshlrev_b32 v{T}, 5, v0')
    k(f'ds_write_b128 v{T}, {v(ACC,4)}')
    k(f'ds_write_b128 v{T}, {v(ACC+4,4)} offset:16')
    k('s_waitcnt lgkmcnt(0)')
    k('s_barrier')
    k(f'v_and_b32 v{T}, 31, v0')
    k(f'v_lshlrev_b32 v{T}, 2, v{T}')
    k(f'v_lshrrev_b32 v3, 5, v0')
    k(f'v_lshl_add_u32 v3, v3, 10, v{T}')
    for i in range(8):
        k(f'ds_read_b32 v{ACC+i}, v3 offset:{128*i}')
    k('s_waitcnt lgkmcnt(0)')
    for i in range(1, 8):
        k(f'v_add_f32 v{ACC}, v{ACC}, v{ACC+i}')
    k(f'v_lshlrev_b32 v3, 2, v0')
    k(f'ds_write_b32 v3, v{ACC} offset:8192')
    k('s_waitcnt lgkmcnt(0)')
    k('s_barrier')
    for i in range(8):
        k(f'ds_read_b32 v{ACC+i}, v{T} offset:{8192 + 128*i}')
    k('s_waitcnt lgkmcnt(0)')
    for i in range(1, 8):
        k(f'v_add_f32 v{ACC}, v{ACC}, v{ACC+i}')
    rbf(k, ACC)
    k(f'v_add_f32 v{ACC+1}, 1.0, v{ACC}')
    rbf(k, ACC + 1)
    k(f's_sub_u32 {s(sT0)}, {s(stask)}, 20')
    k(f's_cmp_lt_u32 {s(sT0)}, 20')
    k(f's_cselect_b32 {s(sT1)}, 1, 0')
    k(f's_sub_u32 {s(sT0)}, {s(stask)}, 80')
    k(f's_cmp_lt_u32 {s(sT0)}, 20')
    k(f's_cselect_b32 {s(sT1)}, 1, {s(sT1)}')
    k(f's_cmp_eq_u32 {s(sT1)}, 1')
    k(f's_cselect_b64 vcc, -1, 0')
    k(f'v_cndmask_b32 v{ACC}, v{ACC}, v{ACC+1}, vcc')
    k(f's_lshl_b32 {s(sT0)}, {s(stask)}, 7')
    k(f's_add_u32 {s(sT0)}, {s(sT0)}, {MOD}')
    k(f'v_cmp_gt_u32 vcc, 32, v0')
    k(f's_and_saveexec_b64 {s(sT2,2)}, vcc')
    skip = k.newlabel('modskip')
    k(f's_cbranch_execz {skip}')
    k(f'buffer_store_dword v{ACC}, v{T}, {s(S_WS,4)}, {s(sT0)} offen{sc}')
    k.label(skip)
    k('s_mov_b64 exec, -1')

def row16_sum(k, r):
    for sh in (1, 2, 4, 8):
        k(f'v_add_f32 v{r}, v{r}, v{r} row_ror:{sh}')

def emit_ln1(k, srow, pre_wait):
    RO, CO, TO, T = 1, 2, 3, 4
    XR, V, SC, SH = 8, 32, 72, 112
    k(f'v_lshrrev_b32 v{T}, 4, v0')
    k(f'v_add_u32 v{T}, {s(srow)}, v{T}')
    k(f'v_mul_u32_u24 v{RO}, 1280, v{T}')
    k(f'v_and_b32 v5, 15, v0')
    k(f'v_lshl_add_u32 v{RO}, v5, 4, v{RO}')
    k(f'v_lshlrev_b32 v{CO}, 5, v5')
    k(f'v_lshrrev_b32 v6, 4, v{T}')
    k(f'v_mul_u32_u24 v{TO}, 20480, v6')
    k(f'v_and_b32 v6, 15, v{T}')
    k(f'v_lshl_add_u32 v{TO}, v6, 4, v{TO}')
    bits(k, TO, 0, [(0, 2, 8), (2, 2, 10)], 6, first=False)
    for i in range(5):
        k(f'buffer_load_dwordx4 {v(XR+4*i,4)}, v{RO}, {s(S_X,4)}, 0 offen offset:{256*i}')
    k('s_waitcnt vmcnt(0)')
    for i in range(20):
        unpack(k, XR + i, V + 2 * i, V + 2 * i + 1)
    MU, VAR, D0 = 5, 6, 28
    k(f'v_pk_add_f32 {v(D0,2)}, {v(V,2)}, {v(V+2,2)}')
    for i in range(4, 40, 2):
        k(f'v_pk_add_f32 {v(D0,2)}, {v(D0,2)}, {v(V+i,2)}')
    k(f'v_add_f32 v{MU}, v{D0}, v{D0+1}')
    row16_sum(k, MU)
    k(f'v_mul_f32 v{MU}, 0x3acccccd, v{MU}')
    k(f'v_mov_b32 v{VAR}, 0')
    for i in range(40):
        k(f'v_sub_f32 v{D0 + (i&1)}, v{V+i}, v{MU}')
        k(f'v_fmac_f32 v{VAR}, v{D0 + (i&1)}, v{D0 + (i&1)}')
    row16_sum(k, VAR)
    k(f'v_mul_f32 v{VAR}, 0x3acccccd, v{VAR}')
    rbf2(k, MU, VAR)
    k(f'v_add_f32 v{VAR}, 0x3727c5ac, v{VAR}')
    rbf(k, VAR)
    k(f'v_sqrt_f32 v{VAR}, v{VAR}')
    rbf(k, VAR)
    k(f'v_rcp_f32 v{D0}, v{VAR}')
    k(f'v_mov_b32 v{D0+2}, v{MU}')
    for i in range(0, 40, 2):
        k(f'v_pk_add_f32 {v(V+i,2)}, {v(V+i,2)}, {v(D0+2,2)} op_sel_hi:[1,0] neg_lo:[0,1] neg_hi:[0,1]')
        rbf2(k, V + i, V + i + 1)
        k(f'v_pk_mul_f32 {v(V+i,2)}, {v(V+i,2)}, {v(D0,2)} op_sel_hi:[1,0]')
        rbf2(k, V + i, V + i + 1)
    pre_wait()
    k(f's_mov_b32 {s(sT0)}, {MOD}')
    k(f's_mov_b32 {s(sT2)}, {MOD + 2560}')
    for i in range(5):
        for h in range(2):
            k(f'buffer_load_dwordx4 {v(SC+8*i+4*h,4)}, v{CO}, {s(S_WS,4)}, {s(sT2)} offen offset:{512*i+16*h} sc1')
            k(f'buffer_load_dwordx4 {v(SH+8*i+4*h,4)}, v{CO}, {s(S_WS,4)}, {s(sT0)} offen offset:{512*i+16*h} sc1')
    OUT = 152
    k(f's_mov_b32 {s(sT1)}, {H}')
    for i in range(5):
        k(f's_waitcnt vmcnt({16 - 3*i})')
        for j in range(8 * i, 8 * i + 8, 2):
            k(f'v_pk_mul_f32 {v(V+j,2)}, {v(V+j,2)}, {v(SC+j,2)}')
            rbf2(k, V + j, V + j + 1)
            k(f'v_pk_add_f32 {v(V+j,2)}, {v(V+j,2)}, {v(SH+j,2)}')
            k(f'v_cvt_pk_bf16_f32 v{OUT+j//2}, v{V+j}, v{V+j+1}')
        k(f'buffer_store_dwordx4 {v(OUT+4*i,4)}, v{TO}, {s(S_WS,4)}, {s(sT1)} offen sc1')
        k(f's_add_u32 {s(sT1)}, {s(sT1)}, 4096')

def b_lane_setup(k, dst, rd0, ldb, perm, T, nbase):
    if perm:
        k(f'v_lshrrev_b32 v{dst}, 2, v0')
    else:
        bits(k, dst, 0, [(4, 2, 3), (2, 2, 0)], T)
    k(f's_mov_b32 {s(sT1)}, {ldb}')
    k(f'v_mul_lo_u32 v{dst}, v{dst}, {s(sT1)}')
    k(f'v_lshrrev_b32 v{T}, 3, v0')
    k(f'v_and_b32 v{T}, 2, v{T}')
    k(f'v_xor_b32 v{T}, v{T}, v0')
    k(f'v_and_b32 v{T}, 3, v{T}')
    k(f'v_lshl_add_u32 v{dst}, v{T}, 4, v{dst}')
    bits(k, rd0, 0, [(2, 4, 6), (4, 1, 5), (0, 2, 3)], T)
    k(f'v_xor_b32 v{rd0+1}, 32, v{rd0}')
    for b in range(1, nbase):
        k(f'v_add_u32 v{rd0+2*b}, {b << 16}, v{rd0}')
        k(f'v_add_u32 v{rd0+2*b+1}, {b << 16}, v{rd0+1}')

def emit_gemm(k, RT, CT, NK, NS, ldb, a_rt_stride, perm, trans, srd_of, name, ldsc='', gcol=None, pre_wait=None, overlap=None, early=False):
    assert NK % NS == 0 and CT % 4 == 0
    NPW = CT // 4
    vAO, T, vRD, vBO = 1, 2, 4, 8
    AB = 16
    BF = AB + NS * RT * 4
    NF = 8
    LA = 6
    assert (NS * CT) % NF == 0
    ACC = 128
    assert BF + 4 * NF <= ACC and ACC + RT * CT * 4 <= 256
    STG = CT * 1024
    assert NS * STG <= 131072
    hrow = 16 if perm else 4
    k(f'v_lshlrev_b32 v{vAO}, 4, v0')
    b_lane_setup(k, vBO, vRD, ldb, perm, T, 2)
    k(f's_and_b32 {s(sT0)}, {s(sW)}, 1')
    k(f's_mul_i32 {s(sT0)}, {s(sT0)}, {hrow * ldb}')
    k(f's_lshr_b32 {s(sT1)}, {s(sW)}, 1')
    k(f's_lshl_b32 {s(sT1)}, {s(sT1)}, 6')
    k(f's_add_u32 {s(sT0)}, {s(sT0)}, {s(sT1)}')
    k(f'v_add_u32 v{vBO}, {s(sT0)}, v{vBO}')
    gcol = gcol or (lambda i: 128 * i)
    for i in range(NPW - 1, -1, -1):
        k(f'v_add_u32 v{vBO+i}, {gcol(i)}, v{vBO}')
    k(f's_lshl_b32 {s(sM0)}, {s(sW)}, 10')
    def b_ops(slot):
        ops = []
        for i in range(NPW):
            ops.append(f's_add_u32 m0, {s(sM0)}, {slot*STG + i*4096}')
            ops.append(f'buffer_load_dwordx4 v{vBO+i}, {s(srd_of(i),4)}, {s(sB)} offen lds')
        ops.append(f's_add_u32 {s(sB)}, {s(sB)}, {32*ldb}')
        return ops
    def a_ops(slot):
        ops = []
        for rt in range(RT):
            if rt == 0:
                ops.append(f'buffer_load_dwordx4 {v(AB+(slot*RT)*4,4)}, v{vAO}, {s(S_WS,4)}, {s(sA)} offen{ldsc}')
            else:
                ops.append(f's_add_u32 {s(sT1)}, {s(sA)}, {rt*a_rt_stride}')
                ops.append(f'buffer_load_dwordx4 {v(AB+(slot*RT+rt)*4,4)}, v{vAO}, {s(S_WS,4)}, {s(sT1)} offen{ldsc}')
        ops.append(f's_add_u32 {s(sA)}, {s(sA)}, 1024')
        return ops
    vm = []
    def emit(ops, tag):
        for op in ops:
            k(op)
            if op.startswith('buffer_'):
                vm.append(tag)
    def vwait(tag):
        idx = [i for i, t in enumerate(vm) if t <= tag]
        n = len(vm) - 1 - max(idx) if idx else len(vm)
        k(f's_waitcnt vmcnt({n})')
        if idx:
            del vm[:max(idx) + 1]
        return n
    for sl in range(NS - 1):
        emit(b_ops(sl), sl)
    if overlap and early:
        overlap(len(vm))
    if pre_wait:
        pre_wait()
    for sl in range(NS - 1):
        emit(a_ops(sl), sl)
    if overlap and not early:
        overlap(len(vm))
    def brd(slot, c, n):
        for hh in range(2):
            o_ = slot * STG + (c >> 1) * 2048 + hh * 1024
            k(f'ds_read_b64_tr_b16 {v(BF + 4*(n%NF) + 2*hh, 2)}, v{vRD + 2*(o_ >> 16) + (c & 1)} offset:{o_ & 0xffff}')
    vwait(0)
    k('s_barrier')
    for n in range(LA):
        brd(0, n, n)
    def body(base, steady):
        n = 0
        for sl in range(NS):
            ks = base + sl
            if steady:
                k(f's_waitcnt vmcnt({(NS-3)*(NPW+RT)})')
            else:
                vwait(ks + 1)
            k('s_barrier')
            ops = b_ops((sl + NS - 1) % NS) + a_ops((sl + NS - 1) % NS)
            for c in range(CT):
                if c % 2 == 0:
                    k(f's_waitcnt lgkmcnt({2*(LA-2)})')
                for rt in range(RT):
                    acc = v(ACC + (rt * CT + c) * 4, 4)
                    A_, B_ = v(AB + (sl * RT + rt) * 4, 4), v(BF + 4 * (n % NF), 4)
                    if trans[c]:
                        A_, B_ = B_, A_
                    k(f'{MF32} {acc}, {A_}, {B_}, {"0" if ks == 0 else acc}')
                    if rt == 0:
                        c2 = c + LA
                        brd(sl if c2 < CT else (sl + 1) % NS, c2 % CT, n + LA)
                    elif ops:
                        emit(ops[:2], ks + NS - 1); del ops[:2]
                n += 1
            assert not ops
    body(0, False)
    k(f's_mov_b32 {s(sCNT)}, {NK // NS - 1}')
    loop = f'{name}_loop'
    k.raw('.p2align 3')
    k.label(loop)
    body(NS, True)
    k(f's_sub_u32 {s(sCNT)}, {s(sCNT)}, 1')
    k(f's_cmp_lg_u32 {s(sCNT)}, 0')
    k(f's_cbranch_scc1 {loop}')
    k('s_waitcnt vmcnt(0) lgkmcnt(0)')
    k('s_barrier')

def emit_burst_b(k, CT, NK, ldb, perm, srd, sBo, lds0):
    STG = CT * 1024
    NKW = (NK + 3) // 4
    assert lds0 + NKW * 4 * STG <= 163840
    hrow = 16 if perm else 4
    b_lane_setup(k, 3, 4, ldb, perm, 2, 1)
    k(f's_mul_i32 {s(sT0)}, {s(sW)}, {32*ldb}')
    k(f's_add_u32 {s(sBo)}, {s(sBo)}, {s(sT0)}')
    k(f's_mul_i32 {s(sM0)}, {s(sW)}, {STG}')
    for i in range(NKW):
        for d in range(CT):
            k(f's_add_u32 m0, {s(sM0)}, {lds0 + i*4*STG + d*1024}')
            k(f's_add_u32 {s(sT0)}, {s(sBo)}, {i*128*ldb + (d & 1)*hrow*ldb + (d >> 1)*64}')
            k(f'buffer_load_dwordx4 v3, {s(srd,4)}, {s(sT0)} offen lds')

def emit_b_convert(k, CT, NK, lds0):
    STG = CT * 1024
    NKW = (NK + 3) // 4
    b_lane_setup(k, 3, 4, 16, True, 2, 1)
    k(f's_mul_i32 {s(sT0)}, {s(sW)}, {STG}')
    k(f's_add_u32 {s(sT0)}, {s(sT0)}, {lds0}')
    k(f'v_add_u32 v4, {s(sT0)}, v4')
    k(f'v_add_u32 v5, {s(sT0)}, v5')
    k('v_lshlrev_b32 v6, 4, v0')
    k(f'v_add_u32 v6, {s(sT0)}, v6')
    k(f's_mov_b32 {s(sCNT)}, {NKW}')
    top = k.newlabel('cv')
    k.label(top)
    for c in range(CT):
        for hh in range(2):
            k(f'ds_read_b64_tr_b16 {v(16+4*c+2*hh,2)}, v{4+(c&1)} offset:{(c>>1)*2048 + hh*1024}')
        if c % 4 == 3:
            k('s_waitcnt lgkmcnt(0)')
    k('s_waitcnt lgkmcnt(0)')
    for c in range(CT):
        k(f'ds_write_b128 v6, {v(16+4*c,4)} offset:{c*1024}')
    for r in (4, 5, 6):
        k(f'v_add_u32 v{r}, {4*STG}, v{r}')
    k('s_waitcnt lgkmcnt(0)')
    k(f's_sub_u32 {s(sCNT)}, {s(sCNT)}, 1'); k(f's_cmp_lg_u32 {s(sCNT)}, 0'); k(f's_cbranch_scc1 {top}')

def emit_burst(k, CT, CW, NK, pre_wait, s_ldsoff=None, lds0=0, mid=None):
    vAO, vRD = 1, 4
    AB = 16
    NF = 8
    BF = AB + NK * 4
    ACC = BF + 4 * NF
    assert ACC + 4 * CW <= 256
    STG = CT * 1024
    k(f'v_lshlrev_b32 v{vAO}, 4, v0')
    if s_ldsoff is not None:
        k(f'v_add_u32 v{vRD}, {s(s_ldsoff)}, v{vAO}')
    else:
        k(f'v_mov_b32 v{vRD}, v{vAO}')
    k(f'v_add_u32 v{vRD+1}, 0x10000, v{vRD}')
    k(f'v_add_u32 v{vRD+2}, 0x20000, v{vRD}')
    LA = 6
    TOT = NK * CW
    def brd(n):
        ks, c = divmod(n, CW)
        o_ = lds0 + ks * STG + c * 1024
        k(f'ds_read_b128 {v(BF + 4*(n%NF), 4)}, v{vRD + (o_ >> 16)} offset:{o_ & 0xffff}')
    for n in range(LA):
        brd(n)
    if mid:
        mid()
    pre_wait()
    for ks in range(NK):
        if ks and ks % 4 == 0:
            k(f's_add_u32 {s(sA)}, {s(sA)}, 4096')
        k(f'buffer_load_dwordx4 {v(AB+4*ks,4)}, v{vAO}, {s(S_WS,4)}, {s(sA)} offen offset:{(ks&3)*1024} sc1')
    assert CW % 2 == 0
    for n in range(TOT):
        ks, c = divmod(n, CW)
        if c % 2 == 0:
            ahead = max(min(LA - 2, TOT - 2 - n), 0)
            if c == 0:
                k(f's_waitcnt vmcnt({NK-1-ks}) lgkmcnt({ahead})')
            else:
                k(f's_waitcnt lgkmcnt({ahead})')
        acc = v(ACC + 4 * c, 4)
        k(f'{MF32} {acc}, {v(BF + 4*(n%NF),4)}, {v(AB+4*ks,4)}, {"0" if ks == 0 else acc}')
        if n + LA < TOT:
            brd(n + LA)
    return ACC

def acc_read(k, dst, accidx, n=4):
    for i in range(n):
        k(f'v_accvgpr_read_b32 v{dst+i}, a{accidx+i}')

def emit_qkv_main(k, kind, sRB, sHD, sOUT, name, pre_wait, overlap, RT=2, NS=5):
    isq = kind == 'q'
    k(f's_lshl_b32 {s(sE1)}, {s(sRB)}, 2')
    k(f's_add_u32 {s(sE1)}, {s(sE1)}, {s(sW)}')
    k(f's_mul_i32 {s(sA)}, {s(sE1)}, {RT*20480}')
    k(f's_add_u32 {s(sA)}, {s(sA)}, {H}')
    k(f's_lshl_b32 {s(sB)}, {s(sHD)}, {9 if isq else 8}')
    if isq:
        emit_gemm(k, RT, 16, 20, NS, 8192, 20480, False, [True] * 16, lambda i: S_B0, name, ' sc1', pre_wait=pre_wait, overlap=overlap, early=True)
    elif kind == 'kv':
        emit_gemm(k, RT, 16, 20, NS, 8192, 20480, False, [True] * 8 + [False] * 8, lambda i: S_B0 if i < 2 else S_B1, name, ' sc1',
                  gcol=lambda i: 128 * (i & 1), pre_wait=pre_wait, overlap=overlap)
    else:
        emit_gemm(k, RT, 8, 20, 10, 8192, 20480, False, [kind == 'k'] * 8, lambda i: S_B0, name, ' sc1', pre_wait=pre_wait, overlap=overlap, early=True)
    k(f's_lshl_b32 {s(sOUT)}, {s(sE1)}, {18 if isq else 19}')
    k(f's_lshl_b32 {s(sT1)}, {s(sHD)}, 14')
    k(f's_add_u32 {s(sOUT)}, {s(sOUT)}, {s(sT1)}')
    k(f's_add_u32 {s(sOUT)}, {s(sOUT)}, {QT if isq else KV}')

def emit_qkv_epi(k, kind, sOUT):
    CT, ACC = (16 if kind in ('q', 'kv') else 8), 128
    n = 0; cur = 0
    def piece(t0, t1, off):
        nonlocal n, cur
        R = 88 + 4 * (n % 10); n += 1
        for i, t in enumerate((t0, t1)):
            k(f'v_cvt_pk_bf16_f32 v{R+2*i}, v{ACC+4*t}, v{ACC+4*t+1}')
            k(f'v_cvt_pk_bf16_f32 v{R+2*i+1}, v{ACC+4*t+2}, v{ACC+4*t+3}')
        if off & ~0xfff != cur:
            k(f's_add_u32 {s(sOUT)}, {s(sOUT)}, {(off & ~0xfff) - cur}'); cur = off & ~0xfff
        k(f'buffer_store_dwordx4 {v(R,4)}, v1, {s(S_WS,4)}, {s(sOUT)} offen offset:{off & 0xfff} sc1')
    def ktiles(c0, base):
        for kt in range(2):
            for j in range(4):
                piece(kt * CT + c0 + 2 * j, kt * CT + c0 + 2 * j + 1, base + kt * 4096 + j * 1024)
    def vtiles(c0):
        for et in range(8):
            piece(c0 + et, CT + c0 + et, 8192 + et * 1024)
    if kind == 'q':
        ktiles(0, 0); ktiles(8, 8192)
    if kind in ('k', 'kv'):
        ktiles(0, 0)
    if kind in ('v', 'kv'):
        vtiles(CT - 8)
    if kind in ('k', 'kv'):
        k(f's_sub_u32 {s(sT0)}, {s(sOUT)}, {KV + cur}')
        k(f's_lshr_b32 {s(sT0)}, {s(sT0)}, 2')
        k(f's_add_u32 {s(sT0)}, {s(sT0)}, {KVM}')
        k(f'v_mov_b64 {v(ACC,2)}, -1')
        k(f'v_mov_b64 {v(ACC+2,2)}, -1')
        for i in range(4):
            k(f'buffer_store_dwordx4 {v(ACC,4)}, v1, {s(S_WS,4)}, {s(sT0)} offen offset:{1024*i} sc1')

def emit_att_setup(k):
    k('v_lshlrev_b32 v1, 4, v0')
    bits(k, 2, 0, [(2, 4, 4), (0, 1, 3)], 4)
    bits(k, 3, 0, [(0, 4, 4), (4, 1, 3), (5, 1, 8)], 4)
    k(f's_lshl_b32 {s(sT0)}, {s(sW)}, 11')
    k(f'v_add_u32 v2, {s(sT0)}, v2')
    k(f'v_add_u32 v3, {s(sT0)}, v3')
    k('v_and_b32 v4, 15, v0')
    k('v_lshrrev_b32 v5, 4, v0')
    k('v_lshlrev_b32 v5, 2, v5')
    for r in range(4):
        k(f'v_add_u32 v6, {r}, v5')
        k(f'v_cmp_le_u32 {s(60+2*r,2)}, v6, v4')
    k(f's_mov_b64 {s(68,2)}, 0xffffffff')
    k(f's_not_b64 {s(58,2)}, {s(68,2)}')

def emit_att_task(k, sSEG, sHD, wait_kvm):
    Q, K_, V_, KMm, X, S, P, O = 8, 40, 72, 104, 120, 136, 160, 8
    k(f's_lshl_b32 {s(sT0)}, {s(sSEG)}, 5')
    k(f's_add_u32 {s(sT0)}, {s(sT0)}, {s(sHD)}')
    k(f's_lshl_b32 {s(sT1)}, {s(sT0)}, 13')
    k(f's_add_u32 {s(sT1)}, {s(sT1)}, {QT}')
    k(f's_lshl_b32 {s(sT2)}, {s(sT0)}, 14')
    k(f's_add_u32 {s(sT2)}, {s(sT2)}, {KV}')
    k(f's_lshl_b32 {s(sT3)}, {s(sT0)}, 12')
    k(f's_add_u32 {s(sT3)}, {s(sT3)}, {KVM}')
    def ld8(dst, so):
        for i in range(8):
            if i == 4:
                k(f's_add_u32 {s(so)}, {s(so)}, 4096')
            k(f'buffer_load_dwordx4 {v(dst+4*i,4)}, v1, {s(S_WS,4)}, {s(so)} offen offset:{(i&3)*1024} sc1')
    ld8(Q, sT1); ld8(K_, sT2)
    k(f's_add_u32 {s(sT2)}, {s(sT2)}, 4096')
    ld8(V_, sT2)
    k(f'v_mov_b32 v6, 0xce6e6b28')
    k(f's_mov_b32 {s(sE0)}, 0x3db504f3')
    k(f's_mov_b32 {s(sE1)}, {LOG2E}')
    def scores(qt, t):
        for j in range(4):
            A_ = v(KMm + 4 * j, 4) if t == 0 else v(K_ + 16 * (t - 1) + 4 * j, 4)
            D = v(S + 12 * qt + 4 * t, 4)
            k(f'{MF32} {D}, {A_}, {v(Q+16*qt+4*j,4)}, {"0" if j == 0 else D}')
    def rnd(regs):
        for i in range(0, len(regs), 2):
            rbf2(k, regs[i], regs[i + 1])
            k(f'v_mul_f32 v{regs[i]}, {s(sE0)}, v{regs[i]}')
            k(f'v_mul_f32 v{regs[i+1]}, {s(sE0)}, v{regs[i+1]}')
            rbf2(k, regs[i], regs[i + 1])
    def vmax(M, regs, first):
        rest = list(regs)
        if first:
            k(f'v_max3_f32 v{M}, v{rest[0]}, v{rest[1]}, v{rest[2]}'); rest = rest[3:]
        while rest:
            if len(rest) >= 2:
                k(f'v_max3_f32 v{M}, v{M}, v{rest[0]}, v{rest[1]}'); rest = rest[2:]
            else:
                k(f'v_max_f32 v{M}, v{M}, v{rest[0]}'); rest = rest[1:]
    k('s_waitcnt vmcnt(8)')
    scores(0, 1); scores(1, 1); scores(1, 2)
    MX = (176, 177)
    tok = [list(range(S + 4, S + 8)), list(range(S + 16, S + 24))]
    for qt in range(2):
        rnd(tok[qt])
        for r in range(4):
            k(f'v_cndmask_b32 v{tok[qt][-4+r]}, v6, v{tok[qt][-4+r]}, {s(60+2*r,2)}')
        vmax(MX[qt], tok[qt], True)
    k(f'v_mov_b64 {v(P+2,2)}, 0')
    wait_kvm(X)
    for i in range(4):
        k(f'ds_write_b64 v3, {v(X+4*i+2,2)} offset:{512*i}')
    k('s_waitcnt lgkmcnt(0)')
    for j in range(4):
        for hh in range(2):
            k(f'ds_read_b64_tr_b16 {v(KMm+4*j+2*hh,2)}, v2 offset:{j*512+hh*256}')
    k('s_waitcnt lgkmcnt(0)')
    scores(0, 0); scores(1, 0)
    for qt in range(2):
        mem = list(range(S + 12 * qt, S + 12 * qt + 4))
        regs = mem + tok[qt]
        M, M2 = MX[qt], 5
        rnd(mem)
        vmax(M, mem, False)
        for sw in ('v_permlane16_swap_b32', 'v_permlane32_swap_b32'):
            k(f'v_mov_b32 v{M2}, v{M}')
            k(f'{sw} v{M}, v{M2}')
            k(f'v_max_f32 v{M}, v{M}, v{M2}')
        for r in regs:
            k(f'v_sub_f32 v{r}, v{r}, v{M}')
        for r in regs:
            k(f'v_mul_f32 v{r}, {s(sE1)}, v{r}')
        for r in regs:
            k(f'v_exp_f32 v{r}, v{r}')
        k(f'v_add_f32 v{M}, v{mem[0]}, v{mem[1]}')
        k(f'v_add_f32 v{M2}, v{mem[2]}, v{mem[3]}')
        k(f'v_add_f32 v{M}, v{M}, v{M2}')
        k(f'v_cndmask_b32 v{M}, 0, v{M}, {s(68,2)}')
        for r in tok[qt]:
            k(f'v_add_f32 v{M}, v{M}, v{r}')
        for sw in ('v_permlane16_swap_b32', 'v_permlane32_swap_b32'):
            k(f'v_mov_b32 v{M2}, v{M}')
            k(f'{sw} v{M}, v{M2}')
            k(f'v_add_f32 v{M}, v{M}, v{M2}')
        k(f'v_rcp_f32 v{M}, v{M}')
        for r in regs:
            k(f'v_mul_f32 v{r}, v{r}, v{M}')
        for i in range(2):
            k(f'v_cvt_pk_bf16_f32 v{mem[i]}, v{mem[2*i]}, v{mem[2*i+1]}')
        for i in range(2):
            k(f'v_cndmask_b32 v{P+8*qt+4+i}, 0, v{mem[i]}, {s(68,2)}')
            k(f'v_cndmask_b32 v{P+8*qt+6+i}, 0, v{mem[i]}, {s(58,2)}')
        for i in range(len(tok[qt]) // 2):
            k(f'v_cvt_pk_bf16_f32 v{P+8*qt+i}, v{tok[qt][2*i]}, v{tok[qt][2*i+1]}')
    k(f's_lshl_b32 {s(sT0)}, {s(sSEG)}, 18')
    k(f's_lshl_b32 {s(sT1)}, {s(sHD)}, 12')
    k(f's_add_u32 {s(sT0)}, {s(sT0)}, {s(sT1)}')
    k(f's_add_u32 {s(sT0)}, {s(sT0)}, {OO}')
    for qt in range(2):
        for et in range(8):
            D = v(O + 32 * qt + 4 * et, 4)
            k(f'{MF32} {D}, {v(V_+4*et,4)}, {v(P+8*qt,4)}, 0')
        for et in range(8):
            D = v(O + 32 * qt + 4 * et, 4)
            k(f'v_mfma_f32_16x16x16_bf16 {D}, {v(X+4*(et>>1),2)}, {v(P+8*qt+4+2*(et&1),2)}, {D}')
    for qt in range(2):
        for j in range(4):
            R = S + 4 * ((4 * qt + j) % 6)
            for i in range(4):
                k(f'v_cvt_pk_bf16_f32 v{R+i}, v{O+32*qt+8*j+2*i}, v{O+32*qt+8*j+2*i+1}')
            k(f'buffer_store_dwordx4 {v(R,4)}, v1, {s(S_WS,4)}, {s(sT0)} offen offset:{j*1024} sc1')
        if qt == 0:
            k(f's_add_u32 {s(sT0)}, {s(sT0)}, {128*1024}')

def emit_wo_task(k, sSEG, sCB, sSP, pre_wait):
    CT, CW, NK = 10, 6, 16
    k(f's_lshl_b32 {s(sE1)}, {s(sSEG)}, 1')
    k(f's_and_b32 {s(sT0)}, {s(sW)}, 1')
    k(f's_add_u32 {s(sE1)}, {s(sE1)}, {s(sT0)}')
    k(f's_lshl_b32 {s(sA)}, {s(sE1)}, 17')
    k(f's_mul_i32 {s(sT1)}, {s(sSP)}, {NK*1024}')
    k(f's_add_u32 {s(sA)}, {s(sA)}, {s(sT1)}')
    k(f's_add_u32 {s(sA)}, {s(sA)}, {OO}')
    k(f's_lshr_b32 {s(sE2)}, {s(sW)}, 1')
    k(f's_lshl_b32 {s(sE2)}, {s(sE2)}, 12')
    k(f's_mul_i32 {s(sE0)}, {s(sSP)}, {2048*2560}')
    k(f's_mul_i32 {s(sT1)}, {s(sCB)}, {CT*128}')
    k(f's_add_u32 {s(sE0)}, {s(sE0)}, {s(sT1)}')
    k(f's_lshr_b32 {s(sT1)}, {s(sE2)}, 3')
    k(f's_add_u32 {s(sE0)}, {s(sE0)}, {s(sT1)}')
    k(f's_mul_i32 {s(sT1)}, {s(sE1)}, {16*2560}')
    k(f's_add_u32 {s(sE0)}, {s(sE0)}, {s(sT1)}')
    k(f's_add_u32 {s(sE0)}, {s(sE0)}, {PART}')
    def mid():
        k('v_bfe_u32 v12, v0, 1, 3')
        k('v_mul_u32_u24 v12, 5120, v12')
        bits(k, 12, 0, [(4, 2, 5), (0, 1, 4)], 2, first=False)
    ACC = emit_burst(k, CT, CW, NK, pre_wait, s_ldsoff=sE2, mid=mid)
    for c in range(1, 5):
        k(f'buffer_store_dwordx4 {v(ACC+4*c,4)}, v12, {s(S_WS,4)}, {s(sE0)} offen offset:{128*c} sc1')
    hi, dn = k.newlabel('woh'), k.newlabel('wod')
    k(f's_cmp_lg_u32 {s(sE2)}, 0'); k(f's_cbranch_scc1 {hi}')
    k(f'buffer_store_dwordx4 {v(ACC,4)}, v12, {s(S_WS,4)}, {s(sE0)} offen sc1')
    k(f's_branch {dn}')
    k.label(hi)
    k(f'buffer_store_dwordx4 {v(ACC+20,4)}, v12, {s(S_WS,4)}, {s(sE0)} offen offset:{128*5} sc1')
    k.label(dn)

def emit_ff1_task(k, sG, sCB, CT, pre_wait):
    k(f's_lshl_b32 {s(sE1)}, {s(sG)}, 2')
    k(f's_add_u32 {s(sE1)}, {s(sE1)}, {s(sW)}')
    k(f's_mul_i32 {s(sA)}, {s(sE1)}, 20480')
    k(f's_add_u32 {s(sA)}, {s(sA)}, {H2}')
    k(f's_mul_i32 {s(sE0)}, {s(sE1)}, {54*1024}')
    k(f's_mul_i32 {s(sT1)}, {s(sCB)}, {CT//2*1024}')
    k(f's_add_u32 {s(sE0)}, {s(sE0)}, {s(sT1)}')
    k(f's_add_u32 {s(sE0)}, {s(sE0)}, {FF}')
    ACC = emit_burst(k, CT, CT, 20, pre_wait)
    for j in range(CT // 2):
        R = ACC + 8 * j
        for i in range(0, 8, 2):
            rbf2(k, R + i, R + i + 1)
        TT = 16
        for i in range(8):
            k(f'v_mul_f32 v{TT+i}, 0xbfb8aa3b, v{R+i}')
        for i in range(8):
            k(f'v_exp_f32 v{TT+i}, v{TT+i}')
        for i in range(8):
            k(f'v_add_f32 v{TT+i}, 1.0, v{TT+i}')
        for i in range(8):
            k(f'v_rcp_f32 v{TT+i}, v{TT+i}')
        for i in range(0, 8, 2):
            k(f'v_pk_mul_f32 {v(R+i,2)}, {v(R+i,2)}, {v(TT+i,2)}')
        for i in range(4):
            k(f'v_cvt_pk_bf16_f32 v{32+4*j+i}, v{R+2*i}, v{R+2*i+1}')
        k(f'buffer_store_dwordx4 {v(32+4*j,4)}, v1, {s(S_WS,4)}, {s(sE0)} offen offset:{j*1024} sc1')

def emit_ff2_task(k, sSEG, sCB, pre_wait, ldsx):
    CT, NK = 2, 27
    k(f's_lshl_b32 {s(sE1)}, {s(sSEG)}, 1')
    k(f's_and_b32 {s(sT0)}, {s(sW)}, 1')
    k(f's_add_u32 {s(sE1)}, {s(sE1)}, {s(sT0)}')
    k(f's_lshr_b32 {s(sT2)}, {s(sW)}, 1')
    k(f's_mul_i32 {s(sA)}, {s(sE1)}, {54*1024}')
    k(f's_mul_i32 {s(sT1)}, {s(sT2)}, {NK*1024}')
    k(f's_add_u32 {s(sA)}, {s(sA)}, {s(sT1)}')
    k(f's_add_u32 {s(sA)}, {s(sA)}, {FF}')
    k(f's_lshl_b32 {s(sB)}, {s(sT1)}, 1')
    k(f's_lshl_b32 {s(sT1)}, {s(sCB)}, 1')
    k(f's_add_u32 {s(sT1)}, {s(sT1)}, {s(sT2)}')
    k(f's_lshl_b32 {s(sT1)}, {s(sT1)}, 5')
    k(f's_mul_i32 {s(sE0)}, {s(sE1)}, {16*1280}')
    k(f's_add_u32 {s(sE0)}, {s(sE0)}, {s(sT1)}')
    k(f's_lshl_b32 {s(sE2)}, {s(sT1)}, 1')
    k(f's_add_u32 {s(sE2)}, {s(sE2)}, {MOD + 5*2560}')
    XB, GB = 200, 204
    def mid():
        k('v_and_b32 v12, 15, v0')
        k('v_mul_u32_u24 v12, 1280, v12')
        bits(k, 12, 0, [(4, 2, 3)], 2, first=False)
        bits(k, 13, 0, [(4, 2, 4)], 2)
        k(f'buffer_load_dwordx4 {v(GB,4)}, v13, {s(S_WS,4)}, {s(sE2)} offen sc1')
        k(f's_lshl_b32 {s(sT0)}, {s(sW)}, 10')
        k(f's_add_u32 {s(sT0)}, {s(sT0)}, {ldsx}')
        k(f'v_add_u32 v10, {s(sT0)}, v1')
        k(f'v_xor_b32 v11, 2048, v10')
    def pw():
        pre_wait()
        k(f's_add_u32 {s(sT0)}, {s(sE0)}, {X1}')
        k(f'buffer_load_dwordx2 {v(XB,2)}, v12, {s(S_WS,4)}, {s(sT0)} offen sc1')
    ACC = emit_burst(k, CT, CT, NK, pw, s_ldsoff=sB, mid=mid)
    h1, jn = k.newlabel('f2h'), k.newlabel('f2j')
    k(f's_cmp_ge_u32 {s(sW)}, 2'); k(f's_cbranch_scc1 {h1}')
    k(f'ds_write_b128 v10, {v(ACC+4,4)}')
    k(f's_branch {jn}')
    k.label(h1)
    k(f'ds_write_b128 v10, {v(ACC,4)}')
    k('s_waitcnt lgkmcnt(0)')
    k(f'v_mov_b64 {v(ACC,2)}, {v(ACC+4,2)}')
    k(f'v_mov_b64 {v(ACC+2,2)}, {v(ACC+6,2)}')
    k.label(jn)
    k('s_waitcnt lgkmcnt(0)')
    k('s_barrier')
    k(f'ds_read_b128 {v(ACC+4,4)}, v11')
    k('s_waitcnt lgkmcnt(0)')
    for h in range(2):
        r = ACC + 2 * h
        k(f'v_pk_add_f32 {v(r,2)}, {v(r,2)}, {v(r+4,2)}')
        rbf2(k, r, r + 1)
        k(f'v_pk_mul_f32 {v(r,2)}, {v(r,2)}, {v(GB+2*h,2)}')
        rbf2(k, r, r + 1)
        unpack(k, XB + h, 6, 7)
        k(f'v_pk_add_f32 {v(r,2)}, {v(r,2)}, v[6:7]')
        k(f'v_cvt_pk_bf16_f32 v{XB+h}, v{r}, v{r+1}')
    k(f'buffer_store_dwordx2 {v(XB,2)}, v12, {s(S_OUT,4)}, {s(sE0)} offen')

def wave_sum(k, r, t):
    row16_sum(k, r)
    for sw in ('v_permlane16_swap_b32', 'v_permlane32_swap_b32'):
        k(f'v_mov_b32 v{t}, v{r}')
        k(f'{sw} v{r}, v{t}')
        k(f'v_add_f32 v{r}, v{r}, v{t}')

def pair_sum(k, r, t):
    for sh in (2, 4, 8):
        k(f'v_add_f32 v{r}, v{r}, v{r} row_ror:{sh}')
    for sw in ('v_permlane16_swap_b32', 'v_permlane32_swap_b32'):
        k(f'v_mov_b32 v{t}, v{r}')
        k(f'{sw} v{r}, v{t}')
        k(f'v_add_f32 v{r}, v{r}, v{t}')

def emit_ln2_pair(k, sq, nsplit, pre_wait, ldsx, top_label):
    L16, CO, RO, TO, MU, VAR, T, LX = 1, 2, 3, 4, 5, 6, 7, 10
    D0 = 8
    XR, G, SC, SH, P = 12, 20, 28, 36, 44
    V = P
    k(f'v_lshlrev_b32 v{L16}, 4, v0')
    k(f's_lshl_b32 {s(sT0)}, {s(sW)}, 9')
    k(f'v_lshrrev_b32 v{CO}, 1, v0')
    k(f'v_lshl_add_u32 v{CO}, v{CO}, 4, {s(sT0)}')
    k(f'v_and_b32 v{T}, 1, v0')
    k(f'v_mul_u32_u24 v{RO}, 1280, v{T}')
    k(f'v_lshrrev_b32 v{D0}, 1, v{CO}')
    k(f'v_add_u32 v{RO}, v{RO}, v{D0}')
    bits(k, TO, 0, [(4, 2, 10), (2, 2, 8), (0, 1, 4), (1, 1, 3)], D0)
    k(f's_lshl_b32 {s(sT0)}, {s(sW)}, 12')
    k(f'v_add_u32 v{TO}, {s(sT0)}, v{TO}')
    k(f's_lshl_b32 {s(sT0)}, {s(sW)}, 3')
    k(f'v_lshl_add_u32 v{LX}, v{T}, 2, {s(sT0)}')
    k(f'v_lshlrev_b32 v{LX+1}, 2, v{T}')
    def guarded(fn):
        fn(0)
        sk = k.newlabel('ln2s')
        k(f's_cmp_lg_u32 {s(sW)}, 0'); k(f's_cbranch_scc1 {sk}')
        fn(1)
        k.label(sk)
    def ld_mod(p):
        for dst, idx in ((G, 2), (SC, 4), (SH, 3)):
            k(f's_mov_b32 {s(sT0)}, {MOD + idx * 2560}')
            k(f'buffer_load_dwordx4 {v(dst+4*p,4)}, v{CO}, {s(S_WS,4)}, {s(sT0)} offen offset:{2048*p} sc1')
    guarded(ld_mod)
    k.label(top_label)
    k(f's_mul_i32 {s(sE0)}, {s(sq)}, 2560')
    guarded(lambda p: k(f'buffer_load_dwordx2 {v(XR+2*p,2)}, v{RO}, {s(S_X,4)}, {s(sE0)} offen offset:{1024*p}'))
    pre_wait()
    k(f's_lshl_b32 {s(sT2)}, {s(sE0)}, 1')
    k(f's_lshl_b32 {s(sT1)}, {s(sW)}, 10')
    k(f's_add_u32 {s(sT2)}, {s(sT2)}, {s(sT1)}')
    def ld_part(p):
        k(f's_add_u32 {s(sT0)}, {s(sT2)}, {PART + 4096 * p}')
        for sp in range(nsplit):
            k(f'buffer_load_dwordx4 {v(P+8*sp+4*p,4)}, v{L16}, {s(S_WS,4)}, {s(sT0)} offen sc1')
            if sp + 1 < nsplit:
                k(f's_add_u32 {s(sT0)}, {s(sT0)}, {2048*2560}')
    guarded(ld_part)
    k(f's_add_u32 {s(sT1)}, {s(sE0)}, {X1}')
    k('s_waitcnt vmcnt(0)')
    def resid(p):
        for i in range(4 * p, 4 * p + 4, 2):
            for sp in range(1, nsplit):
                k(f'v_pk_add_f32 {v(V+i,2)}, {v(V+i,2)}, {v(P+8*sp+i,2)}')
        for i in range(4 * p, 4 * p + 4, 2):
            rbf2(k, V + i, V + i + 1)
            k(f'v_pk_mul_f32 {v(V+i,2)}, {v(V+i,2)}, {v(G+i,2)}')
            rbf2(k, V + i, V + i + 1)
            unpack(k, XR + i // 2, D0, D0 + 1)
            k(f'v_pk_add_f32 {v(V+i,2)}, {v(V+i,2)}, {v(D0,2)}')
            k(f'v_cvt_pk_bf16_f32 v{XR+i//2}, v{V+i}, v{V+i+1}')
            unpack(k, XR + i // 2, V + i, V + i + 1)
        k(f'buffer_store_dwordx2 {v(XR+2*p,2)}, v{RO}, {s(S_WS,4)}, {s(sT1)} offen offset:{1024*p} sc1')
        k(f'v_pk_add_f32 {v(D0,2)}, {v(V+4*p,2)}, {v(V+4*p+2,2)}')
        if p == 0:
            k(f'v_add_f32 v{MU}, v{D0}, v{D0+1}')
        else:
            k(f'v_add_f32 v{MU}, v{MU}, v{D0}')
            k(f'v_add_f32 v{MU}, v{MU}, v{D0+1}')
    guarded(resid)
    pair_sum(k, MU, T)
    k(f'ds_write_b32 v{LX}, v{MU} offset:{ldsx}')
    def xwave(dst, off):
        k('s_waitcnt lgkmcnt(0)')
        k('s_barrier')
        Q = P + 8
        for i in range(4):
            k(f'ds_read_b32 v{Q+i}, v{LX+1} offset:{off+8*i}')
        k('s_waitcnt lgkmcnt(0)')
        k(f'v_pk_add_f32 {v(Q,2)}, {v(Q,2)}, {v(Q+2,2)}')
        k(f'v_add_f32 v{dst}, v{Q}, v{Q+1}')
        k(f'v_mul_f32 v{dst}, 0x3acccccd, v{dst}')
    xwave(MU, ldsx)
    k(f'v_mov_b32 v{VAR}, 0')
    def acc_var(p):
        for i in range(4 * p, 4 * p + 4):
            k(f'v_sub_f32 v{D0 + (i&1)}, v{V+i}, v{MU}')
            k(f'v_fmac_f32 v{VAR}, v{D0 + (i&1)}, v{D0 + (i&1)}')
    guarded(acc_var)
    pair_sum(k, VAR, T)
    k(f'ds_write_b32 v{LX}, v{VAR} offset:{ldsx + 32}')
    k(f'v_cvt_pk_bf16_f32 v18, v{MU}, v{MU}')
    k(f'v_lshlrev_b32 v18, 16, v18')
    def center(p):
        for i in range(4 * p, 4 * p + 4, 2):
            k(f'v_pk_add_f32 {v(V+i,2)}, {v(V+i,2)}, {v(18,2)} op_sel_hi:[1,0] neg_lo:[0,1] neg_hi:[0,1]')
            rbf2(k, V + i, V + i + 1)
    guarded(center)
    k(f's_lshr_b32 {s(sT0)}, {s(sq)}, 3')
    k(f's_mul_i32 {s(sT0)}, {s(sT0)}, 20480')
    k(f's_and_b32 {s(sT1)}, {s(sq)}, 7')
    k(f's_lshl_b32 {s(sT1)}, {s(sT1)}, 5')
    k(f's_add_u32 {s(sT0)}, {s(sT0)}, {s(sT1)}')
    k(f's_add_u32 {s(sT0)}, {s(sT0)}, {H2}')
    xwave(VAR, ldsx + 32)
    rbf(k, VAR)
    k(f'v_add_f32 v{VAR}, 0x3727c5ac, v{VAR}')
    rbf(k, VAR)
    k(f'v_sqrt_f32 v{VAR}, v{VAR}')
    rbf(k, VAR)
    k(f'v_rcp_f32 v{D0}, v{VAR}')
    OUT = P + 12
    def fin(p):
        for i in range(4 * p, 4 * p + 4, 2):
            k(f'v_pk_mul_f32 {v(V+i,2)}, {v(V+i,2)}, {v(D0,2)} op_sel_hi:[1,0]')
            rbf2(k, V + i, V + i + 1)
            k(f'v_pk_mul_f32 {v(V+i,2)}, {v(V+i,2)}, {v(SC+i,2)}')
            rbf2(k, V + i, V + i + 1)
            k(f'v_pk_add_f32 {v(V+i,2)}, {v(V+i,2)}, {v(SH+i,2)}')
            k(f'v_cvt_pk_bf16_f32 v{OUT+i//2}, v{V+i}, v{V+i+1}')
        k(f'buffer_store_dwordx2 {v(OUT+2*p,2)}, v{TO}, {s(S_WS,4)}, {s(sT0)} offen sc1')
        k(f's_add_u32 {s(sT0)}, {s(sT0)}, 16384')
    guarded(fin)

sBUD = 53
def emit_wait(k, srd, soff, n, stride, target, t0, t1, lane=0, sleep=2, wg=False):
    top, done = k.newlabel('wt'), k.newlabel('wd')
    if wg:
        k(f's_cmp_lg_u32 {s(sW)}, 0')
        k(f's_cbranch_scc1 {done}')
    k(f'v_min_u32 v{t0}, {n-1}, v{lane}')
    k(f'v_mul_u32_u24 v{t0}, {stride}, v{t0}')
    k.label(top)
    k(f'buffer_load_dword v{t1}, v{t0}, {s(srd,4)}, {s(soff)} offen sc1')
    k('s_waitcnt vmcnt(0)')
    k(f'v_cmp_gt_u32 vcc, {target}, v{t1}')
    k(f's_cbranch_vccz {done}')
    k(f's_sleep {sleep}')
    k(f's_sub_u32 {s(sBUD)}, {s(sBUD)}, 1')
    k(f's_cbranch_scc0 {top}')
    k(f's_mov_b32 {s(sBUD)}, 0')
    k.label(done)
    if wg:
        k('s_barrier')

def emit_signal(k, srd, soff, atomic, t0, t1, vm=0, val='1'):
    skip = k.newlabel('sg')
    k(f's_waitcnt vmcnt({vm}) lgkmcnt(0)')
    k('s_barrier')
    k(f's_cmp_lg_u32 {s(sW)}, 0')
    k(f's_cbranch_scc1 {skip}')
    k(f'v_mov_b32 v{t0}, 0')
    k(f'v_mov_b32 v{t1}, {val}')
    k('s_mov_b64 exec, 1')
    if atomic:
        k(f'buffer_atomic_add v{t1}, v{t0}, {s(srd,4)}, {s(soff)} offen')
    else:
        k(f'buffer_store_dword v{t1}, v{t0}, {s(srd,4)}, {s(soff)} offen sc1')
    k('s_mov_b64 exec, -1')
    k.label(skip)

def emit_signal_last(k, srd, soff, total, goff, t0, t1):
    skip = k.newlabel('sg')
    k('s_waitcnt vmcnt(0) lgkmcnt(0)')
    k('s_barrier')
    k(f's_cmp_lg_u32 {s(sW)}, 0')
    k(f's_cbranch_scc1 {skip}')
    k(f'v_mov_b32 v{t0}, 0')
    k(f'v_mov_b32 v{t1}, 1')
    k('s_mov_b64 exec, 1')
    k(f'buffer_atomic_add v{t1}, v{t0}, {s(srd,4)}, {s(soff)} offen sc0')
    k('s_waitcnt vmcnt(0)')
    k(f'v_readfirstlane_b32 {s(sT0)}, v{t1}')
    k('s_mov_b64 exec, -1')
    k(f's_cmp_lg_u32 {s(sT0)}, {total - 1}')
    k(f's_cbranch_scc1 {skip}')
    k(f'v_mov_b32 v{t0}, {goff}')
    k(f'v_mov_b32 v{t1}, 1')
    k('s_mov_b64 exec, 1')
    k(f'buffer_store_dword v{t1}, v{t0}, {s(srd,4)}, 0 offen sc1')
    k('s_mov_b64 exec, -1')
    k.label(skip)

def emit_signal_wave(k, srd, soff, t0, t1):
    k('s_waitcnt vmcnt(0)')
    k(f'v_mov_b32 v{t0}, 0')
    k(f'v_mov_b32 v{t1}, 1')
    k('s_mov_b64 exec, 1')
    k(f'buffer_atomic_add v{t1}, v{t0}, {s(srd,4)}, {s(soff)} offen')
    k('s_mov_b64 exec, -1')
```

```python
import sys
from asmlib import *
import align
from layout import *
import rec, tok
from tok import *
NAME = 'adaLN_cond__memory_aug_recurrent_mem_tr__dense_activation_silu__prompt'
def desc(name, vgpr, acc):
    return f'''.p2align 6
.amdhsa_kernel {name}
  .amdhsa_next_free_vgpr {vgpr}
  .amdhsa_next_free_sgpr 102
  .amdhsa_accum_offset {acc}
  .amdhsa_group_segment_fixed_size 0
  .amdhsa_kernarg_size 120
  .amdhsa_user_sgpr_count 2
  .amdhsa_user_sgpr_kernarg_segment_ptr 1
  .amdhsa_system_sgpr_workgroup_id_x 1
.end_amdhsa_kernel
'''
XN = 2048 * 640 * 2
S_DBG = rec.S_DBG
sX, sH = rec.sX, rec.sH
sI, sR, sP0, sP1, sP2, sF, sG, sTASK = 70, 71, 72, 73, 74, 75, 76, 77
sJ, sPK, sPO, sPF = 82, 83, 84, 85

def set_srd(k, pairs):
    for sr, ka, nb in pairs:
        load_srd(k, sr, ka)
    k('s_waitcnt lgkmcnt(0)')
    for sr, ka, nb in pairs:
        fin_srd(k, sr, nb)

def div6(k, q, r_, x):
    k(f's_mul_i32 {s(q)}, {s(x)}, 171')
    k(f's_lshr_b32 {s(q)}, {s(q)}, 10')
    k(f's_mul_i32 {s(r_)}, {s(q)}, 6')
    k(f's_sub_u32 {s(r_)}, {s(x)}, {s(r_)}')

DIAG = False
sWT = 78
def wstamp(k, tag):
    if not DIAG:
        return
    skip = k.newlabel('ws')
    k(f's_cmp_lg_u32 {s(sW)}, 3'); k(f's_cbranch_scc1 {skip}')
    k('s_memrealtime s[80:81]')
    k('s_waitcnt lgkmcnt(0)')
    k('v_accvgpr_write_b32 a250, s80'); k(f'v_accvgpr_write_b32 a251, {tag}')
    k('s_mov_b64 exec, 1')
    k(f'buffer_store_dwordx2 a[250:251], off, {s(S_WS,4)}, {s(sWT)}')
    k('s_mov_b64 exec, -1')
    k(f's_add_u32 {s(sWT)}, {s(sWT)}, 8')
    k.label(skip)

def emit_worker(k, end):
    k(f's_mov_b32 {s(sBUD)}, 0x80000')
    k(f's_sub_u32 {s(sI)}, {s(sX)}, 2')
    k(f's_lshl_b32 {s(sI)}, {s(sI)}, 5')
    k(f's_add_u32 {s(sI)}, {s(sI)}, {s(sH)}')
    k(f's_lshl_b32 {s(sWT)}, {s(sI)}, 10'); k(f's_add_u32 {s(sWT)}, {s(sWT)}, {TS + 0x200000}')
    if DIAG:
        k('v_accvgpr_write_b32 a250, s86'); k('v_accvgpr_write_b32 a251, 9')
        k(f'buffer_store_dwordx2 a[250:251], off, {s(S_WS,4)}, {s(sWT)}')
        k(f's_add_u32 {s(sWT)}, {s(sWT)}, 8')
    wstamp(k, 1)
    k(f's_mul_i32 {s(sR)}, {s(sH)}, 6')
    k(f's_add_u32 {s(sR)}, {s(sR)}, {s(sX)}')
    k(f's_sub_u32 {s(sR)}, {s(sR)}, 2')
    set_srd(k, [(S_B0, A_WMOD, 640 * 3840 * 2), (S_B1, A_C, 1280), (S_X, A_X, XN), (S_OUT, A_OUT, XN), (88, A_WK, 5242880), (92, A_WV, 5242880)])
    def warm(t0, t1):
        div6(k, sP2, sG, sI)
        k(f's_mul_i32 {s(sG)}, {s(sG)}, 103')
        k(f's_lshl_b32 {s(sT0)}, {s(sW)}, 5')
        k(f's_add_u32 {s(sG)}, {s(sG)}, {s(sT0)}')
        k(f's_lshl_b32 {s(sG)}, {s(sG)}, 13')
        k(f's_lshl_b32 {s(sT0)}, {s(sP2)}, 8')
        k(f's_add_u32 {s(sG)}, {s(sG)}, {s(sT0)}')
        bits(k, t0, 0, [(1, 5, 13), (0, 1, 7)], t1)
        k(f'buffer_load_dword v{t1}, v{t0}, s[88:91], {s(sG)} offen')
        k(f'buffer_load_dword v{t1}, v{t0}, s[92:95], {s(sG)} offen')
    def tid():
        k(f's_lshl_b32 {s(sT0)}, {s(sW)}, 6'); k(f'v_add_u32 v0, {s(sT0)}, v0')
    def wait1():
        k(f's_mov_b32 {s(sF)}, 96')
        emit_wait(k, S_DBG, sF, 1, 0, 1, 8, 9, sleep=4, wg=True)
    modsub_ret = 82
    doln, fill, nz, p1d = [k.newlabel(x) for x in ('doln', 'fill', 'nz', 'p1d')]
    k(f's_cmp_ge_u32 {s(sR)}, 64'); k(f's_cbranch_scc1 {doln}')
    tid()
    k(f's_cmp_ge_u32 {s(sR)}, 40'); k(f's_cbranch_scc1 {fill}')
    k(f's_cmp_ge_u32 {s(sR)}, 16'); k(f's_cbranch_scc1 {nz}')
    k('v_mov_b64 v[4:5], 0'); k('v_mov_b64 v[6:7], 0')
    k('v_lshlrev_b32 v1, 4, v0')
    k(f's_lshl_b32 {s(sT0)}, {s(sR)}, 12')
    k(f's_add_u32 {s(sT0)}, {s(sT0)}, {FL}')
    k(f'buffer_store_dwordx4 v[4:7], v1, {s(S_WS,4)}, {s(sT0)} offen sc1')
    k.label(nz)
    emit_mod(k, sR, ' sc1')
    k(f's_mov_b32 {s(sF)}, 240')
    emit_signal_last(k, S_DBG, sF, 40, 96, 4, 5)
    k.label(fill)
    wstamp(k, 2)
    k('v_mov_b64 v[4:5], -1'); k('v_mov_b64 v[6:7], -1')
    k('v_lshlrev_b32 v1, 4, v0')
    k(f's_lshl_b32 {s(sT0)}, {s(sR)}, 13')
    k(f's_add_u32 {s(sT0)}, {s(sT0)}, {FILL0}')
    for i in range(2):
        k(f'buffer_store_dwordx4 v[4:7], v1, {s(S_WS,4)}, {s(sT0)} offen sc1')
        k(f's_add_u32 {s(sT0)}, {s(sT0)}, 4096')
    k('v_and_b32 v0, 63, v0')
    wait1()
    k(f's_mov_b32 {s(sF)}, {FL_INIT}')
    emit_signal(k, S_WS, sF, True, 4, 5)
    k(f's_branch {p1d}')
    k.label(doln)
    k(f's_sub_u32 {s(sP1)}, {s(sR)}, 64')
    k(f's_lshl_b32 {s(sP0)}, {s(sP1)}, 2'); k(f's_add_u32 {s(sP0)}, {s(sP0)}, {s(sW)}'); k(f's_lshl_b32 {s(sP0)}, {s(sP0)}, 2')
    def wait1s():
        wstamp(k, 2); wait1(); wstamp(k, 5)
    emit_ln1(k, sP0, wait1s)
    k(f's_lshr_b32 {s(sF)}, {s(sP1)}, 3'); k(f's_lshl_b32 {s(sF)}, {s(sF)}, 7'); k(f's_add_u32 {s(sF)}, {s(sF)}, {FL_H}')
    emit_signal(k, S_WS, sF, True, 4, 5)
    k.label(p1d)
    k(f's_mov_b32 {s(sJ)}, {s(sR)}')
    wstamp(k, 3)
    k(f's_mov_b32 {s(sR)}, 0')
    rtop, doq, dokv, dok, dov, rnext, r4 = [k.newlabel(x) for x in ('rtop', 'doq', 'dokv', 'dok', 'dov', 'rnext', 'r4')]
    def late_signal(n):
        e3 = k.newlabel('e')
        k(f's_cmp_eq_u32 {s(sR)}, 0'); k(f's_cbranch_scc1 {e3}')
        emit_signal(k, S_WS, sPF, True, 14, 15, vm=n, val=s(sPK))
        wstamp(k, 4)
        k.label(e3)
    k.label(rtop)
    div6(k, sP1, sP0, sI)
    half = k.newlabel('half')
    k(f's_cmp_lt_u32 {s(sR)}, 2'); k(f's_cbranch_scc1 {half}')
    k(f's_cmp_eq_u32 {s(sR)}, 4'); k(f's_cbranch_scc1 {r4}')
    k(f's_add_u32 {s(sP0)}, {s(sP0)}, 6')
    k(f's_cmp_eq_u32 {s(sR)}, 3'); k(f's_cbranch_scc1 {dokv}')
    k(f's_bitcmp0_b32 {s(sP1)}, 0')
    k(f's_cselect_b32 {s(sT0)}, 6, 0')
    k(f's_sub_u32 {s(sP0)}, {s(sP0)}, {s(sT0)}')
    k(f's_lshr_b32 {s(sP1)}, {s(sP1)}, 1')
    k(f's_branch {doq}')
    k.label(r4)
    k(f's_add_u32 {s(sP0)}, {s(sP0)}, 12')
    k(f's_cmp_lt_u32 {s(sP0)}, 16'); k(f's_cbranch_scc1 {dokv}')
    k(f's_and_b32 {s(sT0)}, {s(sP1)}, 1')
    k(f's_lshl_b32 {s(sT0)}, {s(sT0)}, 1')
    k(f's_add_u32 {s(sP0)}, {s(sP0)}, {s(sT0)}')
    k(f's_sub_u32 {s(sP0)}, {s(sP0)}, 4')
    k(f's_lshr_b32 {s(sP1)}, {s(sP1)}, 1')
    def waitH():
        k(f's_lshl_b32 {s(sF)}, {s(sP0)}, 7')
        k(f's_cmp_eq_u32 {s(sR)}, 0')
        k(f's_cselect_b32 {s(sF)}, {s(sF)}, 0')
        k(f's_cselect_b32 {s(sT2)}, 0, 15')
        k(f's_add_u32 {s(sF)}, {s(sF)}, {FL_H}')
        k(f'v_min_u32 v13, {s(sT2)}, v0')
        emit_wait(k, S_WS, sF, 16, 128, 8, 14, 15, lane=13, sleep=3, wg=True)
        wstamp(k, 6)
    def pend(base, val):
        k(f's_lshl_b32 {s(sPF)}, {s(sP1)}, 7'); k(f's_lshl_b32 {s(sT0)}, {s(sP0)}, 2')
        k(f's_add_u32 {s(sPF)}, {s(sPF)}, {s(sT0)}'); k(f's_add_u32 {s(sPF)}, {s(sPF)}, {base}')
        k(f's_mov_b32 {s(sPK)}, {val}')
        k(f's_branch {rnext}')
    def task(label, kind, srds, pw, base, val):
        k.label(label)
        set_srd(k, srds)
        emit_qkv_main(k, kind, sP0, sP1, sPO, 'g' + kind, pw, late_signal)
        wstamp(k, 7)
        emit_qkv_epi(k, kind, sPO)
        pend(base, val)
    task(doq, 'q', [(S_B0, A_WQ, 5242880)], None, FL_Q, 2)
    task(dokv, 'kv', [(S_B0, A_WK, 5242880), (S_B1, A_WV, 5242880)], None, FL_KV, 2)
    k.label(half)
    k(f's_and_b32 {s(sT0)}, {s(sP0)}, 1')
    k(f's_lshr_b32 {s(sP0)}, {s(sP0)}, 1')
    k(f's_mul_i32 {s(sT1)}, {s(sR)}, 3')
    k(f's_add_u32 {s(sP0)}, {s(sP0)}, {s(sT1)}')
    k(f's_cmp_eq_u32 {s(sT0)}, 1'); k(f's_cbranch_scc1 {dov}')
    task(dok, 'k', [(S_B0, A_WK, 5242880)], waitH, FL_KV, 1)
    task(dov, 'v', [(S_B0, A_WV, 5242880)], waitH, FL_KV, 1)
    k.label(rnext)
    k(f's_add_u32 {s(sR)}, {s(sR)}, 1')
    k(f's_cmp_lt_u32 {s(sR)}, 5'); k(f's_cbranch_scc1 {rtop}')
    late_signal(0)
    nom = k.newlabel('nom')
    k(f's_cmp_ge_u32 {s(sJ)}, 80'); k(f's_cbranch_scc1 {nom}')
    set_srd(k, [(S_B0, A_WMOD, 640 * 3840 * 2), (S_B1, A_C, 1280)])
    k(f's_add_u32 {s(sJ)}, {s(sJ)}, 40')
    tid()
    emit_mod(k, sJ, ' sc1')
    k('v_and_b32 v0, 63, v0')
    k(f's_mov_b32 {s(sF)}, {FL_INIT + 128}')
    emit_signal(k, S_WS, sF, True, 4, 5)
    k.label(nom)
    att, rff1, rff2, rln = k.newlabel('att'), k.newlabel('rff1'), k.newlabel('rff2'), k.newlabel('rln')
    k(f's_and_b32 {s(sG)}, {s(sX)}, 1')
    def gflag(base):
        k(f's_lshl_b32 {s(sF)}, {s(sG)}, 7'); k(f's_add_u32 {s(sF)}, {s(sF)}, {base}')
    def gnext(top, inc=2):
        k(f's_add_u32 {s(sG)}, {s(sG)}, {inc}')
        k(f's_cmp_lt_u32 {s(sG)}, 32'); k(f's_cbranch_scc1 {top}')
        k(f's_branch {end}')
    def b_ready(wait_mod, conv=None):
        k('s_waitcnt vmcnt(0)')
        if conv:
            emit_b_convert(k, *conv)
        if wait_mod:
            k(f's_mov_b32 {s(sF)}, {FL_INIT + 128}')
            emit_wait(k, S_WS, sF, 1, 0, 80, 14, 15, sleep=8, wg=True)
        k('s_barrier')
    def snext(top):
        k(f's_add_u32 {s(sG)}, {s(sG)}, 2')
        k(f's_cmp_lt_u32 {s(sG)}, 64'); k(f's_cbranch_scc1 {top}')
        k(f's_branch {end}')
    def sflag(base):
        k(f's_lshr_b32 {s(sF)}, {s(sG)}, 1'); k(f's_lshl_b32 {s(sF)}, {s(sF)}, 7'); k(f's_add_u32 {s(sF)}, {s(sF)}, {base}')
    k(f's_cmp_ge_u32 {s(sX)}, 6'); k(f's_cbranch_scc1 {rff2}')
    k(f's_cmp_ge_u32 {s(sX)}, 4'); k(f's_cbranch_scc1 {rff1}')
    set_srd(k, [(S_B0, A_WO, 5242880)])
    k(f's_lshr_b32 {s(sP1)}, {s(sH)}, 2'); k(f's_and_b32 {s(sP0)}, {s(sH)}, 3')
    k(f's_mul_i32 {s(sB)}, {s(sP1)}, {16*32*1280}'); k(f's_mul_i32 {s(sT1)}, {s(sP0)}, 320'); k(f's_add_u32 {s(sB)}, {s(sB)}, {s(sT1)}')
    emit_burst_b(k, 10, 16, 1280, True, S_B0, sB, 0)
    b_ready(False, (10, 16, 0))
    top = k.newlabel('wotop'); k.label(top)
    def waitA():
        k(f's_lshl_b32 {s(sF)}, {s(sG)}, 5'); k(f's_lshl_b32 {s(sT0)}, {s(sP1)}, 2')
        k(f's_add_u32 {s(sF)}, {s(sF)}, {s(sT0)}'); k(f's_add_u32 {s(sF)}, {s(sF)}, {FL_ATT}')
        emit_wait(k, S_WS, sF, 1, 0, 1, 14, 15, sleep=2, wg=True)
        wstamp(k, 10)
    emit_wo_task(k, sG, sP0, sP1, waitA)
    gflag(FL_WO); emit_signal(k, S_WS, sF, True, 4, 5)
    wstamp(k, 11)
    snext(top)
    k.label(rff1)
    g5 = k.newlabel('g5')
    k(f's_cmp_eq_u32 {s(sX)}, 5'); k(f's_cbranch_scc1 {g5}')
    k(f's_cmp_ge_u32 {s(sH)}, 27'); k(f's_cbranch_scc1 {end}')
    set_srd(k, [(S_B0, A_W1, 640 * 1728 * 2)])
    k(f's_lshl_b32 {s(sB)}, {s(sH)}, 7')
    emit_burst_b(k, 4, 20, 3456, False, S_B0, sB, 0)
    b_ready(False, (4, 20, 0))
    top = k.newlabel('f1top'); k.label(top)
    def waitL():
        k(f's_lshl_b32 {s(sF)}, {s(sE1)}, 7'); k(f's_add_u32 {s(sF)}, {s(sF)}, {FL_LN}')
        emit_wait(k, S_WS, sF, 1, 0, 8, 14, 15, sleep=3); wstamp(k, 14)
    emit_ff1_task(k, sG, sH, 4, waitL)
    k(f's_lshl_b32 {s(sF)}, {s(sE1)}, 7'); k(f's_add_u32 {s(sF)}, {s(sF)}, {FL_FF}')
    emit_signal_wave(k, S_WS, sF, 4, 5)
    wstamp(k, 15)
    gnext(top, 1)
    k.label(g5)
    k(f's_sub_u32 {s(sTASK)}, {s(sH)}, 16')
    k(f's_cmp_ge_u32 {s(sH)}, 16'); k(f's_cbranch_scc1 {att}')
    k(f's_mov_b32 {s(sTASK)}, {s(sH)}')
    k.label(rln)
    b_ready(True)
    k(f's_and_b32 {s(sG)}, {s(sTASK)}, 1')
    k(f's_lshr_b32 {s(sTASK)}, {s(sTASK)}, 1')
    k(f's_lshl_b32 {s(sP0)}, {s(sG)}, 4'); k(f's_add_u32 {s(sP0)}, {s(sP0)}, {s(sTASK)}')
    top = k.newlabel('lntop')
    def waitW():
        gflag(FL_WO); emit_wait(k, S_WS, sF, 1, 0, 32, 8, 9, sleep=2, wg=True); wstamp(k, 12)
    emit_ln2_pair(k, sP0, 8, waitW, 0, top)
    k(f's_lshr_b32 {s(sF)}, {s(sP0)}, 3'); k(f's_lshl_b32 {s(sF)}, {s(sF)}, 7'); k(f's_add_u32 {s(sF)}, {s(sF)}, {FL_LN}')
    emit_signal(k, S_WS, sF, True, 8, 9)
    wstamp(k, 13)
    k(f's_add_u32 {s(sP0)}, {s(sP0)}, 32')
    snext(top)
    k.label(rff2)
    k(f's_lshl_b32 {s(sT0)}, {s(sG)}, 2'); k(f's_add_u32 {s(sTASK)}, {s(sT0)}, {s(sH)}'); k(f's_sub_u32 {s(sTASK)}, {s(sTASK)}, 12')
    k(f's_cmp_ge_u32 {s(sH)}, 28'); k(f's_cbranch_scc1 {att}')
    k(f's_lshl_b32 {s(sT0)}, {s(sG)}, 3'); k(f's_add_u32 {s(sTASK)}, {s(sT0)}, {s(sH)}'); k(f's_sub_u32 {s(sTASK)}, {s(sTASK)}, 4')
    k(f's_cmp_ge_u32 {s(sH)}, 20'); k(f's_cbranch_scc1 {rln}')
    set_srd(k, [(S_B0, A_W2, 640 * 1728 * 2)])
    k(f's_lshl_b32 {s(sB)}, {s(sH)}, 6')
    emit_burst_b(k, 2, 54, 1280, True, S_B0, sB, 0)
    b_ready(True, (2, 54, 0))
    top = k.newlabel('f2top'); k.label(top)
    def waitF():
        k(f's_lshl_b32 {s(sF)}, {s(sG)}, 8'); k(f's_add_u32 {s(sF)}, {s(sF)}, {FL_FF}')
        emit_wait(k, S_WS, sF, 2, 128, 27, 14, 15, sleep=2, wg=True); wstamp(k, 16)
    emit_ff2_task(k, sG, sH, waitF, 118784)
    wstamp(k, 17)
    snext(top)
    k.label(att)
    emit_att_setup(k)
    k(f's_lshr_b32 {s(sG)}, {s(sTASK)}, 3')
    k(f's_and_b32 {s(sTASK)}, {s(sTASK)}, 7')
    k(f's_lshl_b32 {s(sP1)}, {s(sTASK)}, 2'); k(f's_add_u32 {s(sP1)}, {s(sP1)}, {s(sW)}')
    k(f's_lshl_b32 {s(sF)}, {s(sP1)}, 7'); k(f's_add_u32 {s(sF)}, {s(sF)}, {FL_KV}')
    emit_wait(k, S_WS, sF, 16, 4, 2, 4, 5)
    k(f's_lshr_b32 {s(sF)}, {s(sP1)}, 1'); k(f's_lshl_b32 {s(sF)}, {s(sF)}, 7'); k(f's_add_u32 {s(sF)}, {s(sF)}, {FL_Q}')
    emit_wait(k, S_WS, sF, 16, 4, 2, 4, 5)
    atop = k.newlabel('atop')
    k.label(atop)
    def wait_kvm(X):
        top, done = k.newlabel('km'), k.newlabel('kmd')
        k.label(top)
        for i in range(4):
            k(f'buffer_load_dwordx4 {v(X+4*i,4)}, v1, {s(S_WS,4)}, {s(sT3)} offen offset:{i*1024} sc1')
        k('s_waitcnt vmcnt(0)')
        for op in rec.max_ops(range(X, X + 16), 4):
            k(op)
        k('v_cmp_eq_u32 vcc, -1, v4')
        k(f's_cbranch_vccz {done}')
        k('s_sleep 2')
        k(f's_sub_u32 {s(sBUD)}, {s(sBUD)}, 1')
        k(f's_cbranch_scc0 {top}')
        k(f's_mov_b32 {s(sBUD)}, 0')
        k.label(done)
        wstamp(k, 20)
    emit_att_task(k, sG, sP1, wait_kvm)
    k(f's_lshl_b32 {s(sF)}, {s(sG)}, 5'); k(f's_lshl_b32 {s(sT0)}, {s(sTASK)}, 2')
    k(f's_add_u32 {s(sF)}, {s(sF)}, {s(sT0)}'); k(f's_add_u32 {s(sF)}, {s(sF)}, {FL_ATT}')
    emit_signal(k, S_WS, sF, False, 4, 5)
    wstamp(k, 21)
    k(f's_add_u32 {s(sG)}, {s(sG)}, 3')
    k(f's_cmp_lt_u32 {s(sG)}, 64'); k(f's_cbranch_scc1 {atop}')

def build(as_list=True, diag=False):
    global DIAG
    DIAG = diag
    k = Asm()
    n = 'main_kernel' if as_list else NAME + '_kernel'
    k.raw(f'.globl {n}\n.p2align 8\n.type {n},@function'); k.label(n)
    if diag:
        k('s_memrealtime s[86:87]')
    rec.emit_role(k, 'main_end0')
    k(f's_cmp_ge_u32 {s(sX)}, 8'); k('s_cbranch_scc1 main_end0')
    if not rec.CFG.get('x_nocw'):
        k(f's_cmp_lg_u32 {s(sW)}, 3'); k('s_cbranch_scc1 main_nocw')
        k('s_getpc_b64 s[80:81]')
        k.label('main_pc')
        k('s_lshr_b32 s82, s2, 3'); k('s_and_b32 s82, s82, 31'); k('s_lshl_b32 s82, s82, 12')
        k('v_lshlrev_b32 v40, 7, v0'); k('v_add_u32 v40, s82, v40')
        k('v_mov_b32 v41, main_end - main_pc')
        k('v_min_u32 v40, v40, v41')
        k('v_cmp_gt_u32 vcc, 32, v0')
        k('s_and_saveexec_b64 s[82:83], vcc')
        k('s_cbranch_execz main_nocw')
        k('global_load_dword v42, v40, s[80:81]')
        k.label('main_nocw')
        k('s_mov_b64 exec, -1')
    k(f's_cmp_ge_u32 {s(sX)}, 2'); k('s_cbranch_scc1 main_worker')
    rec.emit_team(k, diag, 'main_end0')
    k.label('main_end0'); k('s_endpgm')
    k.label('main_worker')
    emit_worker(k, 'main_end')
    k.label('main_end'); k('s_endpgm')
    if as_list:
        head = f'; @launch kernel={n} grid=(256,1,1) block=(256,1,1) lds=163840\n'
    else:
        head = '; @launch grid=(256,1,1) block=(256,1,1) lds=163840\n'
    head += '.amdgcn_target "amdgcn-amd-amdhsa--gfx950"\n.text\n'
    return head + align.align(k.text()) + '.section .rodata,"a"\n' + desc(n, 512, 256)
if __name__ == '__main__':
    rec.CFG.update(fused=True)
    for a_ in sys.argv[1:]:
        if '=' in a_:
            kk, vv = a_.split('=', 1); rec.CFG[kk] = eval(vv)
    open('v2.s', 'w').write(build(True, 'diag' in sys.argv))
    hdr = open('cdna_kernels/' + NAME + '.s.ref').read().split('\n')[:16]
    open('v2_final.s', 'w').write('\n'.join(hdr) + '\n' + build(False, False))
```
